```python
import torch

def _softmax(x, axis=-1):
    return torch.softmax(x, dim=axis)
def _gelu(x):
    return torch.nn.functional.gelu(x, approximate="tanh")
def _silu(x):
    return torch.nn.functional.silu(x)
def _sigmoid(x):
    return torch.sigmoid(x)
def _layernorm(x, axis=-1, eps=1e-5):
    m = x.mean(dim=axis, keepdim=True)
    v = x.var(dim=axis, keepdim=True, unbiased=False)
    return (x - m) / torch.sqrt(v + eps)
def _scatter_add(tgt, idx, src, axis=0):
    return tgt.clone().index_add_(axis, idx, src)
def _segment_sum(src, seg, n):
    out = torch.zeros((n,) + src.shape[1:], dtype=src.dtype)
    return out.index_add_(0, seg, src)
def _pad(x, pw):
    flat = tuple(v for pair in reversed(pw) for v in pair)
    return torch.nn.functional.pad(x, flat)

kernel_name = 'parallel_sum__mha_block_cached__mixer_channel_mlp__decode'

def setup_inputs():

    _w = (lambda a: (lambda t: t.to(torch.bfloat16) if t.is_floating_point() else t)(torch.as_tensor(a)))
    def _A_setup():
        B, Sq, D = 8, 1, 576
        H, Sk, Dh = 32, 4096, 128
        return {
            "x": _w((lambda *s: torch.randn(*s, dtype=torch.bfloat16) * 0.05)(B, Sq, D)),
            "k_cache": _w((lambda *s: torch.randn(*s, dtype=torch.bfloat16) * 3.2)(B, H, Sk, Dh)),
            "v_cache": _w((lambda *s: torch.randn(*s, dtype=torch.bfloat16) * 0.4)(B, H, Sk, Dh)),
            "wq": _w((lambda *s: torch.randn(*s, dtype=torch.bfloat16) * 3.2)(D, H * Dh) * (D ** -0.5)),
            "wo": _w((lambda *s: torch.randn(*s, dtype=torch.bfloat16) * 0.4)(H * Dh, D) * ((H * Dh) ** -0.5)),
        }
    _A_in = _A_setup()

    def _B_setup():
        B, S, D, F = 8, 1, 576, 4608
        return {
            "x": _w((lambda *s: torch.randn(*s, dtype=torch.bfloat16) * 0.05)(B, S, D)),
            "w1": _w((lambda *s: torch.randn(*s, dtype=torch.bfloat16) * 3.2)(D, F) * (D ** -0.5)),
            "b1": _w((lambda *s: torch.randn(*s, dtype=torch.bfloat16) * 1.6)(F)),
            "w2": _w((lambda *s: torch.randn(*s, dtype=torch.bfloat16) * 0.1)(F, D) * (F ** -0.5)),
            "b2": _w((lambda *s: torch.randn(*s, dtype=torch.bfloat16) * 0.1)(D)),
        }
    _B_in = _B_setup()

    return {
        "A_x": _A_in["x"],
        "A_k_cache": _A_in["k_cache"],
        "A_v_cache": _A_in["v_cache"],
        "A_wq": _A_in["wq"],
        "A_wo": _A_in["wo"],
        "B_x": _B_in["x"],
        "B_w1": _B_in["w1"],
        "B_b1": _B_in["b1"],
        "B_w2": _B_in["w2"],
        "B_b2": _B_in["b2"],
    }

def reference(A_x, A_k_cache, A_v_cache, A_wq, A_wo, B_x, B_w1, B_b1, B_w2, B_b2):
    def _A_ref(x, k_cache, v_cache, wq, wo):
        B, Sq, D = x.shape
        H, Dh = 32, 128
        q = (lambda x, *d: x.permute(*d))((x @ wq).reshape(B, Sq, H, Dh), 0, 2, 1, 3)
        scores = torch.einsum("bhqd,bhkd->bhqk", q, k_cache) * (Dh ** -0.5)
        p = _softmax(scores, axis=-1)
        o = torch.einsum("bhqk,bhkd->bhqd", p, v_cache)
        return (lambda x, *d: x.permute(*d))(o, 0, 2, 1, 3).reshape(B, Sq, H * Dh) @ wo

    def _B_ref(x, w1, b1, w2, b2):
        y = _layernorm(x, axis=-1)
        h = _gelu(torch.einsum("bsd,df->bsf", y, w1) + b1)
        return torch.einsum("bsf,fd->bsd", h, w2) + b2

    x = A_x
    xn = _layernorm(x, axis=-1)
    return x + _A_ref(xn, A_k_cache, A_v_cache, A_wq, A_wo) + _B_ref(xn, B_w1, B_b1, B_w2, B_b2)
```

```python
import sys, math

KNAME = "parallel_sum__mha_block_cached__mixer_channel_mlp__decode_kernel"

class Cfg:
    N = 5
    RUNAHEAD = 24
    B2_ITER = 3
    WFLAGS = ""
    STAMPS = False
    PRIO = 2
    perm = 0

RING = 0
MISC = 131072
QPART = MISC
QBF   = QPART + 2048
XPRIV = QBF + 1024
HPART = XPRIV + 5120
OPART = HPART + 4096
ML    = OPART + 2048
OUTP  = ML + 64
FLAG  = OUTP + 10240
LDS_END = FLAG + 64
RED   = 0
LDS_BYTES = (LDS_END + 1024 + 255)//256*256

C_SCALE = (128 ** -0.5) * math.log2(math.e)

import struct
def f2u(x): return struct.unpack("<I", struct.pack("<f", x))[0]
def hexf(x): return "0x%08x" % f2u(x)

class Asm:
    def __init__(self): self.L = []
    def __call__(self, s): self.L.append("  " + s)
    def label(self, s): self.L.append(s + ":")
    def c(self, s): self.L.append("  ; " + s)
    def text(self): return "\n".join(self.L)

def vr(b, n=1): return f"v{b}" if n == 1 else f"v[{b}:{b+n-1}]"
def sr(b, n=1): return f"s{b}" if n == 1 else f"s[{b}:{b+n-1}]"

S_WG=2; S_WAVE=3
S_K=4; S_V=6
S_SRDK=8; S_SRDV=12
S_X=16
S_WQ=20; S_WO=22
S_W1=24; S_B1=26
S_W2=28; S_B2=30
S_OUT=32; S_DBG=34
S_WS=36
S_B=38; S_H=39
S_T0=40; S_T1=41; S_T2=42; S_T3=43
S_OFFA=44; S_OFFB=45; S_RING=46; S_CNT=47
S_C=48
S_SRD2=52
S_SRD3=56
S_EX=60
S_SW=62
S_STAMP=64
S_MASKHI=80
S_TS=82

def allreduce_sum(a, v, t):
    for r in (8,4,2,1):
        a("s_nop 1")
        a(f"v_add_f32_dpp {vr(v)}, {vr(v)}, {vr(v)} row_ror:{r} row_mask:0xf bank_mask:0xf")
    a(f"v_mov_b32 {vr(t)}, {vr(v)}")
    a("s_nop 1")
    a(f"v_permlane16_swap_b32 {vr(v)}, {vr(t)}")
    a("s_nop 1")
    a(f"v_add_f32 {vr(v)}, {vr(v)}, {vr(t)}")
    a(f"v_mov_b32 {vr(t)}, {vr(v)}")
    a("s_nop 1")
    a(f"v_permlane32_swap_b32 {vr(v)}, {vr(t)}")
    a("s_nop 1")
    a(f"v_add_f32 {vr(v)}, {vr(v)}, {vr(t)}")

def groups_allreduce(a, v, t, op):
    a(f"v_mov_b32 {vr(t)}, {vr(v)}")
    a("s_nop 1")
    a(f"v_permlane16_swap_b32 {vr(v)}, {vr(t)}")
    a("s_nop 1")
    a(f"{op} {vr(v)}, {vr(v)}, {vr(t)}")
    a(f"v_mov_b32 {vr(t)}, {vr(v)}")
    a("s_nop 1")
    a(f"v_permlane32_swap_b32 {vr(v)}, {vr(t)}")
    a("s_nop 1")
    a(f"{op} {vr(v)}, {vr(v)}, {vr(t)}")

def make_selectors(a, lane, selE, selO, t0, t1, t2, t3):
    a(f"v_and_b32 {vr(t0)}, 15, {vr(lane)}")
    a(f"v_and_b32 {vr(t1)}, 1, {vr(t0)}")
    a(f"v_mov_b32 {vr(t2)}, 0x0c0c0100")
    a(f"v_mov_b32 {vr(t3)}, 0x01000c0c")
    a(f"v_cmp_eq_u32 vcc, 1, {vr(t1)}")
    a("s_nop 1")
    a(f"v_cndmask_b32 {vr(t2)}, {vr(t2)}, {vr(t3)}, vcc")
    a(f"v_mov_b32 {vr(t3)}, 0x0c0c0302")
    a(f"v_mov_b32 {vr(t1)}, 0x03020c0c")
    a(f"v_cndmask_b32 {vr(t3)}, {vr(t3)}, {vr(t1)}, vcc")
    a(f"v_lshrrev_b32 {vr(t0)}, 1, {vr(t0)}")
    a(f"v_mov_b32 {vr(t1)}, 0x0c0c0c0c")
    for k in range(4):
        a(f"v_cmp_eq_u32 vcc, {k}, {vr(t0)}")
        a("s_nop 1")
        a(f"v_cndmask_b32 {vr(selE+k)}, {vr(t1)}, {vr(t2)}, vcc")
        a(f"v_cndmask_b32 {vr(selO+k)}, {vr(t1)}, {vr(t3)}, vcc")

def diag(a, dst, P, parity, selE, selO):
    sel = selO if parity else selE
    for k in range(4):
        a(f"v_perm_b32 {vr(dst+k)}, {vr(P)}, {vr(P)}, {vr(sel+k)}")

def mfma(a, D, A, B, C):
    c = "0" if C is None else vr(C,4)
    a(f"v_mfma_f32_16x16x32_bf16 {vr(D,4)}, {vr(A,4)}, {vr(B,4)}, {c}")

def stamp(a, cfg, idx):
    if cfg.STAMPS:
        a(f"s_memrealtime {sr(S_STAMP+2*idx,2)}")

def srd(a, d, base, off_lo_sreg_or_none, size):
    if off_lo_sreg_or_none is None:
        a(f"s_mov_b32 {sr(d)}, {sr(base)}")
        a(f"s_mov_b32 {sr(d+1)}, {sr(base+1)}")
    else:
        a(f"s_add_u32 {sr(d)}, {sr(base)}, {sr(off_lo_sreg_or_none)}")
        a(f"s_addc_u32 {sr(d+1)}, {sr(base+1)}, 0")
    if isinstance(size, int):
        a(f"s_mov_b32 {sr(d+2)}, {size}")
    else:
        a(f"s_mov_b32 {sr(d+2)}, {size}")
    a(f"s_mov_b32 {sr(d+3)}, 0x20000")

def gen_stream(a, cfg):
    N = cfg.N
    LAG = 3 + N
    V_LANE=0
    VK=2
    VV=6
    VKR=8
    VVR=12
    VT=13
    VQ=16
    VA=32
    VS=48
    VP=56
    VAO=60
    VO=68
    VM=72; VL=73; VAL=74; VMC=75
    SELE=76; SELO=80
    VX=84

    a.label("L_stream")
    if cfg.PRIO: a(f"s_setprio {cfg.PRIO}")
    a(f"s_lshl_b32 {sr(S_T0)}, {sr(S_WG)}, 20")
    srd(a, S_SRDK, S_K, S_T0, 0x100000)
    srd(a, S_SRDV, S_V, S_T0, 0x100000)
    a(f"v_lshrrev_b32 {vr(VT)}, 4, {vr(V_LANE)}")
    a(f"v_and_b32 {vr(VT+1)}, 15, {vr(V_LANE)}")
    for j in range(4):
        a(f"v_add_u32 {vr(VK+j)}, {4*j}, {vr(VT)}")
        a(f"v_xor_b32 {vr(VK+j)}, {vr(VK+j)}, {vr(VT+1)}")
        a(f"v_lshlrev_b32 {vr(VK+j)}, 4, {vr(VK+j)}")
        a(f"v_lshl_add_u32 {vr(VK+j)}, {vr(VT)}, 8, {vr(VK+j)}")
    a(f"v_lshlrev_b32 {vr(VV)}, 4, {vr(V_LANE)}")
    a(f"s_lshl_b32 {sr(S_OFFA)}, {sr(S_WAVE)}, 13")
    a(f"s_add_u32 {sr(S_OFFB)}, {sr(S_OFFA)}, 4096")
    a(f"s_lshl_b32 {sr(S_RING)}, {sr(S_WAVE)}, 15")

    state = {"m0grp": None}
    def issue(i, wait=True):
        grp = i//4; j = i%4; pos = (i%16)//4
        if state["m0grp"] != grp % 8 or j == 0:
            a(f"s_add_u32 m0, {sr(S_RING)}, {(grp%8)*4096}")
            state["m0grp"] = grp % 8
            if not wait: a("s_nop 0")
        if wait: a(f"s_waitcnt vmcnt({N-1})")
        so = S_OFFA if pos in (0,2) else S_OFFB
        if pos < 2:
            a(f"buffer_load_dwordx4 {vr(VK+j)}, {sr(S_SRDK,4)}, {sr(so)} offen offset:{j*1024} nt lds")
        else:
            a(f"buffer_load_dwordx4 {vr(VV)}, {sr(S_SRDV,4)}, {sr(so)} offen offset:{j*1024} nt lds")
        if i % 16 == 15:
            a(f"s_add_u32 {sr(S_OFFA)}, {sr(S_OFFA)}, 32768")
            a(f"s_add_u32 {sr(S_OFFB)}, {sr(S_OFFB)}, 32768")

    for i in range(N): issue(i, wait=False)
    a(f"v_lshrrev_b32 {vr(VT)}, 4, {vr(V_LANE)}")
    a(f"v_and_b32 {vr(VT+1)}, 15, {vr(V_LANE)}")
    for t in range(4):
        a(f"v_add_u32 {vr(VKR+t)}, {4*t}, {vr(VT)}")
        a(f"v_xor_b32 {vr(VKR+t)}, {vr(VKR+t)}, {vr(VT+1)}")
        a(f"v_lshlrev_b32 {vr(VKR+t)}, 4, {vr(VKR+t)}")
        a(f"v_lshl_add_u32 {vr(VKR+t)}, {vr(VT+1)}, 8, {vr(VKR+t)}")
        a(f"v_add_u32 {vr(VKR+t)}, {sr(S_RING)}, {vr(VKR+t)}")
    a(f"v_lshlrev_b32 {vr(VVR)}, 10, {vr(VT)}")
    a(f"v_lshl_add_u32 {vr(VVR)}, {vr(VT+1)}, 4, {vr(VVR)}")
    a(f"v_add_u32 {vr(VVR)}, {sr(S_RING)}, {vr(VVR)}")
    make_selectors(a, V_LANE, SELE, SELO, VX, VX+1, VX+2, VX+3)
    a(f"v_mov_b32 {vr(VM)}, 0xff800000")
    a(f"v_mov_b32 {vr(VL)}, 0")
    for r in range(4): a(f"v_mov_b32 {vr(VO+r)}, 0")
    a(f"s_mov_b32 {sr(S_C)}, {hexf(C_SCALE)}")

    def consume(g):
        pos = g % 4; slot = (g % 8) * 4096
        if pos < 2:
            S = VS + 4*pos
            for t in range(4):
                a(f"ds_read_b128 {vr(VA+4*t,4)}, {vr(VKR+t)} offset:{slot}")
            for t in range(4):
                a(f"s_waitcnt lgkmcnt({3-t})")
                mfma(a, S, VA+4*t, VQ+4*t, None if t == 0 else S)
            if pos == 1:
                softmax()
        else:
            half = pos - 2
            for r in range(4):
                a(f"ds_read_b128 {vr(VA+4*r,4)}, {vr(VVR)} offset:{slot + r*256}")
            for r in range(4):
                ao = VAO + 4*(r&1)
                diag(a, ao, VP + 2*half + (r>>1), r&1, SELE, SELO)
                a(f"s_waitcnt lgkmcnt({3-r})")
                a("s_nop 0")
                mfma(a, VO, ao, VA+4*r, VO)

    def softmax():
        a(f"v_max3_f32 {vr(VX)}, {vr(VS)}, {vr(VS+1)}, {vr(VS+2)}")
        a(f"v_max3_f32 {vr(VX)}, {vr(VX)}, {vr(VS+3)}, {vr(VM)}")
        a("s_nop 5")
        a(f"v_max3_f32 {vr(VX+1)}, {vr(VS+4)}, {vr(VS+5)}, {vr(VS+6)}")
        a(f"v_max3_f32 {vr(VX)}, {vr(VX)}, {vr(VS+7)}, {vr(VX+1)}")
        groups_allreduce(a, VX, VX+1, "v_max_f32")
        a(f"v_sub_f32 {vr(VAL)}, {vr(VM)}, {vr(VX)}")
        a(f"v_mul_f32 {vr(VMC)}, {sr(S_C)}, {vr(VX)}")
        a(f"v_mul_f32 {vr(VAL)}, {sr(S_C)}, {vr(VAL)}")
        a(f"v_mov_b32 {vr(VM)}, {vr(VX)}")
        a(f"v_exp_f32 {vr(VAL)}, {vr(VAL)}")
        for r in range(8):
            a(f"v_fma_f32 {vr(VS+r)}, {vr(VS+r)}, {sr(S_C)}, -{vr(VMC)}")
        for r in range(8):
            a(f"v_exp_f32 {vr(VS+r)}, {vr(VS+r)}")
        for r in range(4):
            a(f"v_mul_f32 {vr(VO+r)}, {vr(VO+r)}, {vr(VAL)}")
        a(f"v_mul_f32 {vr(VL)}, {vr(VL)}, {vr(VAL)}")
        a(f"v_add_f32 {vr(VX)}, {vr(VS)}, {vr(VS+1)}")
        a(f"v_add_f32 {vr(VX+1)}, {vr(VS+2)}, {vr(VS+3)}")
        a(f"v_add_f32 {vr(VX+2)}, {vr(VS+4)}, {vr(VS+5)}")
        a(f"v_add_f32 {vr(VX+3)}, {vr(VS+6)}, {vr(VS+7)}")
        for r in range(4):
            a(f"v_cvt_pk_bf16_f32 {vr(VP+r)}, {vr(VS+2*r)}, {vr(VS+2*r+1)}")
        a(f"v_add_f32 {vr(VX)}, {vr(VX)}, {vr(VX+1)}")
        a(f"v_add_f32 {vr(VX+2)}, {vr(VX+2)}, {vr(VX+3)}")
        a(f"v_add_f32 {vr(VL)}, {vr(VL)}, {vr(VX)}")
        a(f"v_add_f32 {vr(VL)}, {vr(VL)}, {vr(VX+2)}")

    RA = cfg.RUNAHEAD
    for i in range(N, RA): issue(i)
    stamp(a, cfg, 1)
    a("s_barrier")
    stamp(a, cfg, 2)
    nxt = RA
    for _ in range(4):
        issue(nxt); nxt += 1
    a(f"v_lshlrev_b32 {vr(VX)}, 4, {vr(V_LANE)}")
    a(f"v_and_b32 {vr(VX)}, 0x1ff, {vr(VX)}")
    a(f"v_add_u32 {vr(VX)}, {QPART}, {vr(VX)}")
    for p in range(4):
        a(f"ds_read_b128 {vr(VA+4*p,4)}, {vr(VX)} offset:{p*512}")
    a("s_waitcnt lgkmcnt(0)")
    for e in range(4):
        a(f"v_add_f32 {vr(VA+e)}, {vr(VA+e)}, {vr(VA+4+e)}")
        a(f"v_add_f32 {vr(VA+8+e)}, {vr(VA+8+e)}, {vr(VA+12+e)}")
    for e in range(4):
        a(f"v_add_f32 {vr(VA+e)}, {vr(VA+e)}, {vr(VA+8+e)}")
    a(f"v_cvt_pk_bf16_f32 {vr(VA+4)}, {vr(VA)}, {vr(VA+1)}")
    a(f"v_cvt_pk_bf16_f32 {vr(VA+5)}, {vr(VA+2)}, {vr(VA+3)}")
    a(f"v_lshlrev_b32 {vr(VX+1)}, 3, {vr(V_LANE)}")
    a(f"v_and_b32 {vr(VX+1)}, 0xff, {vr(VX+1)}")
    a(f"s_lshl_b32 {sr(S_T0)}, {sr(S_WAVE)}, 8")
    a(f"s_add_u32 {sr(S_T0)}, {sr(S_T0)}, {QBF}")
    a(f"v_add_u32 {vr(VX+1)}, {sr(S_T0)}, {vr(VX+1)}")
    a(f"ds_write_b64 {vr(VX+1)}, {vr(VA+4,2)}")
    a(f"v_lshrrev_b32 {vr(VX+2)}, 4, {vr(V_LANE)}")
    a(f"v_lshlrev_b32 {vr(VX+2)}, 4, {vr(VX+2)}")
    a(f"v_add_u32 {vr(VX+2)}, {sr(S_T0)}, {vr(VX+2)}")
    a("s_waitcnt lgkmcnt(0)")
    for t in range(4):
        a(f"ds_read_b128 {vr(VQ+4*t,4)}, {vr(VX+2)} offset:{t*64}")
    a("s_waitcnt lgkmcnt(0)")
    target = 32 + LAG
    g = 0
    while g < 8 or nxt < target:
        can_issue = nxt < target and (nxt < 32 or (nxt-32)//4 < g)
        can_cons = g < 8 and (nxt - 1) >= 4*g + 3 + N
        if can_cons:
            consume(g); g += 1
            n = 0
            while n < 2 and nxt < target and (nxt < 32 or (nxt-32)//4 < g):
                issue(nxt); nxt += 1; n += 1
        elif can_issue:
            issue(nxt); nxt += 1
        else:
            raise RuntimeError("schedule deadlock")
    assert nxt == target and g == 8
    a(f"s_mov_b32 {sr(S_CNT)}, 1")
    state["m0grp"] = None
    a.label("L_sloop")
    for u in range(32):
        issue(32 + LAG + u)
        if u % 4 == 0:
            consume(8 + u//4)
    a(f"s_cmp_lg_u32 {sr(S_CNT)}, {cfg.B2_ITER}")
    a("s_cbranch_scc1 L_nob2")
    a("s_barrier")
    a.label("L_nob2")
    a(f"s_add_u32 {sr(S_CNT)}, {sr(S_CNT)}, 1")
    a(f"s_cmp_lt_u32 {sr(S_CNT)}, 16")
    a("s_cbranch_scc1 L_sloop")
    stamp(a, cfg, 3)
    groups_allreduce(a, VL, VX, "v_add_f32")
    a(f"v_and_b32 {vr(VX)}, 15, {vr(V_LANE)}")
    a(f"v_lshrrev_b32 {vr(VX+1)}, 4, {vr(V_LANE)}")
    a(f"v_lshlrev_b32 {vr(VX)}, 5, {vr(VX)}")
    a(f"v_lshl_add_u32 {vr(VX)}, {vr(VX+1)}, 4, {vr(VX)}")
    a(f"s_lshl_b32 {sr(S_T0)}, {sr(S_WAVE)}, 9")
    a(f"s_add_u32 {sr(S_T0)}, {sr(S_T0)}, {OPART}")
    a(f"v_add_u32 {vr(VX)}, {sr(S_T0)}, {vr(VX)}")
    a(f"s_lshl_b32 {sr(S_T0)}, {sr(S_WAVE)}, 2")
    a(f"s_add_u32 {sr(S_T0)}, {sr(S_T0)}, {ML}")
    a(f"v_mov_b32 {vr(VX+2)}, {sr(S_T0)}")
    a("s_mov_b32 exec_hi, 0")
    a(f"ds_write_b128 {vr(VX)}, {vr(VO,4)}")
    a("s_mov_b64 exec, 1")
    a(f"ds_write_b32 {vr(VX+2)}, {vr(VM)}")
    a(f"ds_write_b32 {vr(VX+2)}, {vr(VL)} offset:16")
    a("s_mov_b64 exec, -1")
    a("s_waitcnt vmcnt(0) lgkmcnt(0)")
    a("s_barrier")
    a("s_branch L_tail")

def gen_side(a, cfg):
    V_LANE=0
    VF=2
    VXR=12
    VT=17
    SELE=28; SELO=32
    VAO=36
    VACC=44
    VH0=64; VH1=68
    VXA=72
    VOF=90
    VW=96
    WF = cfg.WFLAGS

    a.label("L_side")
    a(f"s_sub_u32 {sr(S_SW)}, {sr(S_WAVE)}, 4")
    a(f"s_mul_i32 {sr(S_T0)}, {sr(S_B)}, 1152")
    srd(a, S_SRDK, S_X, S_T0, 1152)
    a(f"v_lshlrev_b32 {vr(VT)}, 2, {vr(V_LANE)}")
    for k in range(5):
        a(f"buffer_load_dword {vr(VXR+k)}, {vr(VT)}, {sr(S_SRDK,4)}, 0 offen offset:{256*k}")
    a(f"s_lshl_b32 {sr(S_T0)}, {sr(S_H)}, 8")
    a(f"s_sub_u32 {sr(S_T1)}, {576*8192}, {sr(S_T0)}")
    srd(a, S_SRDV, S_WQ, S_T0, sr(S_T1))
    a(f"v_lshrrev_b32 {vr(VT+1)}, 4, {vr(V_LANE)}")
    a(f"v_and_b32 {vr(VT+2)}, 15, {vr(V_LANE)}")
    a(f"v_mul_u32_u24 {vr(VT+3)}, 36, {vr(VT+1)}")
    a(f"s_mul_i32 {sr(S_T2)}, {sr(S_SW)}, 144")
    a(f"v_add_u32 {vr(VT+3)}, {sr(S_T2)}, {vr(VT+3)}")
    a(f"v_lshlrev_b32 {vr(VOF)}, 13, {vr(VT+3)}")
    a(f"v_lshl_add_u32 {vr(VOF)}, {vr(VT+2)}, 4, {vr(VOF)}")
    a(f"s_mov_b32 {sr(S_T3)}, 0")
    for t in range(36):
        a(f"buffer_load_dwordx4 {vr(VW+4*t,4)}, {vr(VOF)}, {sr(S_SRDV,4)}, {sr(S_T3)} offen {WF}")
        if t < 35: a(f"s_add_u32 {sr(S_T3)}, {sr(S_T3)}, 8192")
    a(f"s_mov_b32 {sr(S_T3)}, 9216")
    a(f"v_mul_lo_u32 {vr(VOF+1)}, {vr(VT+3)}, {sr(S_T3)}")
    a(f"v_lshl_add_u32 {vr(VOF+1)}, {vr(VT+2)}, 4, {vr(VOF+1)}")
    a(f"v_add_u32 {vr(VOF+2)}, 256, {vr(VOF+1)}")
    a(f"v_mov_b32 {vr(VT+4)}, 0x7f000000")
    a(f"v_cmp_gt_u32 vcc, 2, {vr(VT+2)}")
    a("s_nop 1")
    a(f"v_cndmask_b32 {vr(VOF+2)}, {vr(VT+4)}, {vr(VOF+2)}, vcc")
    make_selectors(a, V_LANE, SELE, SELO, VT+4, VT+5, VT+6, VT+7)
    a(f"s_mov_b32 {sr(S_MASKHI)}, 0xffff0000")
    a(f"s_mul_i32 {sr(S_T0)}, {sr(S_SW)}, 1280")
    a(f"s_add_u32 {sr(S_T0)}, {sr(S_T0)}, {XPRIV}")
    a(f"v_lshl_add_u32 {vr(VOF+3)}, {vr(V_LANE)}, 2, {sr(S_T0)}")
    a(f"s_mul_i32 {sr(S_T1)}, {sr(S_SW)}, 288")
    a(f"s_add_u32 {sr(S_T0)}, {sr(S_T0)}, {sr(S_T1)}")
    a(f"v_mul_u32_u24 {vr(VOF+4)}, 72, {vr(VT+1)}")
    a(f"v_add_u32 {vr(VOF+4)}, {sr(S_T0)}, {vr(VOF+4)}")
    a(f"s_mov_b32 {sr(S_EX)}, -1")
    a(f"s_mov_b32 {sr(S_EX+1)}, 0")

    def layernorm():
        s = VT+8; t = VT+9; u = VT+10
        a(f"v_add_f32 {vr(s)}, {vr(VF)}, {vr(VF+1)}")
        for k in range(2,10): a(f"v_add_f32 {vr(s)}, {vr(s)}, {vr(VF+k)}")
        allreduce_sum(a, s, t)
        a(f"v_mul_f32 {vr(s)}, {hexf(1.0/576)}, {vr(s)}")
        D = VT
        a(f"v_sub_f32 {vr(t)}, {vr(VF)}, {vr(s)}")
        a(f"v_mul_f32 {vr(u)}, {vr(t)}, {vr(t)}")
        for k in range(1,10):
            a(f"v_sub_f32 {vr(t)}, {vr(VF+k)}, {vr(s)}")
            if k >= 8:
                a(f"v_cndmask_b32 {vr(t)}, 0, {vr(t)}, {sr(S_EX,2)}")
            a(f"v_fmac_f32 {vr(u)}, {vr(t)}, {vr(t)}")
        allreduce_sum(a, u, t)
        a(f"v_mul_f32 {vr(u)}, {hexf(1.0/576)}, {vr(u)}")
        a(f"v_cvt_pk_bf16_f32 {vr(t)}, {vr(s)}, {vr(u)}")
        a(f"v_lshlrev_b32 {vr(s)}, 16, {vr(t)}")
        a(f"v_and_b32 {vr(u)}, {sr(S_MASKHI)}, {vr(t)}")
        a(f"v_add_f32 {vr(u)}, {hexf(1e-5)}, {vr(u)}")
        a(f"v_cvt_pk_bf16_f32 {vr(u)}, {vr(u)}, {vr(u)}")
        a(f"v_and_b32 {vr(u)}, {sr(S_MASKHI)}, {vr(u)}")
        a(f"v_sqrt_f32 {vr(u)}, {vr(u)}")
        a("s_nop 0")
        a(f"v_cvt_pk_bf16_f32 {vr(u)}, {vr(u)}, {vr(u)}")
        a(f"v_and_b32 {vr(u)}, {sr(S_MASKHI)}, {vr(u)}")
        a(f"v_rcp_f32 {vr(u)}, {vr(u)}")
        for k in range(5):
            A0 = VF+2*k; A1 = A0+1
            a(f"v_sub_f32 {vr(A0)}, {vr(A0)}, {vr(s)}")
            a(f"v_sub_f32 {vr(A1)}, {vr(A1)}, {vr(s)}")
            a(f"v_cvt_pk_bf16_f32 {vr(t)}, {vr(A0)}, {vr(A1)}")
            a(f"v_lshlrev_b32 {vr(A0)}, 16, {vr(t)}")
            a(f"v_and_b32 {vr(A1)}, {sr(S_MASKHI)}, {vr(t)}")
            a(f"v_mul_f32 {vr(A0)}, {vr(A0)}, {vr(u)}")
            a(f"v_mul_f32 {vr(A1)}, {vr(A1)}, {vr(u)}")
            a(f"v_cvt_pk_bf16_f32 {vr(VXR+k)}, {vr(A0)}, {vr(A1)}")
            a(f"v_lshlrev_b32 {vr(A0)}, 16, {vr(VXR+k)}")
            a(f"v_and_b32 {vr(A1)}, {sr(S_MASKHI)}, {vr(VXR+k)}")
            a(f"ds_write_b32 {vr(VOF+3)}, {vr(VXR+k)} offset:{256*k}")
        a(f"v_cndmask_b32 {vr(VF+8)}, 0, {vr(VF+8)}, {sr(S_EX,2)}")
        a(f"v_cndmask_b32 {vr(VF+9)}, 0, {vr(VF+9)}, {sr(S_EX,2)}")
        a("s_waitcnt lgkmcnt(0)")
        for k in range(9):
            a(f"ds_read_b64 {vr(VXA+2*k,2)}, {vr(VOF+4)} offset:{8*k}")

    a("s_waitcnt vmcnt(36)")
    for k in range(5):
        a(f"v_lshlrev_b32 {vr(VF+2*k)}, 16, {vr(VXR+k)}")
        a(f"v_and_b32 {vr(VF+2*k+1)}, {sr(S_MASKHI)}, {vr(VXR+k)}")
    layernorm()
    a("s_waitcnt lgkmcnt(0)")
    for t in range(36):
        ao = VAO + 4*(t&1)
        diag(a, ao, VXA + (t>>1), t&1, SELE, SELO)
        a(f"s_waitcnt vmcnt({35-t})")
        a("s_nop 0")
        mfma(a, VH0, ao, VW+4*t, None if t == 0 else VH0)
    a(f"v_and_b32 {vr(VT)}, 15, {vr(V_LANE)}")
    a(f"v_lshrrev_b32 {vr(VT+1)}, 4, {vr(V_LANE)}")
    a(f"v_lshlrev_b32 {vr(VT)}, 5, {vr(VT)}")
    a(f"v_lshl_add_u32 {vr(VOF+5)}, {vr(VT+1)}, 4, {vr(VT)}")
    a(f"s_lshl_b32 {sr(S_T0)}, {sr(S_SW)}, 9")
    a(f"s_add_u32 {sr(S_T0)}, {sr(S_T0)}, {QPART}")
    a(f"v_add_u32 {vr(VT)}, {sr(S_T0)}, {vr(VOF+5)}")
    a("s_nop 4")
    a("s_mov_b32 exec_hi, 0")
    a(f"ds_write_b128 {vr(VT)}, {vr(VH0,4)}")
    a("s_mov_b64 exec, -1")
    a("s_waitcnt lgkmcnt(0)")
    stamp(a, cfg, 1)
    a("s_barrier")
    a(f"s_mul_i32 {sr(S_T0)}, {sr(S_H)}, 288")
    a(f"s_sub_u32 {sr(S_T1)}, {576*9216}, {sr(S_T0)}")
    srd(a, S_SRDV, S_W1, S_T0, sr(S_T1))
    def w1_loads(beta):
        a(f"s_mov_b32 {sr(S_T3)}, {18*beta*9216}")
        for t in range(18):
            a(f"buffer_load_dwordx4 {vr(VW+8*t,4)}, {vr(VOF+1)}, {sr(S_SRDV,4)}, {sr(S_T3)} offen {WF}")
            a(f"buffer_load_dwordx4 {vr(VW+8*t+4,4)}, {vr(VOF+2)}, {sr(S_SRDV,4)}, {sr(S_T3)} offen {WF}")
            if t < 17: a(f"s_add_u32 {sr(S_T3)}, {sr(S_T3)}, 9216")
    w1_loads(0)
    layernorm()
    a("s_waitcnt lgkmcnt(0)")
    for beta in range(2):
        if beta == 1: w1_loads(1)
        for t in range(18):
            tt = 18*beta + t
            ao = VAO + 4*(tt&1)
            diag(a, ao, VXA + (tt>>1), tt&1, SELE, SELO)
            a(f"s_waitcnt vmcnt({34-2*t})")
            a("s_nop 0")
            mfma(a, VH0, ao, VW+8*t, None if tt == 0 else VH0)
            mfma(a, VH1, ao, VW+8*t+4, None if tt == 0 else VH1)
    a(f"s_mul_i32 {sr(S_T0)}, {sr(S_H)}, 288")
    srd(a, S_SRDK, S_B1, S_T0, 288)
    a(f"v_lshrrev_b32 {vr(VT+1)}, 4, {vr(V_LANE)}")
    a(f"v_mul_u32_u24 {vr(VT+2)}, 9, {vr(VT+1)}")
    a(f"s_mul_i32 {sr(S_T2)}, {sr(S_SW)}, 36")
    a(f"v_add_u32 {vr(VT+2)}, {sr(S_T2)}, {vr(VT+2)}")
    a(f"v_lshlrev_b32 {vr(VT+3)}, 1, {vr(VT+2)}")
    for t in range(9):
        a(f"buffer_load_ushort {vr(VF+t)}, {vr(VT+3)}, {sr(S_SRDK,4)}, 0 offen offset:{2*t}")
    a(f"s_lshl_b32 {sr(S_T0)}, {sr(S_SW)}, 10")
    a(f"s_add_u32 {sr(S_T0)}, {sr(S_T0)}, {HPART}")
    a(f"v_add_u32 {vr(VT)}, {sr(S_T0)}, {vr(VOF+5)}")
    a("s_mov_b32 exec_hi, 0")
    a(f"ds_write_b128 {vr(VT)}, {vr(VH0,4)}")
    a(f"ds_write_b128 {vr(VT)}, {vr(VH1,4)} offset:512")
    a("s_mov_b64 exec, -1")
    a(f"s_mul_i32 {sr(S_T0)}, {sr(S_H)}, {144*1152}")
    srd(a, S_SRDV, S_W2, S_T0, 144*1152)
    a(f"v_and_b32 {vr(VT+4)}, 15, {vr(V_LANE)}")
    a(f"v_mul_u32_u24 {vr(VOF)}, 1152, {vr(VT+2)}") if False else None
    a(f"s_movk_i32 {sr(S_T3)}, 1152")
    a(f"v_mul_lo_u32 {vr(VOF)}, {vr(VT+2)}, {sr(S_T3)}")
    a(f"v_lshl_add_u32 {vr(VOF)}, {vr(VT+4)}, 4, {vr(VOF)}")
    a(f"v_add_u32 {vr(VOF+1)}, 1024, {vr(VOF)}")
    a(f"v_mov_b32 {vr(VT+5)}, 0x7f000000")
    a(f"v_cmp_gt_u32 vcc, 8, {vr(VT+4)}")
    a("s_nop 1")
    a(f"v_cndmask_b32 {vr(VOF+1)}, {vr(VT+5)}, {vr(VOF+1)}, vcc")
    def out_loads(t0, t1):
        for t in range(t0, t1):
            a(f"s_movk_i32 {sr(S_T3)}, {t*1152}") if t*1152 < 32768 else None
            for cg in range(4):
                a(f"buffer_load_dwordx4 {vr(VW+20*(t-t0)+4*cg,4)}, {vr(VOF)}, {sr(S_SRDV,4)}, {sr(S_T3)} offen offset:{256*cg} {WF}")
            a(f"buffer_load_dwordx4 {vr(VW+20*(t-t0)+16,4)}, {vr(VOF+1)}, {sr(S_SRDV,4)}, {sr(S_T3)} offen {WF}")
    out_loads(0, 5)
    a(f"v_lshlrev_b32 {vr(VOF+2)}, 2, {vr(VT+2)}")
    a(f"v_add_u32 {vr(VOF+2)}, {HPART}, {vr(VOF+2)}")
    a("s_waitcnt lgkmcnt(0)")
    a("s_barrier")
    HS = VXA
    for t in range(9):
        a(f"ds_read_b32 {vr(HS+t)}, {vr(VOF+2)} offset:{4*t}")
        a(f"ds_read_b32 {vr(VT)}, {vr(VOF+2)} offset:{1024+4*t}")
        a(f"ds_read_b32 {vr(VT+1)}, {vr(VOF+2)} offset:{2048+4*t}")
        a(f"ds_read_b32 {vr(VT+2)}, {vr(VOF+2)} offset:{3072+4*t}")
        a("s_waitcnt lgkmcnt(0)")
        a(f"v_add_f32 {vr(HS+t)}, {vr(HS+t)}, {vr(VT)}")
        a(f"v_add_f32 {vr(VT+1)}, {vr(VT+1)}, {vr(VT+2)}")
        a(f"v_add_f32 {vr(HS+t)}, {vr(HS+t)}, {vr(VT+1)}")
    a("s_waitcnt vmcnt(25)")
    K1 = -2.0*math.log2(math.e)*math.sqrt(2.0/math.pi)
    a(f"s_mov_b32 {sr(S_T0)}, {hexf(0.044715)}")
    a(f"s_mov_b32 {sr(S_T1)}, {hexf(K1)}")
    for t in range(9):
        x = HS+t
        a(f"v_cvt_pk_bf16_f32 {vr(x)}, {vr(x)}, {vr(x)}")
        a(f"v_and_b32 {vr(x)}, {sr(S_MASKHI)}, {vr(x)}")
        a(f"v_lshlrev_b32 {vr(VF+t)}, 16, {vr(VF+t)}")
        a(f"v_add_f32 {vr(x)}, {vr(x)}, {vr(VF+t)}")
        a(f"v_cvt_pk_bf16_f32 {vr(x)}, {vr(x)}, {vr(x)}")
        a(f"v_and_b32 {vr(x)}, {sr(S_MASKHI)}, {vr(x)}")
        a(f"v_mul_f32 {vr(VT)}, {vr(x)}, {vr(x)}")
        a(f"v_mul_f32 {vr(VT)}, {vr(VT)}, {vr(x)}")
        a(f"v_fma_f32 {vr(VT)}, {vr(VT)}, {sr(S_T0)}, {vr(x)}")
        a(f"v_mul_f32 {vr(VT)}, {sr(S_T1)}, {vr(VT)}")
        a(f"v_exp_f32 {vr(VT)}, {vr(VT)}")
        a("s_nop 0")
        a(f"v_add_f32 {vr(VT)}, 1.0, {vr(VT)}")
        a(f"v_rcp_f32 {vr(VT)}, {vr(VT)}")
        a("s_nop 0")
        a(f"v_mul_f32 {vr(x)}, {vr(x)}, {vr(VT)}")
    HP = VF
    for k in range(4):
        a(f"v_cvt_pk_bf16_f32 {vr(HP+k)}, {vr(HS+2*k)}, {vr(HS+2*k+1)}")
    a(f"v_cvt_pk_bf16_f32 {vr(HP+4)}, {vr(HS+8)}, {vr(HS+8)}")
    def out_mfma(t0, t1, src, first, waits):
        n = (t1-t0)*5
        for t in range(t0, t1):
            ao = VAO + 4*(t&1)
            diag(a, ao, src + (t>>1), t&1, SELE, SELO)
            if waits: a(f"s_waitcnt vmcnt({n - 5*(t-t0+1)})")
            a("s_nop 1")
            for cg in range(5):
                mfma(a, VACC+4*cg, ao, VW+20*(t-t0)+4*cg, None if (first and t == t0) else VACC+4*cg)
    out_mfma(0, 5, HP, True, True)
    out_loads(5, 9)
    out_mfma(5, 9, HP, False, True)
    a(f"s_mul_i32 {sr(S_T0)}, {sr(S_H)}, {128*1152}")
    srd(a, S_SRDV, S_WO, S_T0, 128*1152)
    a(f"v_lshrrev_b32 {vr(VT+1)}, 4, {vr(V_LANE)}")
    a(f"v_and_b32 {vr(VT+4)}, 15, {vr(V_LANE)}")
    a(f"v_lshlrev_b32 {vr(VT+2)}, 3, {vr(VT+1)}")
    a(f"s_lshl_b32 {sr(S_T2)}, {sr(S_SW)}, 5")
    a(f"v_add_u32 {vr(VT+2)}, {sr(S_T2)}, {vr(VT+2)}")
    a(f"s_movk_i32 {sr(S_T3)}, 1152")
    a(f"v_mul_lo_u32 {vr(VOF)}, {vr(VT+2)}, {sr(S_T3)}")
    a(f"v_lshl_add_u32 {vr(VOF)}, {vr(VT+4)}, 4, {vr(VOF)}")
    a(f"v_add_u32 {vr(VOF+1)}, 1024, {vr(VOF)}")
    a(f"v_mov_b32 {vr(VT+5)}, 0x7f000000")
    a(f"v_cmp_gt_u32 vcc, 8, {vr(VT+4)}")
    a("s_nop 1")
    a(f"v_cndmask_b32 {vr(VOF+1)}, {vr(VT+5)}, {vr(VOF+1)}, vcc")
    out_loads(0, 8)
    a(f"v_lshlrev_b32 {vr(VOF+2)}, 2, {vr(VT+2)}")
    a(f"v_add_u32 {vr(VOF+2)}, {OPART}, {vr(VOF+2)}")
    a(f"s_mul_i32 {sr(S_T0)}, {sr(S_SW)}, 2560")
    a(f"s_add_u32 {sr(S_T0)}, {sr(S_T0)}, {OUTP}")
    a(f"v_add_u32 {vr(VOF+3)}, {sr(S_T0)}, {vr(VOF+5)}")
    a(f"v_mov_b32 {vr(VOF+4)}, {ML}")
    a(f"s_mov_b32 {sr(S_C)}, {hexf(C_SCALE)}")
    a("s_waitcnt vmcnt(0)")
    stamp(a, cfg, 2)
    a("s_barrier")
    stamp(a, cfg, 3)
    MM = VXA; LL = VXA+4; OB = VF
    a(f"ds_read_b128 {vr(MM,4)}, {vr(VOF+4)}")
    a(f"ds_read_b128 {vr(LL,4)}, {vr(VOF+4)} offset:16")
    OR = [2, 10, 18, 80]
    for w in range(4):
        a(f"ds_read_b128 {vr(OR[w],4)}, {vr(VOF+2)} offset:{w*512}")
        a(f"ds_read_b128 {vr(OR[w]+4,4)}, {vr(VOF+2)} offset:{w*512+16}")
    a("s_waitcnt lgkmcnt(8)")
    mx = 26; tt = 27
    a(f"v_max3_f32 {vr(mx)}, {vr(MM)}, {vr(MM+1)}, {vr(MM+2)}")
    a(f"v_max_f32 {vr(mx)}, {vr(mx)}, {vr(MM+3)}")
    for w in range(4):
        a(f"v_sub_f32 {vr(MM+w)}, {vr(MM+w)}, {vr(mx)}")
    for w in range(4):
        a(f"v_mul_f32 {vr(MM+w)}, {sr(S_C)}, {vr(MM+w)}")
    for w in range(4):
        a(f"v_exp_f32 {vr(MM+w)}, {vr(MM+w)}")
    a("s_nop 0")
    a(f"v_mul_f32 {vr(tt)}, {vr(MM)}, {vr(LL)}")
    for w in range(1,4):
        a(f"v_fmac_f32 {vr(tt)}, {vr(MM+w)}, {vr(LL+w)}")
    a(f"v_rcp_f32 {vr(tt)}, {vr(tt)}")
    a("s_nop 0")
    for w in range(4):
        a(f"v_mul_f32 {vr(MM+w)}, {vr(MM+w)}, {vr(tt)}")
    a("s_waitcnt lgkmcnt(0)")
    for e in range(8):
        a(f"v_mul_f32 {vr(OR[0]+e)}, {vr(OR[0]+e)}, {vr(MM)}")
    for w in range(1,4):
        for e in range(8):
            a(f"v_fmac_f32 {vr(OR[0]+e)}, {vr(OR[w]+e)}, {vr(MM+w)}")
    OPK = 10
    for k in range(4):
        a(f"v_cvt_pk_bf16_f32 {vr(OPK+k)}, {vr(OR[0]+2*k)}, {vr(OR[0]+2*k+1)}")
    out_mfma(0, 8, OPK, False, False)
    a("s_nop 7")
    a("s_mov_b32 exec_hi, 0")
    for cg in range(5):
        a(f"ds_write_b128 {vr(VOF+3)}, {vr(VACC+4*cg,4)} offset:{512*cg}")
    a("s_mov_b64 exec, -1")
    a("s_waitcnt lgkmcnt(0)")

def gen_tail(a, cfg):
    V_LANE=0
    a.label("L_tail")
    a("s_barrier")
    stamp(a, cfg, 4)
    a(f"s_cmp_lg_u32 {sr(S_WAVE)}, 0")
    a("s_cbranch_scc1 L_wait_flag")
    a(f"v_lshlrev_b32 v2, 4, {vr(V_LANE)}")
    a(f"v_add_u32 v3, {OUTP}, v2")
    for k in range(3):
        for sw in range(4):
            a(f"ds_read_b128 {vr(8+16*k+4*sw,4)}, v3 offset:{sw*2560 + k*1024}")
    a(f"s_mul_i32 {sr(S_T0)}, {sr(S_WG)}, 2304")
    srd(a, S_SRD2, S_WS, S_T0, 2304)
    for k in range(3):
        a(f"s_waitcnt lgkmcnt({8-4*k})")
        b = 8+16*k
        for e in range(4):
            a(f"v_add_f32 {vr(b+e)}, {vr(b+e)}, {vr(b+4+e)}")
            a(f"v_add_f32 {vr(b+8+e)}, {vr(b+8+e)}, {vr(b+12+e)}")
        for e in range(4):
            a(f"v_add_f32 {vr(b+e)}, {vr(b+e)}, {vr(b+8+e)}")
        a(f"buffer_store_dwordx4 {vr(b,4)}, v2, {sr(S_SRD2,4)}, 0 offen offset:{1024*k} sc1")
    a("s_waitcnt vmcnt(0)")
    a(f"s_lshl_b32 {sr(S_T0)}, {sr(S_B)}, 5")
    a(f"v_mov_b32 v4, {sr(S_T0)}")
    a("v_mov_b32 v5, 1")
    a("s_mov_b64 exec, 1")
    a(f"global_atomic_add v6, v4, v5, {sr(S_DBG,2)} sc0")
    a("s_waitcnt vmcnt(0)")
    a(f"v_mov_b32 v7, {FLAG}")
    a("ds_write_b32 v7, v6")
    a("s_mov_b64 exec, -1")
    a("s_waitcnt lgkmcnt(0)")
    a.label("L_wait_flag")
    a("s_barrier")
    stamp(a, cfg, 5)
    a(f"v_mov_b32 v7, {FLAG}")
    a("ds_read_b32 v6, v7")
    a("s_waitcnt lgkmcnt(0)")
    a("s_nop 0")
    a(f"v_readfirstlane_b32 {sr(S_T0)}, v6")
    a("s_nop 3")
    a(f"s_cmp_lg_u32 {sr(S_T0)}, 31")
    a("s_cbranch_scc1 L_done")
    a(f"s_mul_i32 {sr(S_T0)}, {sr(S_B)}, {32*2304}")
    srd(a, S_SRD2, S_WS, S_T0, 32*2304)
    a(f"v_lshlrev_b32 v2, 4, {vr(V_LANE)}")
    a(f"v_add_u32 v3, 2048, v2")
    a("v_mov_b32 v4, 0x7f000000")
    a(f"v_cmp_gt_u32 vcc, 16, {vr(V_LANE)}")
    a("s_nop 1")
    a("v_cndmask_b32 v3, v4, v3, vcc")
    a(f"s_mul_i32 {sr(S_T1)}, {sr(S_WAVE)}, {4*2304}")
    for u in range(4):
        a(f"buffer_load_dwordx4 {vr(8+12*u,4)}, v2, {sr(S_SRD2,4)}, {sr(S_T1)} offen sc1")
        a(f"buffer_load_dwordx4 {vr(12+12*u,4)}, v2, {sr(S_SRD2,4)}, {sr(S_T1)} offen offset:1024 sc1")
        a(f"buffer_load_dwordx4 {vr(16+12*u,4)}, v3, {sr(S_SRD2,4)}, {sr(S_T1)} offen sc1")
        if u < 3: a(f"s_add_u32 {sr(S_T1)}, {sr(S_T1)}, 2304")
    a(f"s_mul_i32 {sr(S_T0)}, {sr(S_B)}, 1152")
    srd(a, S_SRD3, S_X, S_T0, 1152)
    srd(a, S_SRDK, S_B2, None, 1152)
    a(f"s_lshl_b32 {sr(S_T2)}, {sr(S_WAVE)}, 6")
    a(f"v_add_u32 v5, {sr(S_T2)}, {vr(V_LANE)}")
    a("v_lshlrev_b32 v6, 3, v5")
    a(f"buffer_load_dwordx2 v[60:61], v6, {sr(S_SRD3,4)}, 0 offen")
    a(f"buffer_load_dwordx2 v[62:63], v6, {sr(S_SRDK,4)}, 0 offen")
    a("s_waitcnt vmcnt(2)")
    for e in range(12):
        a(f"v_add_f32 {vr(8+e)}, {vr(8+e)}, {vr(20+e)}")
        a(f"v_add_f32 {vr(32+e)}, {vr(32+e)}, {vr(44+e)}")
    for e in range(12):
        a(f"v_add_f32 {vr(8+e)}, {vr(8+e)}, {vr(32+e)}")
    a(f"s_mul_i32 {sr(S_T0)}, {sr(S_WAVE)}, 3072")
    a(f"v_add_u32 v7, {sr(S_T0)}, v2")
    for k in range(3):
        a(f"ds_write_b128 v7, {vr(8+4*k,4)} offset:{RED + 1024*k}")
    a("s_waitcnt lgkmcnt(0)")
    a("s_barrier")
    a(f"s_cmp_ge_u32 {sr(S_WAVE)}, 3")
    a("s_cbranch_scc1 L_done")
    a("v_lshlrev_b32 v7, 4, v5")
    for w in range(8):
        a(f"ds_read_b128 {vr(8+4*w,4)}, v7 offset:{RED + 3072*w}")
    a("s_waitcnt lgkmcnt(0)")
    for e in range(4):
        a(f"v_add_f32 {vr(8+e)}, {vr(8+e)}, {vr(12+e)}")
        a(f"v_add_f32 {vr(16+e)}, {vr(16+e)}, {vr(20+e)}")
        a(f"v_add_f32 {vr(24+e)}, {vr(24+e)}, {vr(28+e)}")
        a(f"v_add_f32 {vr(32+e)}, {vr(32+e)}, {vr(36+e)}")
    for e in range(4):
        a(f"v_add_f32 {vr(8+e)}, {vr(8+e)}, {vr(16+e)}")
        a(f"v_add_f32 {vr(24+e)}, {vr(24+e)}, {vr(32+e)}")
    for e in range(4):
        a(f"v_add_f32 {vr(8+e)}, {vr(8+e)}, {vr(24+e)}")
    a("s_waitcnt vmcnt(0)")
    a(f"s_mov_b32 {sr(S_T1)}, 0xffff0000")
    for (src) in (60, 62):
        a(f"v_lshlrev_b32 v40, 16, {vr(src)}")
        a(f"v_and_b32 v41, {sr(S_T1)}, {vr(src)}")
        a(f"v_lshlrev_b32 v42, 16, {vr(src+1)}")
        a(f"v_and_b32 v43, {sr(S_T1)}, {vr(src+1)}")
        for e in range(4):
            a(f"v_add_f32 {vr(8+e)}, {vr(8+e)}, {vr(40+e)}")
    a("v_cvt_pk_bf16_f32 v8, v8, v9")
    a("v_cvt_pk_bf16_f32 v9, v10, v11")
    a(f"s_mul_i32 {sr(S_T0)}, {sr(S_B)}, 1152")
    srd(a, S_SRD2, S_OUT, S_T0, 1152)
    a(f"buffer_store_dwordx2 v[8:9], v6, {sr(S_SRD2,4)}, 0 offen")
    a.label("L_done")
    if cfg.STAMPS:
        stamp(a, cfg, 6)
        a("s_waitcnt lgkmcnt(0)")
        a(f"s_lshl_b32 {sr(S_T0)}, {sr(S_WG)}, 3")
        a(f"s_add_u32 {sr(S_T0)}, {sr(S_T0)}, {sr(S_WAVE)}")
        a(f"s_lshl_b32 {sr(S_T0)}, {sr(S_T0)}, 6")
        a(f"s_add_u32 {sr(S_T0)}, {sr(S_T0)}, 0x100000")
        a(f"v_mov_b32 v2, {sr(S_T0)}")
        a("s_mov_b64 exec, 1")
        for k in range(7):
            a(f"v_mov_b32 v4, {sr(S_STAMP+2*k)}")
            a(f"v_mov_b32 v5, {sr(S_STAMP+2*k+1)}")
            a(f"global_store_dwordx2 v2, v[4:5], {sr(S_WS,2)} offset:{8*k}")
    a.label("L_exit")
    a("s_endpgm")

def generate(cfg):
    a = Asm()
    stamp(a, cfg, 0)
    a(f"s_cmp_ge_u32 {sr(S_WG)}, 256")
    a("s_cbranch_scc1 L_exit")
    a(f"s_load_dwordx4 {sr(S_K,4)}, s[0:1], 8")
    a(f"s_load_dwordx2 {sr(S_X,2)}, s[0:1], 0")
    a(f"s_load_dwordx4 {sr(S_WQ,4)}, s[0:1], 24")
    a(f"s_load_dwordx4 {sr(S_W1,4)}, s[0:1], 48")
    a(f"s_load_dwordx4 {sr(S_W2,4)}, s[0:1], 64")
    a(f"s_load_dwordx4 {sr(S_OUT,4)}, s[0:1], 80")
    a(f"s_load_dwordx2 {sr(S_WS,2)}, s[0:1], 96")
    a("v_lshrrev_b32 v1, 6, v0")
    a(f"s_lshr_b32 {sr(S_B)}, {sr(S_WG)}, 5")
    a(f"v_readfirstlane_b32 {sr(S_WAVE)}, v1")
    a(f"s_and_b32 {sr(S_H)}, {sr(S_WG)}, 31")
    a("v_and_b32 v0, 63, v0")
    a("s_nop 1")
    a(f"s_cmp_ge_u32 {sr(S_WAVE)}, 4")
    a("s_waitcnt lgkmcnt(0)")
    a("s_cbranch_scc1 L_side")
    gen_stream(a, cfg)
    gen_side(a, cfg)
    gen_tail(a, cfg)
    body = a.text()
    hdr = f"""; Fused decode block: LN -> (MHA over KV cache -> out proj) + (LN -> MLP) + residual.
; @launch grid=(256,1,1) block=(512,1,1) lds={LDS_BYTES}
.amdgcn_target "amdgcn-amd-amdhsa--gfx950"
.text
.globl {KNAME}
.p2align 8
.type {KNAME},@function
{KNAME}:
"""
    ftr = f"""
.section .rodata,"a"
.p2align 6
.amdhsa_kernel {KNAME}
  .amdhsa_next_free_vgpr 256
  .amdhsa_next_free_sgpr 96
  .amdhsa_accum_offset 256
  .amdhsa_group_segment_fixed_size 0
  .amdhsa_kernarg_size 104
  .amdhsa_user_sgpr_count 2
  .amdhsa_user_sgpr_kernarg_segment_ptr 1
  .amdhsa_system_sgpr_workgroup_id_x 1
  .amdhsa_float_denorm_mode_32 3
.end_amdhsa_kernel
"""
    return hdr + body + ftr

if __name__ == "__main__":
    cfg = Cfg()
    out = sys.argv[1]
    for kv in sys.argv[2:]:
        k, v = kv.split("=")
        cur = getattr(cfg, k)
        if isinstance(cur, bool): v = v in ("1","True","true")
        elif isinstance(cur, int): v = int(v)
        setattr(cfg, k, v)
    open(out, "w").write(generate(cfg))
    print("wrote", out, "LDS", LDS_BYTES)
```

```python
import sys, math

KNAME = "parallel_sum__mha_block_cached__mixer_channel_mlp__decode_kernel"

class Cfg:
    N = 5
    RUNAHEAD = 48
    PROUNDS = 4
    MMAP = 1
    POLLDBG = False
    D2 = 0
    D3 = 0
    SR = 0
    DQ = 36
    ROT2 = 0
    HMAP = 0
    STARTSIG = 'atomic'
    CTLSTOP = 1
    VERS = '5'
    WPOL = ''
    CTL = ''
    NT = 5
    KT = 0
    POLL = True
    RED_H = 0
    K0 = 1
    B2_ITER = 3
    WFLAGS = ""
    NOSIDE = False
    NOCONS = False
    ITSTAMP = False
    DEPTH = 3
    ROT = True
    DBGT = False
    SPINTO = 0
    SPINX = -1
    PROSTAMP = False
    KFLAGS = "nt"
    VFLAGS = "nt"
    STAMPS = False
    PRIO = 2
    perm = 0

RING = 0
MISC = 131072
QPART = MISC
QBF   = QPART + 2048
HPART = QBF + 1024
OPART = HPART + 4096
ML    = OPART + 2048
OUTP  = ML + 64
XPRIV = OUTP
FLAG  = OUTP + 10240
LDS_END = FLAG + 64
RED   = 0
LDS_BYTES = (LDS_END + 1024 + 255)//256*256

C_SCALE = (128 ** -0.5) * math.log2(math.e)

import struct
def f2u(x): return struct.unpack("<I", struct.pack("<f", x))[0]
def hexf(x): return "0x%08x" % f2u(x)

class Asm:
    def __init__(self): self.L = []
    def __call__(self, s): self.L.append("  " + s)
    def label(self, s): self.L.append(s + ":")
    def c(self, s): self.L.append("  ; " + s)
    def text(self): return "\n".join(self.L)

def vr(b, n=1): return f"v{b}" if n == 1 else f"v[{b}:{b+n-1}]"
def sr(b, n=1): return f"s{b}" if n == 1 else f"s[{b}:{b+n-1}]"

S_WG=2; S_WAVE=3
S_K=4; S_V=6
S_SRDK=8; S_SRDV=12
S_X=16
S_WQ=20; S_WO=22
S_W1=24; S_B1=26
S_W2=28; S_B2=30
S_OUT=32; S_DBG=34
S_WS=36
S_B=38; S_H=39; S_M=63
S_T0=40; S_T1=41; S_T2=42; S_T3=43
S_OFFA=44; S_OFFB=45; S_RING=46; S_CNT=47
S_C=48
S_SRD2=52
S_SRD3=56
S_EX=60
S_SW=62
S_STAMP=64
S_MASKHI=80
S_TS=82

def allreduce_sum(a, v, t):
    for r in (8,4,2,1):
        a("s_nop 1")
        a(f"v_add_f32_dpp {vr(v)}, {vr(v)}, {vr(v)} row_ror:{r} row_mask:0xf bank_mask:0xf")
    a(f"v_mov_b32 {vr(t)}, {vr(v)}")
    a("s_nop 1")
    a(f"v_permlane16_swap_b32 {vr(v)}, {vr(t)}")
    a("s_nop 1")
    a(f"v_add_f32 {vr(v)}, {vr(v)}, {vr(t)}")
    a(f"v_mov_b32 {vr(t)}, {vr(v)}")
    a("s_nop 1")
    a(f"v_permlane32_swap_b32 {vr(v)}, {vr(t)}")
    a("s_nop 1")
    a(f"v_add_f32 {vr(v)}, {vr(v)}, {vr(t)}")

def groups_allreduce(a, v, t, op):
    a(f"v_mov_b32 {vr(t)}, {vr(v)}")
    a("s_nop 1")
    a(f"v_permlane16_swap_b32 {vr(v)}, {vr(t)}")
    a("s_nop 1")
    a(f"{op} {vr(v)}, {vr(v)}, {vr(t)}")
    a(f"v_mov_b32 {vr(t)}, {vr(v)}")
    a("s_nop 1")
    a(f"v_permlane32_swap_b32 {vr(v)}, {vr(t)}")
    a("s_nop 1")
    a(f"{op} {vr(v)}, {vr(v)}, {vr(t)}")

def make_selectors(a, lane, selE, selO, t0, t1, t2, t3):
    a(f"v_and_b32 {vr(t0)}, 15, {vr(lane)}")
    a(f"v_and_b32 {vr(t1)}, 1, {vr(t0)}")
    a(f"v_mov_b32 {vr(t2)}, 0x0c0c0100")
    a(f"v_mov_b32 {vr(t3)}, 0x01000c0c")
    a(f"v_cmp_eq_u32 vcc, 1, {vr(t1)}")
    a("s_nop 1")
    a(f"v_cndmask_b32 {vr(t2)}, {vr(t2)}, {vr(t3)}, vcc")
    a(f"v_mov_b32 {vr(t3)}, 0x0c0c0302")
    a(f"v_mov_b32 {vr(t1)}, 0x03020c0c")
    a(f"v_cndmask_b32 {vr(t3)}, {vr(t3)}, {vr(t1)}, vcc")
    a(f"v_lshrrev_b32 {vr(t0)}, 1, {vr(t0)}")
    a(f"v_mov_b32 {vr(t1)}, 0x0c0c0c0c")
    for k in range(4):
        a(f"v_cmp_eq_u32 vcc, {k}, {vr(t0)}")
        a("s_nop 1")
        a(f"v_cndmask_b32 {vr(selE+k)}, {vr(t1)}, {vr(t2)}, vcc")
        a(f"v_cndmask_b32 {vr(selO+k)}, {vr(t1)}, {vr(t3)}, vcc")

def diag(a, dst, P, parity, selE, selO):
    sel = selO if parity else selE
    for k in range(4):
        a(f"v_perm_b32 {vr(dst+k)}, {vr(P)}, {vr(P)}, {vr(sel+k)}")

def mfma(a, D, A, B, C):
    c = "0" if C is None else vr(C,4)
    a(f"v_mfma_f32_16x16x32_bf16 {vr(D,4)}, {vr(A,4)}, {vr(B,4)}, {c}")

def stamp(a, cfg, idx):
    if cfg.PROSTAMP and idx in (2,4,5): return
    if cfg.STAMPS or ((cfg.DBGT or cfg.SPINTO or cfg.SPINX >= 0) and idx in (0,1,2,3)):
        a(f"s_memrealtime {sr(S_STAMP+2*idx,2)}")

def srd(a, d, base, off_lo_sreg_or_none, size):
    if off_lo_sreg_or_none is None:
        a(f"s_mov_b32 {sr(d)}, {sr(base)}")
        a(f"s_mov_b32 {sr(d+1)}, {sr(base+1)}")
    else:
        a(f"s_add_u32 {sr(d)}, {sr(base)}, {sr(off_lo_sreg_or_none)}")
        a(f"s_addc_u32 {sr(d+1)}, {sr(base+1)}, 0")
    if isinstance(size, int):
        a(f"s_mov_b32 {sr(d+2)}, {size}")
    else:
        a(f"s_mov_b32 {sr(d+2)}, {size}")
    a(f"s_mov_b32 {sr(d+3)}, 0x20000")

def gen_stream(a, cfg):
    N = cfg.N
    LAG = 3 + N
    PR = cfg.PROUNDS
    assert PR in (0, 2, 4)
    V_LANE=0
    VK=2
    VV=6
    VVD=7
    VKR=8
    VVR=12
    VT=13
    VQ=16
    VA=32
    VS=48
    VP=56
    VAO=60
    VO=68
    VM=72; VL=73; VAL=74; VMC=75
    SELE=76; SELO=80
    VX=84
    VD=96

    a.label("L_stream")
    if cfg.PRIO: a(f"s_setprio {cfg.PRIO}")
    a(f"s_lshl_b32 {sr(S_T0)}, {sr(S_WG)}, 20")
    srd(a, S_SRDK, S_K, S_T0, 0x100000)
    srd(a, S_SRDV, S_V, S_T0, 0x100000)
    a(f"s_lshl_b32 {sr(S_OFFA)}, {sr(S_WAVE)}, 13")
    a(f"s_add_u32 {sr(S_OFFB)}, {sr(S_OFFA)}, 4096")
    a(f"s_lshl_b32 {sr(S_RING)}, {sr(S_WAVE)}, 15")

    NP = 16*PR
    def load_desc(i):
        if i < NP:
            r, p = divmod(i, 16)
            half = (p % 8)//4; j = p % 4
            if p < 8: return dict(kind='K', j=j, half=half, slot=2*r+half, last=False, req=None)
            return dict(kind='VD', j=j, half=half, dst=VD+32*r+16*half+4*j, last=(p == 15), req=None)
        ip = i - NP
        g = ip//4; j = ip % 4; pos = (ip % 16)//4
        slot = g % 8
        if ip < 32:
            req = None if slot >= 2*PR else 4*(slot//2) + (slot % 2)
        else:
            req = 4*PR + (ip-32)//4
        return dict(kind='K' if pos < 2 else 'V', j=j, half=pos % 2, slot=slot, last=(ip % 16 == 15), req=req)
    def unit_desc(u):
        if u < 4*PR:
            r, pos = divmod(u, 4)
            if pos < 2: return dict(pos=pos, slot=2*r+pos, need=16*r+4*pos+3, direct=None)
            return dict(pos=pos, slot=None, need=16*r+8+4*(pos-2)+3, direct=VD+32*r+16*(pos-2))
        g = u - 4*PR
        return dict(pos=g % 4, slot=g % 8, need=NP+4*g+3, direct=None)

    state = {"m0": None}
    win = {"n": N}
    def issue(i, wait=True):
        d = load_desc(i)
        so = S_OFFB if d['half'] else S_OFFA
        if d['kind'] != 'VD' and state["m0"] != d['slot']:
            a(f"s_add_u32 m0, {sr(S_RING)}, {d['slot']*4096}")
            state["m0"] = d['slot']
            if not wait: a("s_nop 0")
        if wait: a(f"s_waitcnt vmcnt({win['n']-1})")
        j = d['j']
        if d['kind'] == 'K':
            a(f"buffer_load_dwordx4 {vr(VK+j)}, {sr(S_SRDK,4)}, {sr(so)} offen offset:{j*1024} {cfg.KFLAGS} lds")
        elif d['kind'] == 'V':
            a(f"buffer_load_dwordx4 {vr(VV)}, {sr(S_SRDV,4)}, {sr(so)} offen offset:{j*1024} {cfg.VFLAGS} lds")
        else:
            a(f"buffer_load_dwordx4 {vr(d['dst'],4)}, {vr(VVD)}, {sr(S_SRDV,4)}, {sr(so)} offen offset:{j*256} {cfg.VFLAGS}")
        if d['last']:
            a(f"s_add_u32 {sr(S_OFFA)}, {sr(S_OFFA)}, 32768")
            a(f"s_add_u32 {sr(S_OFFB)}, {sr(S_OFFB)}, 32768")

    def piece(u, p):
        if cfg.NOCONS: return
        d = unit_desc(u)
        pos = d['pos']
        if pos < 2:
            S = VS + 4*pos
            slot = d['slot']*4096
            if p == 0:
                for t in range(4):
                    a(f"ds_read_b128 {vr(VA+4*t,4)}, {vr(VKR+t)} offset:{slot}")
            elif p == 1:
                for t in range(4):
                    a(f"s_waitcnt lgkmcnt({3-t})")
                    mfma(a, S, VA+4*t, VQ+4*t, None if t == 0 else S)
            elif pos == 1 and p == 2:
                softmax_a()
            elif pos == 1 and p == 3:
                softmax_b()
        else:
            half = pos - 2
            if d['direct'] is None:
                if p == 0:
                    for r in range(4):
                        a(f"ds_read_b128 {vr(VA+4*r,4)}, {vr(VVR)} offset:{d['slot']*4096 + r*256}")
                r = p
                ao = VAO + 4*(r&1)
                diag(a, ao, VP + 2*half + (r>>1), r&1, SELE, SELO)
                a(f"s_waitcnt lgkmcnt({3-r})")
                a("s_nop 0")
                mfma(a, VO, ao, VA+4*r, VO)
            else:
                r = p
                ao = VAO + 4*(r&1)
                diag(a, ao, VP + 2*half + (r>>1), r&1, SELE, SELO)
                a("s_nop 1")
                mfma(a, VO, ao, d['direct']+4*r, VO)

    def softmax_a():
        a(f"v_max3_f32 {vr(VX)}, {vr(VS)}, {vr(VS+1)}, {vr(VS+2)}")
        a(f"v_max3_f32 {vr(VX)}, {vr(VX)}, {vr(VS+3)}, {vr(VM)}")
        a("s_nop 5")
        a(f"v_max3_f32 {vr(VX+1)}, {vr(VS+4)}, {vr(VS+5)}, {vr(VS+6)}")
        a(f"v_max3_f32 {vr(VX)}, {vr(VX)}, {vr(VS+7)}, {vr(VX+1)}")
        groups_allreduce(a, VX, VX+1, "v_max_f32")
        a(f"v_sub_f32 {vr(VAL)}, {vr(VM)}, {vr(VX)}")
        a(f"v_mul_f32 {vr(VMC)}, {sr(S_C)}, {vr(VX)}")
        a(f"v_mul_f32 {vr(VAL)}, {sr(S_C)}, {vr(VAL)}")
        a(f"v_mov_b32 {vr(VM)}, {vr(VX)}")
        a(f"v_exp_f32 {vr(VAL)}, {vr(VAL)}")
        for r in range(8):
            a(f"v_fma_f32 {vr(VS+r)}, {vr(VS+r)}, {sr(S_C)}, -{vr(VMC)}")
    def softmax_b():
        for r in range(8):
            a(f"v_exp_f32 {vr(VS+r)}, {vr(VS+r)}")
        for r in range(4):
            a(f"v_mul_f32 {vr(VO+r)}, {vr(VO+r)}, {vr(VAL)}")
        a(f"v_mul_f32 {vr(VL)}, {vr(VL)}, {vr(VAL)}")
        a(f"v_add_f32 {vr(VX)}, {vr(VS)}, {vr(VS+1)}")
        a(f"v_add_f32 {vr(VX+1)}, {vr(VS+2)}, {vr(VS+3)}")
        a(f"v_add_f32 {vr(VX+2)}, {vr(VS+4)}, {vr(VS+5)}")
        a(f"v_add_f32 {vr(VX+3)}, {vr(VS+6)}, {vr(VS+7)}")
        for r in range(4):
            a(f"v_cvt_pk_bf16_f32 {vr(VP+r)}, {vr(VS+2*r)}, {vr(VS+2*r+1)}")
        a(f"v_add_f32 {vr(VX)}, {vr(VX)}, {vr(VX+1)}")
        a(f"v_add_f32 {vr(VX+2)}, {vr(VX+2)}, {vr(VX+3)}")
        a(f"v_add_f32 {vr(VL)}, {vr(VL)}, {vr(VX)}")
        a(f"v_add_f32 {vr(VL)}, {vr(VL)}, {vr(VX+2)}")

    a(f"v_lshrrev_b32 {vr(VT)}, 4, {vr(V_LANE)}")
    a(f"v_and_b32 {vr(VT+1)}, 15, {vr(V_LANE)}")
    for j in range(4):
        a(f"v_add_u32 {vr(VK+j)}, {4*j}, {vr(VT)}")
        a(f"v_xor_b32 {vr(VK+j)}, {vr(VK+j)}, {vr(VT+1)}")
        a(f"v_lshlrev_b32 {vr(VK+j)}, 4, {vr(VK+j)}")
        a(f"v_lshl_add_u32 {vr(VK+j)}, {vr(VT)}, 8, {vr(VK+j)}")
    for i in range(N): issue(i, wait=False)
    a(f"v_lshlrev_b32 {vr(VV)}, 4, {vr(V_LANE)}")
    a(f"v_lshlrev_b32 {vr(VVD)}, 10, {vr(VT)}")
    a(f"v_lshl_add_u32 {vr(VVD)}, {vr(VT+1)}, 4, {vr(VVD)}")
    for t in range(4):
        a(f"v_add_u32 {vr(VKR+t)}, {4*t}, {vr(VT)}")
        a(f"v_xor_b32 {vr(VKR+t)}, {vr(VKR+t)}, {vr(VT+1)}")
        a(f"v_lshlrev_b32 {vr(VKR+t)}, 4, {vr(VKR+t)}")
        a(f"v_lshl_add_u32 {vr(VKR+t)}, {vr(VT+1)}, 8, {vr(VKR+t)}")
        a(f"v_add_u32 {vr(VKR+t)}, {sr(S_RING)}, {vr(VKR+t)}")
    a(f"v_add_u32 {vr(VVR)}, {sr(S_RING)}, {vr(VVD)}")
    make_selectors(a, V_LANE, SELE, SELO, VX, VX+1, VX+2, VX+3)
    a(f"v_mov_b32 {vr(VM)}, 0xff800000")
    a(f"v_mov_b32 {vr(VL)}, 0")
    for r in range(4): a(f"v_mov_b32 {vr(VO+r)}, 0")
    a(f"s_mov_b32 {sr(S_C)}, {hexf(C_SCALE)}")

    RA = cfg.RUNAHEAD
    for i in range(N, RA):
        assert load_desc(i)['req'] is None
        issue(i)
        if cfg.PROSTAMP and i == N: a(f"s_memrealtime {sr(S_STAMP+4,2)}")
        if cfg.PROSTAMP and i == 20: a(f"s_memrealtime {sr(S_STAMP+8,2)}")
        if cfg.PROSTAMP and i == 40: a(f"s_memrealtime {sr(S_STAMP+10,2)}")
    stamp(a, cfg, 1)
    a("s_barrier")
    stamp(a, cfg, 2)
    nxt = RA
    def try_issue(done_units):
        nonlocal nxt
        d = load_desc(nxt)
        if d['req'] is not None and d['req'] >= done_units: return False
        issue(nxt); nxt += 1
        return True
    a(f"v_lshlrev_b32 {vr(VX)}, 4, {vr(V_LANE)}")
    a(f"v_and_b32 {vr(VX)}, 0x1ff, {vr(VX)}")
    a(f"v_add_u32 {vr(VX)}, {QPART}, {vr(VX)}")
    for p in range(4):
        a(f"ds_read_b128 {vr(VA+4*p,4)}, {vr(VX)} offset:{p*512}")
    try_issue(0); try_issue(0)
    a("s_waitcnt lgkmcnt(0)")
    for e in range(4):
        a(f"v_add_f32 {vr(VA+e)}, {vr(VA+e)}, {vr(VA+4+e)}")
        a(f"v_add_f32 {vr(VA+8+e)}, {vr(VA+8+e)}, {vr(VA+12+e)}")
    for e in range(4):
        a(f"v_add_f32 {vr(VA+e)}, {vr(VA+e)}, {vr(VA+8+e)}")
    a(f"v_cvt_pk_bf16_f32 {vr(VA+4)}, {vr(VA)}, {vr(VA+1)}")
    a(f"v_cvt_pk_bf16_f32 {vr(VA+5)}, {vr(VA+2)}, {vr(VA+3)}")
    a(f"v_lshlrev_b32 {vr(VX+1)}, 3, {vr(V_LANE)}")
    a(f"v_and_b32 {vr(VX+1)}, 0xff, {vr(VX+1)}")
    a(f"s_lshl_b32 {sr(S_T0)}, {sr(S_WAVE)}, 8")
    a(f"s_add_u32 {sr(S_T0)}, {sr(S_T0)}, {QBF}")
    a(f"v_add_u32 {vr(VX+1)}, {sr(S_T0)}, {vr(VX+1)}")
    a(f"ds_write_b64 {vr(VX+1)}, {vr(VA+4,2)}")
    a(f"v_lshrrev_b32 {vr(VX+2)}, 4, {vr(V_LANE)}")
    a(f"v_lshlrev_b32 {vr(VX+2)}, 4, {vr(VX+2)}")
    a(f"v_add_u32 {vr(VX+2)}, {sr(S_T0)}, {vr(VX+2)}")
    a("s_waitcnt lgkmcnt(0)")
    for t in range(4):
        a(f"ds_read_b128 {vr(VQ+4*t,4)}, {vr(VX+2)} offset:{t*64}")
    try_issue(0)
    a("s_waitcnt lgkmcnt(0)")
    VERS = [int(x) for x in cfg.VERS.split(',')]
    NMAX = max(VERS + [N])
    U0 = 4*PR + 8*cfg.K0
    target = NP + 32*cfg.K0 + NMAX + 3
    u = 0
    while u < U0 or nxt < target:
        d = unit_desc(u) if u < U0 else None
        if d is not None and nxt - 1 - N >= d['need']:
            ahead = (nxt - 1 - N) - d['need']
            for p in range(4):
                piece(u, p)
                want = (ahead < 2) or (p in (1, 3))
                if want and nxt < target:
                    try_issue(u)
            u += 1
        else:
            if not (nxt < target and try_issue(u)):
                raise RuntimeError(f"schedule deadlock u={u} nxt={nxt}")
    assert nxt == target and u == U0, (nxt, target, u, U0)
    if cfg.POLL:
        poll_setup(a, cfg)
    niter = (128 - U0)//8
    assert (128 - U0) % 8 == 0
    S_POL = S_TS
    VPG = 224
    if cfg.WPOL:
        wp = [int(x) for x in cfg.WPOL.split(',')]
        a(f"s_mov_b32 {sr(S_POL)}, {wp[0]}")
        for w in range(1, 4):
            a(f"s_cmp_eq_u32 {sr(S_WAVE)}, {w}")
            a(f"s_cselect_b32 {sr(S_POL)}, {wp[w]}, {sr(S_POL)}")
    else:
        a(f"s_mov_b32 {sr(S_POL)}, {N}")
    if cfg.CTL:
        a(f"v_mov_b32 {vr(VPG)}, {FLAG+8}")
    a(f"s_mov_b32 {sr(S_CNT)}, 1")
    a.label("L_sloop")
    if cfg.KT:
        a(f"s_cmp_gt_u32 {sr(S_CNT)}, {niter - cfg.KT}")
        a(f"s_cselect_b32 {sr(S_POL)}, {cfg.NT}, {sr(S_POL)}")
        assert cfg.NT in VERS
    if cfg.CTL:
        a(f"v_mov_b32 {vr(VPG+1)}, {sr(S_CNT)}")
        a(f"s_cmp_lg_u32 {sr(S_WAVE)}, 0")
        a("s_cbranch_scc1 L_nopg")
        a(f"ds_write_b32 {vr(VPG)}, {vr(VPG+1)}")
        a.label("L_nopg")
    for vi, n in enumerate(VERS[:-1]):
        a(f"s_cmp_eq_u32 {sr(S_POL)}, {n}")
        a(f"s_cbranch_scc1 L_ver{n}")
    order = [VERS[-1]] + VERS[:-1]
    for vi, n in enumerate(order):
        a.label(f"L_ver{n}")
        win["n"] = n
        state["m0"] = None
        for uu in range(32):
            issue(target + uu)
            if cfg.CTL and uu == 28:
                a(f"ds_read_b32 {vr(VPG+2)}, {vr(VPG)} offset:4")
            piece(U0 + uu//4, uu % 4)
        if vi < len(order) - 1:
            a("s_branch L_snext")
    a.label("L_snext")
    if cfg.CTL:
        a(f"v_readfirstlane_b32 {sr(S_POL)}, {vr(VPG+2)}")
    a(f"s_add_u32 {sr(S_CNT)}, {sr(S_CNT)}, 1")
    a(f"s_cmp_le_u32 {sr(S_CNT)}, {niter}")
    a("s_cbranch_scc1 L_sloop")
    stamp(a, cfg, 3)
    groups_allreduce(a, VL, VX, "v_add_f32")
    a(f"v_and_b32 {vr(VX)}, 15, {vr(V_LANE)}")
    a(f"v_lshrrev_b32 {vr(VX+1)}, 4, {vr(V_LANE)}")
    a(f"v_lshlrev_b32 {vr(VX)}, 5, {vr(VX)}")
    a(f"v_lshl_add_u32 {vr(VX)}, {vr(VX+1)}, 4, {vr(VX)}")
    a(f"s_lshl_b32 {sr(S_T0)}, {sr(S_WAVE)}, 9")
    a(f"s_add_u32 {sr(S_T0)}, {sr(S_T0)}, {OPART}")
    a(f"v_add_u32 {vr(VX)}, {sr(S_T0)}, {vr(VX)}")
    a(f"s_lshl_b32 {sr(S_T0)}, {sr(S_WAVE)}, 2")
    a(f"s_add_u32 {sr(S_T0)}, {sr(S_T0)}, {ML}")
    a(f"v_mov_b32 {vr(VX+2)}, {sr(S_T0)}")
    a("s_mov_b32 exec_hi, 0")
    a(f"ds_write_b128 {vr(VX)}, {vr(VO,4)}")
    a("s_mov_b64 exec, 1")
    a(f"ds_write_b32 {vr(VX+2)}, {vr(VM)}")
    a(f"ds_write_b32 {vr(VX+2)}, {vr(VL)} offset:16")
    a("s_mov_b64 exec, -1")
    a("s_waitcnt lgkmcnt(0)")
    a("s_barrier")
    if cfg.POLL:
        a(f"s_cmp_eq_u32 {sr(S_H)}, {cfg.RED_H}")
        a("s_cbranch_scc1 L_reducer")
    else:
        a("s_waitcnt vmcnt(0)")
    a("s_branch L_tail")

def gen_stream_sr(a, cfg):
    N = cfg.N
    LAG = 3 + N
    PR = cfg.PROUNDS
    assert PR in (0, 2, 4)
    V_LANE=0
    VK=2
    VV=6
    VVD=7
    VKR=8
    VVR=12
    VT=13
    VQ=16
    VA=32
    VS=48
    VP=80
    VAO=82
    VO=92
    VM=90; VL=91; VAL=96; VMC=97
    SELE=98; SELO=102
    VX=106
    VMX=14
    VD=112
    set_poll_regs(112)
    S_SOF = S_OFFB

    a.label("L_stream")
    if cfg.PRIO: a(f"s_setprio {cfg.PRIO}")
    a(f"s_lshl_b32 {sr(S_T0)}, {sr(S_WG)}, 20")
    srd(a, S_SRDK, S_K, S_T0, 0x100000)
    srd(a, S_SRDV, S_V, S_T0, 0x100000)
    a(f"s_lshl_b32 {sr(S_OFFA)}, {sr(S_WAVE)}, 13")
    a(f"s_lshl_b32 {sr(S_RING)}, {sr(S_WAVE)}, 15")

    NP = 64
    def load_desc(i):
        if i < NP:
            p = i % 32; r = p//8; half = (p % 8)//4; j = p % 4
            if i < 32: return dict(kind='K', j=j, r=r, half=half, slot=p//4, last=False, req=None)
            return dict(kind='VD', j=j, r=r, half=half, dst=VD+32*r+16*half+4*j, last=(i == 63), req=None)
        ip = i - NP
        g = ip//4; j = ip % 4; p = ip % 64
        pp = p % 32; r = pp//8; half = (pp % 8)//4
        req = g if ip < 32 else 16 + (ip-32)//4
        return dict(kind='K' if p < 32 else 'V', j=j, r=r, half=half, slot=g % 8, last=(p == 63), req=req)
    def unit_desc(u):
        if u < 16:
            if u < 8: return dict(k=True, r=u//2, half=u % 2, slot=u, need=4*u+3, direct=None)
            q = u - 8
            return dict(k=False, r=q//2, half=q % 2, slot=None, need=32+4*q+3, direct=VD+32*(q//2)+16*(q % 2))
        g = u - 16; q = g % 16
        qq = q % 8
        return dict(k=(q < 8), r=qq//2, half=qq % 2, slot=g % 8, need=NP+4*g+3, direct=None)

    state = {"m0": None, "sof": None}
    win = {"n": N}
    def issue(i, wait=True):
        d = load_desc(i)
        key = (d['r'], d['half'])
        if state["sof"] != key or d['j'] == 0:
            a(f"s_add_u32 {sr(S_SOF)}, {sr(S_OFFA)}, {d['r']*32768 + d['half']*4096}")
            state["sof"] = key
        if d['kind'] != 'VD' and state["m0"] != d['slot']:
            a(f"s_add_u32 m0, {sr(S_RING)}, {d['slot']*4096}")
            state["m0"] = d['slot']
            if not wait: a("s_nop 0")
        if wait: a(f"s_waitcnt vmcnt({win['n']-1})")
        j = d['j']
        if d['kind'] == 'K':
            a(f"buffer_load_dwordx4 {vr(VK+j)}, {sr(S_SRDK,4)}, {sr(S_SOF)} offen offset:{j*1024} {cfg.KFLAGS} lds")
        elif d['kind'] == 'V':
            a(f"buffer_load_dwordx4 {vr(VV)}, {sr(S_SRDV,4)}, {sr(S_SOF)} offen offset:{j*1024} {cfg.VFLAGS} lds")
        else:
            a(f"buffer_load_dwordx4 {vr(d['dst'],4)}, {vr(VVD)}, {sr(S_SRDV,4)}, {sr(S_SOF)} offen offset:{j*256} {cfg.VFLAGS}")
        if d['last']:
            a(f"s_add_u32 {sr(S_OFFA)}, {sr(S_OFFA)}, 131072")
            state["sof"] = None

    def piece(u, p):
        if cfg.NOCONS: return
        d = unit_desc(u)
        S = VS + 8*d['r'] + 4*d['half']
        if d['k']:
            slot = d['slot']*4096
            first = (d['r'] == 0 and d['half'] == 0)
            lastk = (d['r'] == 3 and d['half'] == 1)
            if p == 0:
                for t in range(4):
                    a(f"ds_read_b128 {vr(VA+4*t,4)}, {vr(VKR+t)} offset:{slot}")
            elif p == 1:
                for t in range(4):
                    a(f"s_waitcnt lgkmcnt({3-t})")
                    mfma(a, S, VA+4*t, VQ+4*t, None if t == 0 else S)
            elif p == 2:
                a("s_nop 7")
                a(f"v_max3_f32 {vr(VMX)}, {vr(VM if first else VMX)}, {vr(S)}, {vr(S+1)}")
                a(f"v_max3_f32 {vr(VMX)}, {vr(VMX)}, {vr(S+2)}, {vr(S+3)}")
            elif p == 3 and lastk:
                groups_allreduce(a, VMX, VX, "v_max_f32")
                a(f"v_sub_f32 {vr(VAL)}, {vr(VM)}, {vr(VMX)}")
                a(f"v_mul_f32 {vr(VMC)}, {sr(S_C)}, {vr(VMX)}")
                a(f"v_mul_f32 {vr(VAL)}, {sr(S_C)}, {vr(VAL)}")
                a(f"v_mov_b32 {vr(VM)}, {vr(VMX)}")
                a(f"v_exp_f32 {vr(VAL)}, {vr(VAL)}")
                a("s_nop 0")
                for r in range(4):
                    a(f"v_mul_f32 {vr(VO+r)}, {vr(VO+r)}, {vr(VAL)}")
                a(f"v_mul_f32 {vr(VL)}, {vr(VL)}, {vr(VAL)}")
        else:
            direct = d['direct']
            if p == 0:
                if direct is None:
                    for r in range(4):
                        a(f"ds_read_b128 {vr(VA+4*r,4)}, {vr(VVR)} offset:{d['slot']*4096 + r*256}")
                for r in range(4):
                    a(f"v_fma_f32 {vr(S+r)}, {vr(S+r)}, {sr(S_C)}, -{vr(VMC)}")
                for r in range(4):
                    a(f"v_exp_f32 {vr(S+r)}, {vr(S+r)}")
                a("s_nop 0")
                a(f"v_cvt_pk_bf16_f32 {vr(VP)}, {vr(S)}, {vr(S+1)}")
                a(f"v_cvt_pk_bf16_f32 {vr(VP+1)}, {vr(S+2)}, {vr(S+3)}")
                a(f"v_add_f32 {vr(VX)}, {vr(S)}, {vr(S+1)}")
                a(f"v_add_f32 {vr(VX+1)}, {vr(S+2)}, {vr(S+3)}")
                a(f"v_add_f32 {vr(VL)}, {vr(VL)}, {vr(VX)}")
                a(f"v_add_f32 {vr(VL)}, {vr(VL)}, {vr(VX+1)}")
            r = p
            ao = VAO + 4*(r&1)
            diag(a, ao, VP + (r>>1), r&1, SELE, SELO)
            if direct is None:
                a(f"s_waitcnt lgkmcnt({3-r})")
                a("s_nop 0")
                mfma(a, VO, ao, VA+4*r, VO)
            else:
                a("s_nop 1")
                mfma(a, VO, ao, direct+4*r, VO)

    a(f"v_lshrrev_b32 {vr(VT)}, 4, {vr(V_LANE)}")
    a(f"v_and_b32 {vr(VT+1)}, 15, {vr(V_LANE)}")
    for j in range(4):
        a(f"v_add_u32 {vr(VK+j)}, {4*j}, {vr(VT)}")
        a(f"v_xor_b32 {vr(VK+j)}, {vr(VK+j)}, {vr(VT+1)}")
        a(f"v_lshlrev_b32 {vr(VK+j)}, 4, {vr(VK+j)}")
        a(f"v_lshl_add_u32 {vr(VK+j)}, {vr(VT)}, 8, {vr(VK+j)}")
    for i in range(N): issue(i, wait=False)
    a(f"v_lshlrev_b32 {vr(VV)}, 4, {vr(V_LANE)}")
    a(f"v_lshlrev_b32 {vr(VVD)}, 10, {vr(VT)}")
    a(f"v_lshl_add_u32 {vr(VVD)}, {vr(VT+1)}, 4, {vr(VVD)}")
    for t in range(4):
        a(f"v_add_u32 {vr(VKR+t)}, {4*t}, {vr(VT)}")
        a(f"v_xor_b32 {vr(VKR+t)}, {vr(VKR+t)}, {vr(VT+1)}")
        a(f"v_lshlrev_b32 {vr(VKR+t)}, 4, {vr(VKR+t)}")
        a(f"v_lshl_add_u32 {vr(VKR+t)}, {vr(VT+1)}, 8, {vr(VKR+t)}")
        a(f"v_add_u32 {vr(VKR+t)}, {sr(S_RING)}, {vr(VKR+t)}")
    a(f"v_add_u32 {vr(VVR)}, {sr(S_RING)}, {vr(VVD)}")
    make_selectors(a, V_LANE, SELE, SELO, VX, VX+1, VX+2, VX+3)
    a(f"v_mov_b32 {vr(VM)}, 0xff800000")
    a(f"v_mov_b32 {vr(VL)}, 0")
    for r in range(4): a(f"v_mov_b32 {vr(VO+r)}, 0")
    a(f"s_mov_b32 {sr(S_C)}, {hexf(C_SCALE)}")

    RA = cfg.RUNAHEAD
    for i in range(N, RA):
        assert load_desc(i)['req'] is None
        issue(i)
        if cfg.PROSTAMP and i == N: a(f"s_memrealtime {sr(S_STAMP+4,2)}")
        if cfg.PROSTAMP and i == 20: a(f"s_memrealtime {sr(S_STAMP+8,2)}")
        if cfg.PROSTAMP and i == 40: a(f"s_memrealtime {sr(S_STAMP+10,2)}")
    stamp(a, cfg, 1)
    a("s_barrier")
    stamp(a, cfg, 2)
    nxt = RA
    def try_issue(done_units):
        nonlocal nxt
        d = load_desc(nxt)
        if d['req'] is not None and d['req'] >= done_units: return False
        issue(nxt); nxt += 1
        return True
    a(f"v_lshlrev_b32 {vr(VX)}, 4, {vr(V_LANE)}")
    a(f"v_and_b32 {vr(VX)}, 0x1ff, {vr(VX)}")
    a(f"v_add_u32 {vr(VX)}, {QPART}, {vr(VX)}")
    for p in range(4):
        a(f"ds_read_b128 {vr(VA+4*p,4)}, {vr(VX)} offset:{p*512}")
    try_issue(0); try_issue(0)
    a("s_waitcnt lgkmcnt(0)")
    for e in range(4):
        a(f"v_add_f32 {vr(VA+e)}, {vr(VA+e)}, {vr(VA+4+e)}")
        a(f"v_add_f32 {vr(VA+8+e)}, {vr(VA+8+e)}, {vr(VA+12+e)}")
    for e in range(4):
        a(f"v_add_f32 {vr(VA+e)}, {vr(VA+e)}, {vr(VA+8+e)}")
    a(f"v_cvt_pk_bf16_f32 {vr(VA+4)}, {vr(VA)}, {vr(VA+1)}")
    a(f"v_cvt_pk_bf16_f32 {vr(VA+5)}, {vr(VA+2)}, {vr(VA+3)}")
    a(f"v_lshlrev_b32 {vr(VX+1)}, 3, {vr(V_LANE)}")
    a(f"v_and_b32 {vr(VX+1)}, 0xff, {vr(VX+1)}")
    a(f"s_lshl_b32 {sr(S_T0)}, {sr(S_WAVE)}, 8")
    a(f"s_add_u32 {sr(S_T0)}, {sr(S_T0)}, {QBF}")
    a(f"v_add_u32 {vr(VX+1)}, {sr(S_T0)}, {vr(VX+1)}")
    a(f"ds_write_b64 {vr(VX+1)}, {vr(VA+4,2)}")
    a(f"v_lshrrev_b32 {vr(VX+2)}, 4, {vr(V_LANE)}")
    a(f"v_lshlrev_b32 {vr(VX+2)}, 4, {vr(VX+2)}")
    a(f"v_add_u32 {vr(VX+2)}, {sr(S_T0)}, {vr(VX+2)}")
    a("s_waitcnt lgkmcnt(0)")
    for t in range(4):
        a(f"ds_read_b128 {vr(VQ+4*t,4)}, {vr(VX+2)} offset:{t*64}")
    try_issue(0)
    a("s_waitcnt lgkmcnt(0)")
    VERS = [int(x) for x in cfg.VERS.split(',')]
    NMAX = max(VERS + [N])
    U0 = 32
    target = NP + 64 + NMAX + 3
    u = 0
    while u < U0 or nxt < target:
        d = unit_desc(u) if u < U0 else None
        if d is not None and nxt - 1 - N >= d['need']:
            ahead = (nxt - 1 - N) - d['need']
            for p in range(4):
                piece(u, p)
                want = (ahead < 2) or (p in (1, 3))
                if want and nxt < target:
                    try_issue(u)
            u += 1
        else:
            if not (nxt < target and try_issue(u)):
                raise RuntimeError(f"schedule deadlock u={u} nxt={nxt}")
    assert nxt == target and u == U0, (nxt, target, u, U0)
    if cfg.POLL:
        poll_setup(a, cfg)
    niter = (128 - U0)//16
    S_POL = S_TS
    VPG = 224
    if cfg.WPOL:
        wp = [int(x) for x in cfg.WPOL.split(',')]
        a(f"s_mov_b32 {sr(S_POL)}, {wp[0]}")
        for w in range(1, 4):
            a(f"s_cmp_eq_u32 {sr(S_WAVE)}, {w}")
            a(f"s_cselect_b32 {sr(S_POL)}, {wp[w]}, {sr(S_POL)}")
    else:
        a(f"s_mov_b32 {sr(S_POL)}, {N}")
    if cfg.CTL:
        a(f"v_mov_b32 {vr(VPG)}, {FLAG+8}")
    a(f"s_mov_b32 {sr(S_CNT)}, 1")
    a.label("L_sloop")
    if cfg.KT:
        a(f"s_cmp_gt_u32 {sr(S_CNT)}, {niter - cfg.KT}")
        a(f"s_cselect_b32 {sr(S_POL)}, {cfg.NT}, {sr(S_POL)}")
        assert cfg.NT in VERS
    if cfg.CTL:
        a(f"v_mov_b32 {vr(VPG+1)}, {sr(S_CNT)}")
        a(f"s_cmp_lg_u32 {sr(S_WAVE)}, 0")
        a("s_cbranch_scc1 L_nopg")
        a(f"ds_write_b32 {vr(VPG)}, {vr(VPG+1)}")
        a.label("L_nopg")
    for vi, n in enumerate(VERS[:-1]):
        a(f"s_cmp_eq_u32 {sr(S_POL)}, {n}")
        a(f"s_cbranch_scc1 L_ver{n}")
    order = [VERS[-1]] + VERS[:-1]
    for vi, n in enumerate(order):
        a.label(f"L_ver{n}")
        win["n"] = n
        state["m0"] = None; state["sof"] = None
        for uu in range(64):
            issue(target + uu)
            piece(U0 + uu//4, uu % 4)
        if vi < len(order) - 1:
            a("s_branch L_snext")
    a.label("L_snext")
    if cfg.CTL:
        a(f"v_readfirstlane_b32 {sr(S_POL)}, {vr(VPG+2)}")
    a(f"s_add_u32 {sr(S_CNT)}, {sr(S_CNT)}, 1")
    a(f"s_cmp_le_u32 {sr(S_CNT)}, {niter}")
    a("s_cbranch_scc1 L_sloop")
    stamp(a, cfg, 3)
    groups_allreduce(a, VL, VX, "v_add_f32")
    a(f"v_and_b32 {vr(VX)}, 15, {vr(V_LANE)}")
    a(f"v_lshrrev_b32 {vr(VX+1)}, 4, {vr(V_LANE)}")
    a(f"v_lshlrev_b32 {vr(VX)}, 5, {vr(VX)}")
    a(f"v_lshl_add_u32 {vr(VX)}, {vr(VX+1)}, 4, {vr(VX)}")
    a(f"s_lshl_b32 {sr(S_T0)}, {sr(S_WAVE)}, 9")
    a(f"s_add_u32 {sr(S_T0)}, {sr(S_T0)}, {OPART}")
    a(f"v_add_u32 {vr(VX)}, {sr(S_T0)}, {vr(VX)}")
    a(f"s_lshl_b32 {sr(S_T0)}, {sr(S_WAVE)}, 2")
    a(f"s_add_u32 {sr(S_T0)}, {sr(S_T0)}, {ML}")
    a(f"v_mov_b32 {vr(VX+2)}, {sr(S_T0)}")
    a("s_mov_b32 exec_hi, 0")
    a(f"ds_write_b128 {vr(VX)}, {vr(VO,4)}")
    a("s_mov_b64 exec, 1")
    a(f"ds_write_b32 {vr(VX+2)}, {vr(VM)}")
    a(f"ds_write_b32 {vr(VX+2)}, {vr(VL)} offset:16")
    a("s_mov_b64 exec, -1")
    a("s_waitcnt lgkmcnt(0)")
    a("s_barrier")
    if cfg.POLL:
        a(f"s_cmp_eq_u32 {sr(S_H)}, {cfg.RED_H}")
        a("s_cbranch_scc1 L_reducer")
    else:
        a("s_waitcnt vmcnt(0)")
    a("s_branch L_tail")

def gen_side(a, cfg):
    V_LANE=0
    VF=2
    VXR=12
    VT=17
    SELE=28; SELO=32
    VAO=36
    VACC=44
    VH0=64; VH1=68
    VXA=72
    VOF=90
    VW=96
    VWA=VACC
    WF = cfg.WFLAGS
    D = cfg.DEPTH
    S_ROT = S_CNT
    S_SO = S_OFFA

    a.label("L_side")
    a(f"s_sub_u32 {sr(S_SW)}, {sr(S_WAVE)}, 4")
    a(f"s_mul_i32 {sr(S_T0)}, {sr(S_B)}, 1152")
    srd(a, S_SRDK, S_X, S_T0, 1152)
    a(f"v_lshlrev_b32 {vr(VT)}, 2, {vr(V_LANE)}")
    for k in range(5):
        a(f"buffer_load_dword {vr(VXR+k)}, {vr(VT)}, {sr(S_SRDK,4)}, 0 offen offset:{256*k}")
    a(f"s_lshl_b32 {sr(S_T0)}, {sr(S_H)}, 8")
    a(f"s_sub_u32 {sr(S_T1)}, {576*8192}, {sr(S_T0)}")
    srd(a, S_SRDV, S_WQ, S_T0, sr(S_T1))
    if cfg.ROT:
        a(f"s_mul_i32 {sr(S_ROT)}, {sr(S_B)}, 18")
        a(f"s_lshr_b32 {sr(S_ROT)}, {sr(S_ROT)}, 3")
        a(f"s_lshl_b32 {sr(S_ROT)}, {sr(S_ROT)}, 1")
    else:
        a(f"s_mov_b32 {sr(S_ROT)}, 0")
    a(f"v_lshrrev_b32 {vr(VT+1)}, 4, {vr(V_LANE)}")
    a(f"v_and_b32 {vr(VT+2)}, 15, {vr(V_LANE)}")
    a(f"v_mul_u32_u24 {vr(VT+3)}, 36, {vr(VT+1)}")
    a(f"s_mul_i32 {sr(S_T2)}, {sr(S_SW)}, 144")
    a(f"v_add_u32 {vr(VT+3)}, {sr(S_T2)}, {vr(VT+3)}")
    a(f"v_lshlrev_b32 {vr(VOF)}, 13, {vr(VT+3)}")
    a(f"v_lshl_add_u32 {vr(VOF)}, {vr(VT+2)}, 4, {vr(VOF)}")
    def adv(step, n):
        a(f"s_add_u32 {sr(S_SO)}, {sr(S_SO)}, {step}")
        a(f"s_cmp_ge_u32 {sr(S_SO)}, {step*n}")
        a(f"s_cselect_b32 {sr(S_SO)}, 0, {sr(S_SO)}")
    a(f"s_lshl_b32 {sr(S_SO)}, {sr(S_ROT)}, 13")
    DQ = cfg.DQ
    def wq_load(t):
        a(f"buffer_load_dwordx4 {vr(VW+4*t,4)}, {vr(VOF)}, {sr(S_SRDV,4)}, {sr(S_SO)} offen {WF}")
        if t < 35: adv(8192, 36)
    for t in range(DQ): wq_load(t)
    a(f"s_mov_b32 {sr(S_T3)}, 9216")
    a(f"v_mul_lo_u32 {vr(VOF+1)}, {vr(VT+3)}, {sr(S_T3)}")
    a(f"v_lshl_add_u32 {vr(VOF+1)}, {vr(VT+2)}, 4, {vr(VOF+1)}")
    a(f"v_add_u32 {vr(VOF+2)}, 256, {vr(VOF+1)}")
    a(f"v_mov_b32 {vr(VT+4)}, 0x7f000000")
    a(f"v_cmp_gt_u32 vcc, 2, {vr(VT+2)}")
    a("s_nop 1")
    a(f"v_cndmask_b32 {vr(VOF+2)}, {vr(VT+4)}, {vr(VOF+2)}, vcc")
    make_selectors(a, V_LANE, SELE, SELO, VT+4, VT+5, VT+6, VT+7)
    a(f"s_mov_b32 {sr(S_MASKHI)}, 0xffff0000")
    a(f"s_mul_i32 {sr(S_T0)}, {sr(S_SW)}, 2560")
    a(f"s_add_u32 {sr(S_T0)}, {sr(S_T0)}, {XPRIV}")
    a(f"s_movk_i32 {sr(S_T1)}, 3641")
    for k in range(5):
        a(f"v_add_u32 {vr(VT+4)}, {64*k}, {vr(V_LANE)}")
        a(f"v_mul_u32_u24 {vr(VT+5)}, {sr(S_T1)}, {vr(VT+4)}")
        a(f"v_lshrrev_b32 {vr(VT+5)}, 16, {vr(VT+5)}")
        a(f"v_mul_u32_u24 {vr(VT+5)}, 72, {vr(VT+5)}")
        a(f"v_lshl_add_u32 {vr(VWA+k)}, {vr(VT+4)}, 2, {vr(VT+5)}")
        a(f"v_add_u32 {vr(VWA+k)}, {sr(S_T0)}, {vr(VWA+k)}")
    a(f"s_mul_i32 {sr(S_T1)}, {sr(S_SW)}, 576")
    a(f"s_add_u32 {sr(S_T0)}, {sr(S_T0)}, {sr(S_T1)}")
    a(f"s_lshl_b32 {sr(S_T1)}, {sr(S_ROT)}, 1")
    a(f"s_add_u32 {sr(S_T0)}, {sr(S_T0)}, {sr(S_T1)}")
    a(f"v_mul_u32_u24 {vr(VOF+4)}, 144, {vr(VT+1)}")
    a(f"v_add_u32 {vr(VOF+4)}, {sr(S_T0)}, {vr(VOF+4)}")
    a(f"s_mov_b32 {sr(S_EX)}, -1")
    a(f"s_mov_b32 {sr(S_EX+1)}, 0")
    a(f"v_mov_b32 {vr(VT+4)}, {FLAG+4}")
    a(f"v_mov_b32 {vr(VT+5)}, 0")
    a(f"ds_write_b32 {vr(VT+4)}, {vr(VT+5)}")
    a(f"ds_write_b32 {vr(VT+4)}, {vr(VT+5)} offset:4")
    a(f"v_mov_b32 {vr(VT+5)}, {cfg.N}")
    a(f"ds_write_b32 {vr(VT+4)}, {vr(VT+5)} offset:8")

    def layernorm():
        s = VT+8; t = VT+9; u = VT+10
        a(f"v_add_f32 {vr(s)}, {vr(VF)}, {vr(VF+1)}")
        for k in range(2,10): a(f"v_add_f32 {vr(s)}, {vr(s)}, {vr(VF+k)}")
        allreduce_sum(a, s, t)
        a(f"v_mul_f32 {vr(s)}, {hexf(1.0/576)}, {vr(s)}")
        a(f"v_sub_f32 {vr(t)}, {vr(VF)}, {vr(s)}")
        a(f"v_mul_f32 {vr(u)}, {vr(t)}, {vr(t)}")
        for k in range(1,10):
            a(f"v_sub_f32 {vr(t)}, {vr(VF+k)}, {vr(s)}")
            if k >= 8:
                a(f"v_cndmask_b32 {vr(t)}, 0, {vr(t)}, {sr(S_EX,2)}")
            a(f"v_fmac_f32 {vr(u)}, {vr(t)}, {vr(t)}")
        allreduce_sum(a, u, t)
        a(f"v_mul_f32 {vr(u)}, {hexf(1.0/576)}, {vr(u)}")
        a(f"v_cvt_pk_bf16_f32 {vr(t)}, {vr(s)}, {vr(u)}")
        a(f"v_lshlrev_b32 {vr(s)}, 16, {vr(t)}")
        a(f"v_and_b32 {vr(u)}, {sr(S_MASKHI)}, {vr(t)}")
        a(f"v_add_f32 {vr(u)}, {hexf(1e-5)}, {vr(u)}")
        a(f"v_cvt_pk_bf16_f32 {vr(u)}, {vr(u)}, {vr(u)}")
        a(f"v_and_b32 {vr(u)}, {sr(S_MASKHI)}, {vr(u)}")
        a(f"v_sqrt_f32 {vr(u)}, {vr(u)}")
        a("s_nop 0")
        a(f"v_cvt_pk_bf16_f32 {vr(u)}, {vr(u)}, {vr(u)}")
        a(f"v_and_b32 {vr(u)}, {sr(S_MASKHI)}, {vr(u)}")
        a(f"v_rcp_f32 {vr(u)}, {vr(u)}")
        for k in range(5):
            A0 = VF+2*k; A1 = A0+1
            a(f"v_sub_f32 {vr(A0)}, {vr(A0)}, {vr(s)}")
            a(f"v_sub_f32 {vr(A1)}, {vr(A1)}, {vr(s)}")
            a(f"v_cvt_pk_bf16_f32 {vr(t)}, {vr(A0)}, {vr(A1)}")
            a(f"v_lshlrev_b32 {vr(A0)}, 16, {vr(t)}")
            a(f"v_and_b32 {vr(A1)}, {sr(S_MASKHI)}, {vr(t)}")
            a(f"v_mul_f32 {vr(A0)}, {vr(A0)}, {vr(u)}")
            a(f"v_mul_f32 {vr(A1)}, {vr(A1)}, {vr(u)}")
            a(f"v_cvt_pk_bf16_f32 {vr(VXR+k)}, {vr(A0)}, {vr(A1)}")
            a(f"v_lshlrev_b32 {vr(A0)}, 16, {vr(VXR+k)}")
            a(f"v_and_b32 {vr(A1)}, {sr(S_MASKHI)}, {vr(VXR+k)}")
            if k == 4: a("s_mov_b32 exec_hi, 0")
            a(f"ds_write_b32 {vr(VWA+k)}, {vr(VXR+k)}")
            a(f"ds_write_b32 {vr(VWA+k)}, {vr(VXR+k)} offset:72")
            if k == 4: a("s_mov_b64 exec, -1")
        a(f"v_cndmask_b32 {vr(VF+8)}, 0, {vr(VF+8)}, {sr(S_EX,2)}")
        a(f"v_cndmask_b32 {vr(VF+9)}, 0, {vr(VF+9)}, {sr(S_EX,2)}")
        a("s_waitcnt lgkmcnt(0)")
        for k in range(9):
            a(f"ds_read2_b32 {vr(VXA+2*k,2)}, {vr(VOF+4)} offset0:{2*k} offset1:{2*k+1}")

    a(f"s_waitcnt vmcnt({DQ})")
    for k in range(5):
        a(f"v_lshlrev_b32 {vr(VF+2*k)}, 16, {vr(VXR+k)}")
        a(f"v_and_b32 {vr(VF+2*k+1)}, {sr(S_MASKHI)}, {vr(VXR+k)}")
    layernorm()
    a("s_waitcnt lgkmcnt(0)")
    for t in range(36):
        ao = VAO + 4*(t&1)
        diag(a, ao, VXA + (t>>1), t&1, SELE, SELO)
        a(f"s_waitcnt vmcnt({min(DQ, 36-t)-1})")
        a("s_nop 0")
        mfma(a, VH0, ao, VW+4*t, None if t == 0 else VH0)
        if t + DQ < 36: wq_load(t + DQ)
    a(f"v_and_b32 {vr(VT)}, 15, {vr(V_LANE)}")
    a(f"v_lshrrev_b32 {vr(VT+1)}, 4, {vr(V_LANE)}")
    a(f"v_lshlrev_b32 {vr(VT)}, 5, {vr(VT)}")
    a(f"v_lshl_add_u32 {vr(VOF+5)}, {vr(VT+1)}, 4, {vr(VT)}")
    a(f"s_lshl_b32 {sr(S_T0)}, {sr(S_SW)}, 9")
    a(f"s_add_u32 {sr(S_T0)}, {sr(S_T0)}, {QPART}")
    a(f"v_add_u32 {vr(VT)}, {sr(S_T0)}, {vr(VOF+5)}")
    a("s_nop 4")
    a("s_mov_b32 exec_hi, 0")
    a(f"ds_write_b128 {vr(VT)}, {vr(VH0,4)}")
    a("s_mov_b64 exec, -1")
    a("s_waitcnt lgkmcnt(0)")
    stamp(a, cfg, 1)
    a("s_barrier")
    if cfg.NOSIDE:
        a("s_barrier")
        a("s_branch L_tail")

    if cfg.POLL:
        a(f"s_cmp_lg_u32 {sr(S_SW)}, 0")
        a("s_cbranch_scc1 L_noreset")
        a(f"s_mul_i32 {sr(S_T0)}, {sr(S_WG)}, 2304")
        srd(a, S_SRD2, S_WS, S_T0, 2304)
        a(f"v_lshlrev_b32 {vr(VT)}, 4, {vr(V_LANE)}")
        for e in range(4): a(f"v_mov_b32 {vr(VW+e)}, -1")
        for k in range(3):
            a(f"buffer_store_dwordx4 {vr(VW,4)}, {vr(VT)}, {sr(S_SRD2,4)}, 0 offen offset:{1024*k} sc1")
        a("s_waitcnt vmcnt(0)")
        if cfg.STARTSIG == 'atomic':
            a(f"s_lshl_b32 {sr(S_T0)}, {sr(S_B)}, 5")
            a(f"v_mov_b32 {vr(VT)}, {sr(S_T0)}")
            a(f"v_mov_b32 {vr(VT+1)}, 1")
            a("s_mov_b64 exec, 1")
            a(f"global_atomic_add {vr(VT)}, {vr(VT+1)}, {sr(S_DBG,2)} offset:4")
            a("s_mov_b64 exec, -1")
            a("s_waitcnt vmcnt(0)")
        elif cfg.STARTSIG == 'byte':
            a(f"v_mov_b32 {vr(VT)}, {sr(S_WG)}")
            a(f"v_mov_b32 {vr(VT+1)}, 1")
            a("s_mov_b64 exec, 1")
            a(f"global_store_byte {vr(VT)}, {vr(VT+1)}, {sr(S_DBG,2)} sc1")
            a("s_mov_b64 exec, -1")
            a("s_waitcnt vmcnt(0)")
        a.label("L_noreset")

    def paced(units, compute, D=D):
        flat = [(u, f) for u, fs in enumerate(units) for f in fs]
        last = {}
        for idx, (u, f) in enumerate(flat): last[u] = idx
        done = 0
        nu = len(units)
        for idx, (u, f) in enumerate(flat):
            if idx >= D: a(f"s_waitcnt vmcnt({D-1})")
            f()
            landed = idx - D if idx >= D else -1
            while done < nu and last[done] <= landed:
                compute(done); done += 1
        n = len(flat)
        while done < nu:
            a(f"s_waitcnt vmcnt({n-1-last[done]})")
            compute(done); done += 1

    if cfg.MMAP:
        a(f"s_and_b32 {sr(S_M)}, {sr(S_H)}, 7")
        a(f"s_lshl_b32 {sr(S_M)}, {sr(S_M)}, 2")
        a(f"s_lshr_b32 {sr(S_T0)}, {sr(S_H)}, 3")
        a(f"s_add_u32 {sr(S_M)}, {sr(S_M)}, {sr(S_T0)}")
    else:
        a(f"s_mov_b32 {sr(S_M)}, {sr(S_H)}")
    a(f"s_mul_i32 {sr(S_T0)}, {sr(S_M)}, 288")
    a(f"s_sub_u32 {sr(S_T1)}, {576*9216}, {sr(S_T0)}")
    srd(a, S_SRDV, S_W1, S_T0, sr(S_T1))
    layernorm()
    a(f"s_mul_i32 {sr(S_SO)}, {sr(S_ROT)}, 9216")
    a("s_waitcnt lgkmcnt(0)")
    NB = D + 2
    def w1_unit(t):
        b = VW + 8*(t % NB)
        def f0(): a(f"buffer_load_dwordx4 {vr(b,4)}, {vr(VOF+1)}, {sr(S_SRDV,4)}, {sr(S_SO)} offen {WF}")
        def f1():
            a(f"buffer_load_dwordx4 {vr(b+4,4)}, {vr(VOF+2)}, {sr(S_SRDV,4)}, {sr(S_SO)} offen {WF}")
            if t < 35: adv(9216, 36)
        return [f0, f1]
    def w1_comp(t):
        b = VW + 8*(t % NB)
        ao = VAO + 4*(t&1)
        diag(a, ao, VXA + (t>>1), t&1, SELE, SELO)
        a("s_nop 1")
        mfma(a, VH0, ao, b, None if t == 0 else VH0)
        mfma(a, VH1, ao, b+4, None if t == 0 else VH1)
    paced([w1_unit(t) for t in range(36)], w1_comp)
    a(f"s_mul_i32 {sr(S_T0)}, {sr(S_M)}, 288")
    srd(a, S_SRDK, S_B1, S_T0, 288)
    a(f"v_lshrrev_b32 {vr(VT+1)}, 4, {vr(V_LANE)}")
    a(f"v_mul_u32_u24 {vr(VT+2)}, 9, {vr(VT+1)}")
    a(f"s_mul_i32 {sr(S_T2)}, {sr(S_SW)}, 36")
    a(f"v_add_u32 {vr(VT+2)}, {sr(S_T2)}, {vr(VT+2)}")
    a(f"v_lshlrev_b32 {vr(VT+3)}, 1, {vr(VT+2)}")
    for t in range(9):
        a(f"buffer_load_ushort {vr(VF+t)}, {vr(VT+3)}, {sr(S_SRDK,4)}, 0 offen offset:{2*t}")
    a(f"s_lshl_b32 {sr(S_T0)}, {sr(S_SW)}, 10")
    a(f"s_add_u32 {sr(S_T0)}, {sr(S_T0)}, {HPART}")
    a(f"v_add_u32 {vr(VT)}, {sr(S_T0)}, {vr(VOF+5)}")
    a("s_mov_b32 exec_hi, 0")
    a(f"ds_write_b128 {vr(VT)}, {vr(VH0,4)}")
    a(f"ds_write_b128 {vr(VT)}, {vr(VH1,4)} offset:512")
    a("s_mov_b64 exec, -1")
    a(f"s_mul_i32 {sr(S_T0)}, {sr(S_M)}, {144*1152}")
    srd(a, S_SRDV, S_W2, S_T0, 144*1152)
    a(f"v_and_b32 {vr(VT+4)}, 15, {vr(V_LANE)}")
    a(f"s_movk_i32 {sr(S_T3)}, 1152")
    a(f"v_mul_lo_u32 {vr(VOF)}, {vr(VT+2)}, {sr(S_T3)}")
    a(f"v_lshl_add_u32 {vr(VOF)}, {vr(VT+4)}, 4, {vr(VOF)}")
    a(f"v_add_u32 {vr(VOF+1)}, 1024, {vr(VOF)}")
    a(f"v_mov_b32 {vr(VT+5)}, 0x7f000000")
    a(f"v_cmp_gt_u32 vcc, 8, {vr(VT+4)}")
    a("s_nop 1")
    a(f"v_cndmask_b32 {vr(VOF+1)}, {vr(VT+5)}, {vr(VOF+1)}, vcc")
    a(f"v_lshlrev_b32 {vr(VOF+2)}, 2, {vr(VT+2)}")
    a(f"v_add_u32 {vr(VOF+2)}, {HPART}, {vr(VOF+2)}")
    a(f"v_mov_b32 {vr(VT)}, {FLAG+4}")
    a(f"v_mov_b32 {vr(VT+1)}, 1")
    a("s_waitcnt lgkmcnt(0)")
    a("s_mov_b64 exec, 1")
    a(f"ds_add_u32 {vr(VT)}, {vr(VT+1)}")
    a("s_mov_b64 exec, -1")
    a.label("L_hsync")
    a(f"ds_read_b32 {vr(VT+1)}, {vr(VT)}")
    a("s_waitcnt lgkmcnt(0)")
    a(f"v_readfirstlane_b32 {sr(S_T0)}, {vr(VT+1)}")
    a("s_nop 3")
    a(f"s_cmp_ge_u32 {sr(S_T0)}, 4")
    a("s_cbranch_scc1 L_hsync_done")
    a("s_sleep 4")
    a("s_branch L_hsync")
    a.label("L_hsync_done")
    HS = VXA
    for t in range(9):
        a(f"ds_read_b32 {vr(HS+t)}, {vr(VOF+2)} offset:{4*t}")
        a(f"ds_read_b32 {vr(VT)}, {vr(VOF+2)} offset:{1024+4*t}")
        a(f"ds_read_b32 {vr(VT+1)}, {vr(VOF+2)} offset:{2048+4*t}")
        a(f"ds_read_b32 {vr(VT+2)}, {vr(VOF+2)} offset:{3072+4*t}")
        a("s_waitcnt lgkmcnt(0)")
        a(f"v_add_f32 {vr(HS+t)}, {vr(HS+t)}, {vr(VT)}")
        a(f"v_add_f32 {vr(VT+1)}, {vr(VT+1)}, {vr(VT+2)}")
        a(f"v_add_f32 {vr(HS+t)}, {vr(HS+t)}, {vr(VT+1)}")
    a("s_waitcnt vmcnt(0)")
    K1 = -2.0*math.log2(math.e)*math.sqrt(2.0/math.pi)
    a(f"s_mov_b32 {sr(S_T0)}, {hexf(0.044715)}")
    a(f"s_mov_b32 {sr(S_T1)}, {hexf(K1)}")
    for t in range(9):
        x = HS+t
        a(f"v_cvt_pk_bf16_f32 {vr(x)}, {vr(x)}, {vr(x)}")
        a(f"v_and_b32 {vr(x)}, {sr(S_MASKHI)}, {vr(x)}")
        a(f"v_lshlrev_b32 {vr(VF+t)}, 16, {vr(VF+t)}")
        a(f"v_add_f32 {vr(x)}, {vr(x)}, {vr(VF+t)}")
        a(f"v_cvt_pk_bf16_f32 {vr(x)}, {vr(x)}, {vr(x)}")
        a(f"v_and_b32 {vr(x)}, {sr(S_MASKHI)}, {vr(x)}")
        a(f"v_mul_f32 {vr(VT)}, {vr(x)}, {vr(x)}")
        a(f"v_mul_f32 {vr(VT)}, {vr(VT)}, {vr(x)}")
        a(f"v_fma_f32 {vr(VT)}, {vr(VT)}, {sr(S_T0)}, {vr(x)}")
        a(f"v_mul_f32 {vr(VT)}, {sr(S_T1)}, {vr(VT)}")
        a(f"v_exp_f32 {vr(VT)}, {vr(VT)}")
        a("s_nop 0")
        a(f"v_add_f32 {vr(VT)}, 1.0, {vr(VT)}")
        a(f"v_rcp_f32 {vr(VT)}, {vr(VT)}")
        a("s_nop 0")
        a(f"v_mul_f32 {vr(x)}, {vr(x)}, {vr(VT)}")
    HP = VF
    for k in range(4):
        a(f"v_cvt_pk_bf16_f32 {vr(HP+k)}, {vr(HS+2*k)}, {vr(HS+2*k+1)}")
    a(f"v_cvt_pk_bf16_f32 {vr(HP+4)}, {vr(HS+8)}, {vr(HS+8)}")

    def out_unit(t, base):
        fs = []
        for cg in range(4):
            def f(cg=cg):
                if cg == 0:
                    if cfg.ROT2 and t < 8:
                        a(f"s_and_b32 {sr(S_T3)}, {sr(S_B)}, {cfg.ROT2}")
                        a(f"s_xor_b32 {sr(S_T3)}, {sr(S_T3)}, {t}")
                        a(f"s_mul_i32 {sr(S_T3)}, {sr(S_T3)}, 1152")
                    else:
                        a(f"s_movk_i32 {sr(S_T3)}, {t*1152}")
                a(f"buffer_load_dwordx4 {vr(base+4*cg,4)}, {vr(VOF)}, {sr(S_SRDV,4)}, {sr(S_T3)} offen offset:{256*cg} {WF}")
            fs.append(f)
        fs.append(lambda: a(f"buffer_load_dwordx4 {vr(base+16,4)}, {vr(VOF+1)}, {sr(S_SRDV,4)}, {sr(S_T3)} offen {WF}"))
        return fs
    def out_comp(t, base, src, first):
        ao = VAO + 4*(t&1)
        diag(a, ao, src + (t>>1), t&1, SELE, SELO)
        a("s_nop 1")
        for cg in range(5):
            mfma(a, VACC+4*cg, ao, base+4*cg, None if first else VACC+4*cg)
    NB2 = 3
    paced([out_unit(t, VW + 20*(t % NB2)) for t in range(9)],
          lambda t: out_comp(t, VW + 20*(t % NB2), HP, t == 0), D=cfg.D2 or D)
    a(f"s_mul_i32 {sr(S_T0)}, {sr(S_H)}, {128*1152}")
    srd(a, S_SRDV, S_WO, S_T0, 128*1152)
    a(f"v_lshrrev_b32 {vr(VT+1)}, 4, {vr(V_LANE)}")
    a(f"v_and_b32 {vr(VT+4)}, 15, {vr(V_LANE)}")
    a(f"v_lshlrev_b32 {vr(VT+2)}, 3, {vr(VT+1)}")
    a(f"s_lshl_b32 {sr(S_T2)}, {sr(S_SW)}, 5")
    a(f"v_add_u32 {vr(VT+2)}, {sr(S_T2)}, {vr(VT+2)}")
    a(f"s_movk_i32 {sr(S_T3)}, 1152")
    a(f"v_mul_lo_u32 {vr(VOF)}, {vr(VT+2)}, {sr(S_T3)}")
    a(f"v_lshl_add_u32 {vr(VOF)}, {vr(VT+4)}, 4, {vr(VOF)}")
    a(f"v_add_u32 {vr(VOF+1)}, 1024, {vr(VOF)}")
    a(f"v_mov_b32 {vr(VT+5)}, 0x7f000000")
    a(f"v_cmp_gt_u32 vcc, 8, {vr(VT+4)}")
    a("s_nop 1")
    a(f"v_cndmask_b32 {vr(VOF+1)}, {vr(VT+5)}, {vr(VOF+1)}, vcc")
    paced([out_unit(t, VW + 20*t) for t in range(8)], lambda t: None, D=cfg.D3 or D)
    a(f"v_lshlrev_b32 {vr(VOF+2)}, 2, {vr(VT+2)}")
    a(f"v_add_u32 {vr(VOF+2)}, {OPART}, {vr(VOF+2)}")
    a(f"s_mul_i32 {sr(S_T0)}, {sr(S_SW)}, 2560")
    a(f"s_add_u32 {sr(S_T0)}, {sr(S_T0)}, {OUTP}")
    a(f"v_add_u32 {vr(VOF+3)}, {sr(S_T0)}, {vr(VOF+5)}")
    a(f"v_mov_b32 {vr(VOF+4)}, {ML}")
    a(f"s_mov_b32 {sr(S_C)}, {hexf(C_SCALE)}")
    a("s_waitcnt vmcnt(0)")
    if cfg.POLL:
        a(f"s_cmp_lg_u32 {sr(S_H)}, {cfg.RED_H}")
        a("s_cbranch_scc1 L_started")
        a(f"s_cmp_lg_u32 {sr(S_SW)}, 0")
        a("s_cbranch_scc1 L_started")
        if cfg.STARTSIG == 'atomic':
            a(f"s_lshl_b32 {sr(S_T0)}, {sr(S_B)}, 5")
            a(f"v_mov_b32 {vr(VT)}, {sr(S_T0)}")
            a(f"s_mov_b32 {sr(S_T1)}, 200000")
            a.label("L_startchk")
            a(f"s_sub_u32 {sr(S_T1)}, {sr(S_T1)}, 1")
            a("s_cbranch_scc1 L_started")
            a(f"global_load_dword {vr(VT+1)}, {vr(VT)}, {sr(S_DBG,2)} offset:4 sc1")
            a("s_waitcnt vmcnt(0)")
            a(f"v_readfirstlane_b32 {sr(S_T0)}, {vr(VT+1)}")
            a("s_nop 3")
            a(f"s_cmp_ge_u32 {sr(S_T0)}, 32")
            a("s_cbranch_scc1 L_started")
            a("s_sleep 8")
            a("s_branch L_startchk")
        elif cfg.STARTSIG == 'byte':
            a(f"s_lshl_b32 {sr(S_T0)}, {sr(S_B)}, 5")
            a(f"v_and_b32 {vr(VT)}, 7, {vr(V_LANE)}")
            a(f"v_lshlrev_b32 {vr(VT)}, 2, {vr(VT)}")
            a(f"v_add_u32 {vr(VT)}, {sr(S_T0)}, {vr(VT)}")
            a(f"s_mov_b32 {sr(S_T1)}, 200000")
            a(f"s_mov_b32 {sr(S_T2)}, 0x01010101")
            a.label("L_startchk")
            a(f"s_sub_u32 {sr(S_T1)}, {sr(S_T1)}, 1")
            a("s_cbranch_scc1 L_started")
            a(f"global_load_dword {vr(VT+1)}, {vr(VT)}, {sr(S_DBG,2)} sc1")
            a("s_waitcnt vmcnt(0)")
            a(f"v_cmp_ne_u32 vcc, {sr(S_T2)}, {vr(VT+1)}")
            a("s_cbranch_vccz L_started")
            a("s_sleep 8")
            a("s_branch L_startchk")
        a.label("L_started")
    if cfg.CTL:
        T1, T2, nA, nB, nC = [int(x) for x in cfg.CTL.split(',')]
        niter = (128 - (4*cfg.PROUNDS + 8*cfg.K0))//8
        a(f"s_cmp_lg_u32 {sr(S_SW)}, 0")
        a("s_cbranch_scc1 L_ctl_done")
        a(f"v_mov_b32 {vr(VT)}, {FLAG+8}")
        a(f"ds_read_b32 {vr(VT+1)}, {vr(VT)}")
        a("s_waitcnt lgkmcnt(0)")
        a(f"v_readfirstlane_b32 {sr(S_T3)}, {vr(VT+1)}")
        a.label("L_ctl")
        a(f"s_cmp_ge_u32 {sr(S_T3)}, {niter - cfg.CTLSTOP}")
        a("s_cbranch_scc1 L_ctl_done")
        a("s_sleep 2")
        a(f"ds_read_b32 {vr(VT+1)}, {vr(VT)}")
        a("s_waitcnt lgkmcnt(0)")
        a(f"v_readfirstlane_b32 {sr(S_T2)}, {vr(VT+1)}")
        a("s_nop 3")
        a(f"s_cmp_eq_u32 {sr(S_T2)}, {sr(S_T3)}")
        a("s_cbranch_scc1 L_ctl")
        a(f"s_mov_b32 {sr(S_T3)}, {sr(S_T2)}")
        a(f"s_and_b32 {sr(S_T0)}, {sr(S_T3)}, 7")
        a(f"s_lshl_b32 {sr(S_T0)}, {sr(S_T0)}, 5")
        a(f"s_lshr_b32 {sr(S_T1)}, {sr(S_T3)}, 3")
        a(f"s_lshl_b32 {sr(S_T1)}, {sr(S_T1)}, 2")
        a(f"s_add_u32 {sr(S_T0)}, {sr(S_T0)}, {sr(S_T1)}")
        a(f"v_mov_b32 {vr(VT+2)}, {sr(S_T0)}")
        a(f"v_mov_b32 {vr(VT+3)}, 1")
        a("s_mov_b64 exec, 1")
        a(f"global_atomic_add {vr(VT+4)}, {vr(VT+2)}, {vr(VT+3)}, {sr(S_DBG,2)} offset:8 sc0")
        a("s_mov_b64 exec, -1")
        a("s_waitcnt vmcnt(0)")
        a(f"v_readfirstlane_b32 {sr(S_T0)}, {vr(VT+4)}")
        a("s_nop 3")
        a(f"s_mov_b32 {sr(S_T1)}, {nC}")
        a(f"s_cmp_lt_u32 {sr(S_T0)}, {T2}")
        a(f"s_cselect_b32 {sr(S_T1)}, {nB}, {sr(S_T1)}")
        a(f"s_cmp_lt_u32 {sr(S_T0)}, {T1}")
        a(f"s_cselect_b32 {sr(S_T1)}, {nA}, {sr(S_T1)}")
        a(f"v_mov_b32 {vr(VT+2)}, {sr(S_T1)}")
        a(f"ds_write_b32 {vr(VT)}, {vr(VT+2)} offset:4")
        a("s_branch L_ctl")
        a.label("L_ctl_done")
        a("s_waitcnt lgkmcnt(0)")
    stamp(a, cfg, 2)
    a("s_barrier")
    stamp(a, cfg, 3)
    MM = VXA; LL = VXA+4
    a(f"ds_read_b128 {vr(MM,4)}, {vr(VOF+4)}")
    a(f"ds_read_b128 {vr(LL,4)}, {vr(VOF+4)} offset:16")
    OR = [2, 10, 18, 80]
    for w in range(4):
        a(f"ds_read_b128 {vr(OR[w],4)}, {vr(VOF+2)} offset:{w*512}")
        a(f"ds_read_b128 {vr(OR[w]+4,4)}, {vr(VOF+2)} offset:{w*512+16}")
    a("s_waitcnt lgkmcnt(8)")
    mx = 26; tt = 27
    a(f"v_max3_f32 {vr(mx)}, {vr(MM)}, {vr(MM+1)}, {vr(MM+2)}")
    a(f"v_max_f32 {vr(mx)}, {vr(mx)}, {vr(MM+3)}")
    for w in range(4):
        a(f"v_sub_f32 {vr(MM+w)}, {vr(MM+w)}, {vr(mx)}")
    for w in range(4):
        a(f"v_mul_f32 {vr(MM+w)}, {sr(S_C)}, {vr(MM+w)}")
    for w in range(4):
        a(f"v_exp_f32 {vr(MM+w)}, {vr(MM+w)}")
    a("s_nop 0")
    a(f"v_mul_f32 {vr(tt)}, {vr(MM)}, {vr(LL)}")
    for w in range(1,4):
        a(f"v_fmac_f32 {vr(tt)}, {vr(MM+w)}, {vr(LL+w)}")
    a(f"v_rcp_f32 {vr(tt)}, {vr(tt)}")
    a("s_nop 0")
    for w in range(4):
        a(f"v_mul_f32 {vr(MM+w)}, {vr(MM+w)}, {vr(tt)}")
    a("s_waitcnt lgkmcnt(0)")
    for e in range(8):
        a(f"v_mul_f32 {vr(OR[0]+e)}, {vr(OR[0]+e)}, {vr(MM)}")
    for w in range(1,4):
        for e in range(8):
            a(f"v_fmac_f32 {vr(OR[0]+e)}, {vr(OR[w]+e)}, {vr(MM+w)}")
    OPK = 10
    for k in range(4):
        a(f"v_cvt_pk_bf16_f32 {vr(OPK+k)}, {vr(OR[0]+2*k)}, {vr(OR[0]+2*k+1)}")
    for t in range(8):
        out_comp(t, VW + 20*t, OPK, False)
    a("s_nop 7")
    a("s_mov_b32 exec_hi, 0")
    for cg in range(5):
        a(f"ds_write_b128 {vr(VOF+3)}, {vr(VACC+4*cg,4)} offset:{512*cg}")
    a("s_mov_b64 exec, -1")
    a("s_waitcnt lgkmcnt(0)")


PR1=96; PR2=160; POWN=168; PXB=184; PVO=188; PVO0=189; PV2A=190; PV2B=191; PLA=192; POUT=193; PT=194
def set_poll_regs(base):
    global PR1, PR2, POWN, PXB, PVO, PVO0, PV2A, PV2B, PLA, POUT, PT
    PR1=base; PR2=base+64; POWN=base+72; PXB=base+88; PVO=base+92; PVO0=base+93; PV2A=base+94; PV2B=base+95; PLA=base+96; POUT=base+97; PT=base+98

def poll_setup(a, cfg):
    assert cfg.RED_H == 0
    L = 0
    a(f"s_mul_i32 {sr(S_T0)}, {sr(S_B)}, {32*2304}")
    srd(a, S_SRD2, S_WS, S_T0, 32*2304)
    a(f"s_mul_i32 {sr(S_T2)}, {sr(S_WAVE)}, 36")
    a(f"v_and_b32 {vr(PT)}, 31, {vr(L)}")
    a(f"v_add_u32 {vr(PT)}, {sr(S_T2)}, {vr(PT)}")
    a(f"v_lshlrev_b32 {vr(PVO)}, 4, {vr(PT)}")
    a(f"v_lshrrev_b32 {vr(PT+1)}, 5, {vr(L)}")
    a(f"s_mov_b32 {sr(S_T3)}, {16*2304}")
    a(f"v_mul_lo_u32 {vr(PT+1)}, {vr(PT+1)}, {sr(S_T3)}")
    a(f"v_add_u32 {vr(PVO)}, {vr(PVO)}, {vr(PT+1)}")
    a(f"v_mov_b32 {vr(PT+2)}, 0x7f000000")
    a(f"v_cmp_gt_u32 vcc, 32, {vr(L)}")
    a("s_nop 1")
    a(f"v_cndmask_b32 {vr(PVO0)}, {vr(PVO)}, {vr(PT+2)}, vcc")
    a(f"v_and_b32 {vr(PT)}, 3, {vr(L)}")
    a(f"v_add_u32 {vr(PT)}, {sr(S_T2)}, {vr(PT)}")
    a(f"v_add_u32 {vr(PT)}, 32, {vr(PT)}")
    a(f"v_lshlrev_b32 {vr(PV2A)}, 4, {vr(PT)}")
    a(f"v_lshrrev_b32 {vr(PT+1)}, 2, {vr(L)}")
    a(f"s_movk_i32 {sr(S_T3)}, {2*2304}")
    a(f"v_mul_lo_u32 {vr(PT+1)}, {vr(PT+1)}, {sr(S_T3)}")
    a(f"v_add_u32 {vr(PV2A)}, {vr(PV2A)}, {vr(PT+1)}")
    a(f"v_add_u32 {vr(PV2B)}, 2304, {vr(PV2A)}")
    a(f"v_cmp_gt_u32 vcc, 4, {vr(L)}")
    a("s_nop 1")
    a(f"v_cndmask_b32 {vr(PV2A)}, {vr(PV2A)}, {vr(PT+2)}, vcc")
    a(f"v_add_u32 {vr(PT)}, {sr(S_T2)}, {vr(L)}")
    a(f"v_lshlrev_b32 {vr(PLA)}, 4, {vr(PT)}")
    a(f"v_add_u32 {vr(PLA)}, {OUTP}, {vr(PLA)}")
    a(f"v_lshlrev_b32 {vr(POUT)}, 3, {vr(PT)}")
    a(f"v_cmp_gt_u32 vcc, 36, {vr(L)}")
    a("s_nop 1")
    a(f"v_cndmask_b32 {vr(POUT)}, {vr(PT+2)}, {vr(POUT)}, vcc")
    a(f"s_mul_i32 {sr(S_T0)}, {sr(S_B)}, 1152")
    srd(a, S_SRD3, S_X, S_T0, 1152)
    a(f"buffer_load_dwordx2 {vr(PXB,2)}, {vr(POUT)}, {sr(S_SRD3,4)}, 0 offen")
    srd(a, S_SRD3, S_B2, None, 1152)
    a(f"buffer_load_dwordx2 {vr(PXB+2,2)}, {vr(POUT)}, {sr(S_SRD3,4)}, 0 offen")

def gen_poll_tail(a, cfg):
    V_LANE = 0
    a.label("L_tail")
    a("s_barrier")
    stamp(a, cfg, 4)
    a(f"s_cmp_eq_u32 {sr(S_H)}, {cfg.RED_H}")
    a("s_cbranch_scc1 L_done")
    a(f"s_cmp_ge_u32 {sr(S_WAVE)}, 3")
    a("s_cbranch_scc1 L_done")
    a(f"s_lshl_b32 {sr(S_T0)}, {sr(S_WAVE)}, 10")
    a(f"v_lshl_add_u32 v2, {vr(V_LANE)}, 4, {sr(S_T0)}")
    a(f"v_add_u32 v3, {OUTP}, v2")
    for sw in range(4):
        a(f"ds_read_b128 {vr(8+4*sw,4)}, v3 offset:{sw*2560}")
    a(f"s_mul_i32 {sr(S_T0)}, {sr(S_WG)}, 2304")
    srd(a, S_SRD3, S_WS, S_T0, 2304)
    a("s_waitcnt lgkmcnt(0)")
    for e in range(4):
        a(f"v_add_f32 {vr(8+e)}, {vr(8+e)}, {vr(12+e)}")
        a(f"v_add_f32 {vr(16+e)}, {vr(16+e)}, {vr(20+e)}")
    for e in range(4):
        a(f"v_add_f32 {vr(8+e)}, {vr(8+e)}, {vr(16+e)}")
    a(f"buffer_store_dwordx4 v[8:11], v2, {sr(S_SRD3,4)}, 0 offen sc1")
    a("s_branch L_done")

    def pload(s):
        if s < 16:
            a(f"s_mov_b32 {sr(S_T0)}, {s*2304}")
            a(f"buffer_load_dwordx4 {vr(PR1+4*s,4)}, {vr(PVO0 if s == 0 else PVO)}, {sr(S_SRD2,4)}, {sr(S_T0)} offen sc1")
        else:
            a(f"buffer_load_dwordx4 {vr(PR2+4*(s-16),4)}, {vr(PV2A if s == 16 else PV2B)}, {sr(S_SRD2,4)}, 0 offen sc1")
    def reg(s): return PR1+4*s if s < 16 else PR2+4*(s-16)
    a.label("L_reducer")
    for s_ in range(18): pload(s_)
    a("s_barrier")
    stamp(a, cfg, 4)
    for sw in range(4):
        a(f"ds_read_b128 {vr(POWN+4*sw,4)}, {vr(PLA)} offset:{sw*2560}")
    a("s_waitcnt lgkmcnt(0)")
    for e in range(4):
        a(f"v_add_f32 {vr(POWN+e)}, {vr(POWN+e)}, {vr(POWN+4+e)}")
        a(f"v_add_f32 {vr(POWN+8+e)}, {vr(POWN+8+e)}, {vr(POWN+12+e)}")
    for e in range(4):
        a(f"v_add_f32 {vr(POWN+e)}, {vr(POWN+e)}, {vr(POWN+8+e)}")
    a(f"s_mov_b32 {sr(S_T1)}, 0xffff0000")
    for src in (PXB, PXB+2):
        a(f"v_lshlrev_b32 {vr(PT)}, 16, {vr(src)}")
        a(f"v_and_b32 {vr(PT+1)}, {sr(S_T1)}, {vr(src)}")
        a(f"v_lshlrev_b32 {vr(PT+2)}, 16, {vr(src+1)}")
        a(f"v_and_b32 {vr(PT+3)}, {sr(S_T1)}, {vr(src+1)}")
        for e in range(4):
            a(f"v_add_f32 {vr(POWN+e)}, {vr(POWN+e)}, {vr(PT+e)}")
    a(f"s_mul_i32 {sr(S_T0)}, {sr(S_B)}, 1152")
    srd(a, S_SRD3, S_OUT, S_T0, 1152)
    a(f"s_mov_b32 {sr(S_CNT)}, 200000")
    TS = PT + 4
    TQ = TS + 32
    a.label("L_poll")
    a(f"s_sub_u32 {sr(S_CNT)}, {sr(S_CNT)}, 1")
    a("s_cbranch_scc1 L_pollok")
    if cfg.POLLDBG:
        a(f"s_mov_b32 {sr(S_STAMP+2)}, {sr(S_STAMP+8)}")
        a(f"s_mov_b32 {sr(S_STAMP+3)}, {sr(S_STAMP+9)}")
        a(f"s_memrealtime {sr(S_STAMP+4,2)}")
    a("s_waitcnt vmcnt(0)")
    if cfg.POLLDBG:
        a(f"s_memrealtime {sr(S_STAMP+8,2)}")
        a("s_waitcnt lgkmcnt(0)")
    for k in range(0, 32, 2):
        a(f"v_pk_add_f32 {vr(TS+k,2)}, {vr(PR1+k,2)}, {vr(PR1+k+32,2)}")
    for k in (0, 2):
        a(f"v_pk_add_f32 {vr(TQ+k,2)}, {vr(PR2+k,2)}, {vr(PR2+4+k,2)}")
    for step in (16, 8, 4):
        for k in range(0, step, 2):
            a(f"v_pk_add_f32 {vr(TS+k,2)}, {vr(TS+k,2)}, {vr(TS+k+step,2)}")
    a(f"v_pk_add_f32 {vr(TS+4,2)}, {vr(TS,2)}, {vr(TS+2,2)}")
    a(f"v_pk_add_f32 {vr(TS+6,2)}, {vr(TQ,2)}, {vr(TQ+2,2)}")
    a(f"v_pk_add_f32 {vr(TS+4,2)}, {vr(TS+4,2)}, {vr(TS+6,2)}")
    a(f"v_cmp_u_f32 vcc, {vr(TS+4)}, {vr(TS+5)}")
    a("s_cbranch_vccz L_pollok")
    MASK = [16,18,20,22,24,26,28,30, 84,86,88,90,92,94,96,98,100, 4]
    tt = [PT, PT+1, PT+2, PT+3]
    for s_ in range(18):
        r = reg(s_); t0 = tt[s_ % 4]
        a(f"v_max3_u32 {vr(t0)}, {vr(r)}, {vr(r+1)}, {vr(r+2)}")
        a(f"v_max_u32 {vr(t0)}, {vr(t0)}, {vr(r+3)}")
        a(f"v_cmp_eq_u32 {sr(MASK[s_],2)}, -1, {vr(t0)}")
    a(f"s_mov_b32 {sr(S_T2)}, 0")
    a("s_nop 2")
    for s_ in range(18):
        a(f"s_cmp_lg_u64 {sr(MASK[s_],2)}, 0")
        a(f"s_cbranch_scc1 L_rl{s_}")
        a.label(f"L_rb{s_}")
    a(f"s_cmp_lg_u32 {sr(S_T2)}, 0")
    a("s_cbranch_scc1 L_poll")
    a("s_branch L_pollok")
    for s_ in range(18):
        a.label(f"L_rl{s_}")
        a(f"s_mov_b64 exec, {sr(MASK[s_],2)}")
        if s_ < 16:
            a(f"s_mov_b32 {sr(S_T0)}, {s_*2304}")
            a(f"buffer_load_dwordx4 {vr(PR1+4*s_,4)}, {vr(PVO0 if s_ == 0 else PVO)}, {sr(S_SRD2,4)}, {sr(S_T0)} offen sc1")
        else:
            a(f"buffer_load_dwordx4 {vr(PR2+4*(s_-16),4)}, {vr(PV2A if s_ == 16 else PV2B)}, {sr(S_SRD2,4)}, 0 offen sc1")
        a("s_mov_b64 exec, -1")
        a(f"s_mov_b32 {sr(S_T2)}, 1")
        a(f"s_branch L_rb{s_}")
    a.label("L_pollok")
    stamp(a, cfg, 5)
    if cfg.POLLDBG:
        a(f"s_sub_u32 {sr(S_STAMP+6)}, 200000, {sr(S_CNT)}")
        a(f"s_mov_b32 {sr(S_STAMP+7)}, 0")
    for e in range(4):
        a(f"v_mov_b32 {vr(PR1+e)}, {vr(TS+e)}")
        a(f"v_mov_b32 {vr(PR2+e)}, {vr(TQ+e)}")
    for e in range(4):
        a(f"v_mov_b32 {vr(PR1+8+e)}, {vr(PR1+e)}")
    a("s_nop 1")
    for e in range(4):
        a(f"v_permlane32_swap_b32 {vr(PR1+e)}, {vr(PR1+8+e)}")
    for r_ in (4, 8):
        for e in range(4):
            a(f"v_add_f32_dpp {vr(PR2+e)}, {vr(PR2+e)}, {vr(PR2+e)} row_ror:{r_} row_mask:0xf bank_mask:0xf")
    for e in range(4):
        a(f"v_add_f32 {vr(PR1+e)}, {vr(PR1+e)}, {vr(PR1+8+e)}")
    for e in range(4):
        a(f"v_mov_b32 {vr(PR2+4+e)}, {vr(PR2+e)}")
    a("s_nop 1")
    for e in range(4):
        a(f"v_permlane16_swap_b32 {vr(PR2+e)}, {vr(PR2+4+e)}")
    a("s_nop 1")
    for e in range(4):
        a(f"v_add_f32 {vr(PR2+e)}, {vr(PR2+e)}, {vr(PR2+4+e)}")
    for e in range(4):
        a(f"v_mov_b32 {vr(PR2+4+e)}, {vr(PR2+e)}")
    a("s_nop 1")
    for e in range(4):
        a(f"v_permlane32_swap_b32 {vr(PR2+e)}, {vr(PR2+4+e)}")
    a("s_nop 1")
    for e in range(4):
        a(f"v_add_f32 {vr(PR2+e)}, {vr(PR2+e)}, {vr(PR2+4+e)}")
    a(f"v_cmp_gt_u32 vcc, 32, {vr(V_LANE)}")
    a(f"s_mov_b32 {sr(S_T1)}, 0xffff0000")
    a("s_nop 0")
    for e in range(4):
        a(f"v_cndmask_b32 {vr(PR1+e)}, {vr(PR2+e)}, {vr(PR1+e)}, vcc")
    for e in range(4):
        a(f"v_add_f32 {vr(PR1+e)}, {vr(PR1+e)}, {vr(POWN+e)}")
    a(f"v_cvt_pk_bf16_f32 {vr(PR1)}, {vr(PR1)}, {vr(PR1+1)}")
    a(f"v_cvt_pk_bf16_f32 {vr(PR1+1)}, {vr(PR1+2)}, {vr(PR1+3)}")
    a(f"buffer_store_dwordx2 {vr(PR1,2)}, {vr(POUT)}, {sr(S_SRD3,4)}, 0 offen")

def gen_tail(a, cfg):
    V_LANE=0
    if cfg.POLL:
        gen_poll_tail(a, cfg)
    else:
        gen_count_tail(a, cfg)
    gen_end(a, cfg)

def gen_count_tail(a, cfg):
    V_LANE=0
    a.label("L_tail")
    a("s_barrier")
    stamp(a, cfg, 4)
    a(f"s_cmp_lg_u32 {sr(S_WAVE)}, 0")
    a("s_cbranch_scc1 L_wait_flag")
    a(f"v_lshlrev_b32 v2, 4, {vr(V_LANE)}")
    a(f"v_add_u32 v3, {OUTP}, v2")
    for k in range(3):
        for sw in range(4):
            a(f"ds_read_b128 {vr(8+16*k+4*sw,4)}, v3 offset:{sw*2560 + k*1024}")
    a(f"s_mul_i32 {sr(S_T0)}, {sr(S_WG)}, 2304")
    srd(a, S_SRD2, S_WS, S_T0, 2304)
    for k in range(3):
        a(f"s_waitcnt lgkmcnt({8-4*k})")
        b = 8+16*k
        for e in range(4):
            a(f"v_add_f32 {vr(b+e)}, {vr(b+e)}, {vr(b+4+e)}")
            a(f"v_add_f32 {vr(b+8+e)}, {vr(b+8+e)}, {vr(b+12+e)}")
        for e in range(4):
            a(f"v_add_f32 {vr(b+e)}, {vr(b+e)}, {vr(b+8+e)}")
        a(f"buffer_store_dwordx4 {vr(b,4)}, v2, {sr(S_SRD2,4)}, 0 offen offset:{1024*k} sc1")
    a("s_waitcnt vmcnt(0)")
    a(f"s_lshl_b32 {sr(S_T0)}, {sr(S_B)}, 5")
    a(f"v_mov_b32 v4, {sr(S_T0)}")
    a("v_mov_b32 v5, 1")
    a("s_mov_b64 exec, 1")
    a(f"global_atomic_add v6, v4, v5, {sr(S_DBG,2)} sc0")
    a("s_waitcnt vmcnt(0)")
    a(f"v_mov_b32 v7, {FLAG}")
    a("ds_write_b32 v7, v6")
    a("s_mov_b64 exec, -1")
    a("s_waitcnt lgkmcnt(0)")
    a.label("L_wait_flag")
    a("s_barrier")
    stamp(a, cfg, 5)
    a(f"v_mov_b32 v7, {FLAG}")
    a("ds_read_b32 v6, v7")
    a("s_waitcnt lgkmcnt(0)")
    a("s_nop 0")
    a(f"v_readfirstlane_b32 {sr(S_T0)}, v6")
    a("s_nop 3")
    a(f"s_cmp_lg_u32 {sr(S_T0)}, 31")
    a("s_cbranch_scc1 L_done")
    a(f"s_mul_i32 {sr(S_T0)}, {sr(S_B)}, {32*2304}")
    srd(a, S_SRD2, S_WS, S_T0, 32*2304)
    a(f"v_lshlrev_b32 v2, 4, {vr(V_LANE)}")
    a(f"v_add_u32 v3, 2048, v2")
    a("v_mov_b32 v4, 0x7f000000")
    a(f"v_cmp_gt_u32 vcc, 16, {vr(V_LANE)}")
    a("s_nop 1")
    a("v_cndmask_b32 v3, v4, v3, vcc")
    a(f"s_mul_i32 {sr(S_T1)}, {sr(S_WAVE)}, {4*2304}")
    for u in range(4):
        a(f"buffer_load_dwordx4 {vr(8+12*u,4)}, v2, {sr(S_SRD2,4)}, {sr(S_T1)} offen sc1")
        a(f"buffer_load_dwordx4 {vr(12+12*u,4)}, v2, {sr(S_SRD2,4)}, {sr(S_T1)} offen offset:1024 sc1")
        a(f"buffer_load_dwordx4 {vr(16+12*u,4)}, v3, {sr(S_SRD2,4)}, {sr(S_T1)} offen sc1")
        if u < 3: a(f"s_add_u32 {sr(S_T1)}, {sr(S_T1)}, 2304")
    a(f"s_mul_i32 {sr(S_T0)}, {sr(S_B)}, 1152")
    srd(a, S_SRD3, S_X, S_T0, 1152)
    srd(a, S_SRDK, S_B2, None, 1152)
    a(f"s_lshl_b32 {sr(S_T2)}, {sr(S_WAVE)}, 6")
    a(f"v_add_u32 v5, {sr(S_T2)}, {vr(V_LANE)}")
    a("v_lshlrev_b32 v6, 3, v5")
    a(f"buffer_load_dwordx2 v[60:61], v6, {sr(S_SRD3,4)}, 0 offen")
    a(f"buffer_load_dwordx2 v[62:63], v6, {sr(S_SRDK,4)}, 0 offen")
    a("s_waitcnt vmcnt(2)")
    for e in range(12):
        a(f"v_add_f32 {vr(8+e)}, {vr(8+e)}, {vr(20+e)}")
        a(f"v_add_f32 {vr(32+e)}, {vr(32+e)}, {vr(44+e)}")
    for e in range(12):
        a(f"v_add_f32 {vr(8+e)}, {vr(8+e)}, {vr(32+e)}")
    a(f"s_mul_i32 {sr(S_T0)}, {sr(S_WAVE)}, 3072")
    a(f"v_add_u32 v7, {sr(S_T0)}, v2")
    for k in range(3):
        a(f"ds_write_b128 v7, {vr(8+4*k,4)} offset:{RED + 1024*k}")
    a("s_waitcnt lgkmcnt(0)")
    a("s_barrier")
    a(f"s_cmp_ge_u32 {sr(S_WAVE)}, 3")
    a("s_cbranch_scc1 L_done")
    a("v_lshlrev_b32 v7, 4, v5")
    for w in range(8):
        a(f"ds_read_b128 {vr(8+4*w,4)}, v7 offset:{RED + 3072*w}")
    a("s_waitcnt lgkmcnt(0)")
    for e in range(4):
        a(f"v_add_f32 {vr(8+e)}, {vr(8+e)}, {vr(12+e)}")
        a(f"v_add_f32 {vr(16+e)}, {vr(16+e)}, {vr(20+e)}")
        a(f"v_add_f32 {vr(24+e)}, {vr(24+e)}, {vr(28+e)}")
        a(f"v_add_f32 {vr(32+e)}, {vr(32+e)}, {vr(36+e)}")
    for e in range(4):
        a(f"v_add_f32 {vr(8+e)}, {vr(8+e)}, {vr(16+e)}")
        a(f"v_add_f32 {vr(24+e)}, {vr(24+e)}, {vr(32+e)}")
    for e in range(4):
        a(f"v_add_f32 {vr(8+e)}, {vr(8+e)}, {vr(24+e)}")
    a("s_waitcnt vmcnt(0)")
    a(f"s_mov_b32 {sr(S_T1)}, 0xffff0000")
    for (src) in (60, 62):
        a(f"v_lshlrev_b32 v40, 16, {vr(src)}")
        a(f"v_and_b32 v41, {sr(S_T1)}, {vr(src)}")
        a(f"v_lshlrev_b32 v42, 16, {vr(src+1)}")
        a(f"v_and_b32 v43, {sr(S_T1)}, {vr(src+1)}")
        for e in range(4):
            a(f"v_add_f32 {vr(8+e)}, {vr(8+e)}, {vr(40+e)}")
    a("v_cvt_pk_bf16_f32 v8, v8, v9")
    a("v_cvt_pk_bf16_f32 v9, v10, v11")
    a(f"s_mul_i32 {sr(S_T0)}, {sr(S_B)}, 1152")
    srd(a, S_SRD2, S_OUT, S_T0, 1152)
    a(f"buffer_store_dwordx2 v[8:9], v6, {sr(S_SRD2,4)}, 0 offen")

def gen_end(a, cfg):
    a.label("L_done")
    if cfg.SPINTO or cfg.SPINX >= 0:
        a(f"s_cmp_lg_u32 {sr(S_WAVE)}, 0")
        a("s_cbranch_scc1 L_exit")
        a(f"s_memrealtime {sr(S_STAMP+12,2)}")
        a("s_waitcnt lgkmcnt(0)")
        if cfg.SPINTO:
            a(f"s_add_u32 {sr(S_T2)}, {sr(S_STAMP)}, {cfg.SPINTO}")
        else:
            a(f"s_sub_u32 {sr(S_T2)}, {sr(S_STAMP+2*cfg.SPINX)}, {sr(S_STAMP)}")
            a(f"s_add_u32 {sr(S_T2)}, {sr(S_T2)}, {sr(S_STAMP+12)}")
        a.label("L_spin")
        a(f"s_memrealtime {sr(S_STAMP+12,2)}")
        a("s_waitcnt lgkmcnt(0)")
        a(f"s_sub_u32 {sr(S_T3)}, {sr(S_STAMP+12)}, {sr(S_T2)}")
        a(f"s_cmp_lt_i32 {sr(S_T3)}, 0")
        a("s_cbranch_scc1 L_spin")
    if cfg.DBGT:
        a(f"s_memrealtime {sr(S_STAMP+12,2)}")
        a("s_waitcnt lgkmcnt(0)")
        a(f"s_cmp_lg_u32 {sr(S_WAVE)}, 0")
        a("s_cbranch_scc1 L_exit")
        a("s_mov_b64 exec, 1")
        a("v_mov_b32 v2, 0")
        for (w, idx, inv) in [(1,0,True),(2,2,False),(3,3,False),(4,6,False),(5,3,True),(6,6,True),(7,2,True)]:
            a(f"v_mov_b32 v4, {sr(S_STAMP+2*idx)}")
            if inv: a("v_not_b32 v4, v4")
            a(f"global_atomic_umax v2, v4, {sr(S_DBG,2)} offset:{4*w}")
    if cfg.STAMPS:
        stamp(a, cfg, 6)
        a("s_waitcnt lgkmcnt(0)")
        a(f"s_lshl_b32 {sr(S_T0)}, {sr(S_WG)}, 3")
        a(f"s_add_u32 {sr(S_T0)}, {sr(S_T0)}, {sr(S_WAVE)}")
        a(f"s_lshl_b32 {sr(S_T0)}, {sr(S_T0)}, 6")
        a(f"s_add_u32 {sr(S_T0)}, {sr(S_T0)}, 0x100000")
        a(f"v_mov_b32 v2, {sr(S_T0)}")
        a("s_mov_b64 exec, 1")
        for k in range(7):
            a(f"v_mov_b32 v4, {sr(S_STAMP+2*k)}")
            a(f"v_mov_b32 v5, {sr(S_STAMP+2*k+1)}")
            a(f"global_store_dwordx2 v2, v[4:5], {sr(S_WS,2)} offset:{8*k}")
    a.label("L_exit")
    a("s_endpgm")

def generate(cfg):
    a = Asm()
    stamp(a, cfg, 0)
    a(f"s_cmp_ge_u32 {sr(S_WG)}, 256")
    a("s_cbranch_scc1 L_exit")
    a(f"s_load_dwordx4 {sr(S_K,4)}, s[0:1], 8")
    a(f"s_load_dwordx2 {sr(S_X,2)}, s[0:1], 0")
    a(f"s_load_dwordx4 {sr(S_WQ,4)}, s[0:1], 24")
    a(f"s_load_dwordx4 {sr(S_W1,4)}, s[0:1], 48")
    a(f"s_load_dwordx4 {sr(S_W2,4)}, s[0:1], 64")
    a(f"s_load_dwordx4 {sr(S_OUT,4)}, s[0:1], 80")
    a(f"s_load_dwordx2 {sr(S_WS,2)}, s[0:1], 96")
    a("v_lshrrev_b32 v1, 6, v0")
    a(f"s_lshr_b32 {sr(S_B)}, {sr(S_WG)}, 5")
    a(f"v_readfirstlane_b32 {sr(S_WAVE)}, v1")
    if cfg.HMAP:
        a(f"s_and_b32 {sr(S_H)}, {sr(S_WG)}, 7")
        a(f"s_lshl_b32 {sr(S_H)}, {sr(S_H)}, 2")
        a(f"s_bfe_u32 {sr(S_T0)}, {sr(S_WG)}, 0x20003")
        a(f"s_add_u32 {sr(S_H)}, {sr(S_H)}, {sr(S_T0)}")
    else:
        a(f"s_and_b32 {sr(S_H)}, {sr(S_WG)}, 31")
    a("v_and_b32 v0, 63, v0")
    if cfg.HMAP:
        a(f"s_lshl_b32 {sr(S_WG)}, {sr(S_B)}, 5")
        a(f"s_add_u32 {sr(S_WG)}, {sr(S_WG)}, {sr(S_H)}")
    a("s_nop 1")
    a(f"s_cmp_ge_u32 {sr(S_WAVE)}, 4")
    a("s_waitcnt lgkmcnt(0)")
    a("s_cbranch_scc1 L_side")
    (gen_stream_sr if cfg.SR else gen_stream)(a, cfg)
    gen_side(a, cfg)
    gen_tail(a, cfg)
    body = a.text()
    hdr = f"""; Fused decode block: LN -> (MHA over KV cache -> out proj) + (LN -> MLP) + residual.
; Kernarg layout (104 bytes): A_x, K, V, wq, wo, B_x, w1, b1, w2, b2, out, debug, ws
; @launch grid=(256,1,1) block=(512,1,1) lds={LDS_BYTES}
.amdgcn_target "amdgcn-amd-amdhsa--gfx950"
.text
.globl {KNAME}
.p2align 8
.type {KNAME},@function
{KNAME}:
"""
    ftr = f"""
.section .rodata,"a"
.p2align 6
.amdhsa_kernel {KNAME}
  .amdhsa_next_free_vgpr 256
  .amdhsa_next_free_sgpr 102
  .amdhsa_accum_offset 256
  .amdhsa_group_segment_fixed_size 0
  .amdhsa_kernarg_size 104
  .amdhsa_user_sgpr_count 2
  .amdhsa_user_sgpr_kernarg_segment_ptr 1
  .amdhsa_system_sgpr_workgroup_id_x 1
  .amdhsa_float_denorm_mode_32 3
.end_amdhsa_kernel
"""
    return hdr + body + ftr

if __name__ == "__main__":
    cfg = Cfg()
    out = sys.argv[1]
    for kv in sys.argv[2:]:
        k, v = kv.split("=")
        cur = getattr(cfg, k)
        if isinstance(cur, bool): v = v in ("1","True","true")
        elif isinstance(cur, int): v = int(v)
        setattr(cfg, k, v)
    open(out, "w").write(generate(cfg))
    print("wrote", out, "LDS", LDS_BYTES)
```

```python
import sys, math

KNAME = "parallel_sum__mha_block_cached__mixer_channel_mlp__decode_kernel"

class Cfg:
    N = 5
    RUNAHEAD = 56
    PROUNDS = 4
    RSCORE = 1
    RAMP = ''
    MMAP = 1
    POLLDBG = False
    D2 = 0
    D3 = 3
    SR = 1
    DQ = 4
    ROT2 = 0
    HMAP = 0
    STARTSIG = 'atomic'
    CTLSTOP = 1
    VERS = '5,7'
    WPOL = ''
    CTL = ''
    NT = 7
    KT = 1
    POLL = True
    RED_H = 0
    K0 = 1
    B2_ITER = 3
    WFLAGS = ""
    NOSIDE = False
    NOCONS = False
    ITSTAMP = False
    DEPTH = 2
    ROT = True
    DBGT = False
    SPINTO = 0
    SPINX = -1
    PROSTAMP = False
    KFLAGS = "nt"
    VFLAGS = "nt"
    STAMPS = False
    PRIO = 2
    perm = 0

RING = 0
MISC = 131072
QPART = MISC
QBF   = QPART + 2048
HPART = QBF + 1024
OPART = HPART + 4096
ML    = OPART + 2048
OUTP  = ML + 64
XPRIV = OUTP
FLAG  = OUTP + 10240
LDS_END = FLAG + 64
RED   = 0
LDS_BYTES = (LDS_END + 1024 + 255)//256*256

C_SCALE = (128 ** -0.5) * math.log2(math.e)

import struct
def f2u(x): return struct.unpack("<I", struct.pack("<f", x))[0]
def hexf(x): return "0x%08x" % f2u(x)

class Asm:
    def __init__(self): self.L = []
    def __call__(self, s): self.L.append("  " + s)
    def label(self, s): self.L.append(s + ":")
    def c(self, s): self.L.append("  ; " + s)
    def text(self): return "\n".join(self.L)

def vr(b, n=1): return f"v{b}" if n == 1 else f"v[{b}:{b+n-1}]"
def sr(b, n=1): return f"s{b}" if n == 1 else f"s[{b}:{b+n-1}]"

S_WG=2; S_WAVE=3
S_K=4; S_V=6
S_SRDK=8; S_SRDV=12
S_X=16
S_WQ=20; S_WO=22
S_W1=24; S_B1=26
S_W2=28; S_B2=30
S_OUT=32; S_DBG=34
S_WS=36
S_B=38; S_H=39; S_M=63
S_T0=40; S_T1=41; S_T2=42; S_T3=43
S_OFFA=44; S_OFFB=45; S_RING=46; S_CNT=47
S_C=48
S_SRD2=52
S_SRD3=56
S_EX=60
S_SW=62
S_STAMP=64
S_MASKHI=80
S_TS=82

def allreduce_sum(a, v, t):
    for r in (8,4,2,1):
        a("s_nop 1")
        a(f"v_add_f32_dpp {vr(v)}, {vr(v)}, {vr(v)} row_ror:{r} row_mask:0xf bank_mask:0xf")
    a(f"v_mov_b32 {vr(t)}, {vr(v)}")
    a("s_nop 1")
    a(f"v_permlane16_swap_b32 {vr(v)}, {vr(t)}")
    a("s_nop 1")
    a(f"v_add_f32 {vr(v)}, {vr(v)}, {vr(t)}")
    a(f"v_mov_b32 {vr(t)}, {vr(v)}")
    a("s_nop 1")
    a(f"v_permlane32_swap_b32 {vr(v)}, {vr(t)}")
    a("s_nop 1")
    a(f"v_add_f32 {vr(v)}, {vr(v)}, {vr(t)}")

def groups_allreduce(a, v, t, op):
    a(f"v_mov_b32 {vr(t)}, {vr(v)}")
    a("s_nop 1")
    a(f"v_permlane16_swap_b32 {vr(v)}, {vr(t)}")
    a("s_nop 1")
    a(f"{op} {vr(v)}, {vr(v)}, {vr(t)}")
    a(f"v_mov_b32 {vr(t)}, {vr(v)}")
    a("s_nop 1")
    a(f"v_permlane32_swap_b32 {vr(v)}, {vr(t)}")
    a("s_nop 1")
    a(f"{op} {vr(v)}, {vr(v)}, {vr(t)}")

def make_selectors(a, lane, selE, selO, t0, t1, t2, t3):
    a(f"v_and_b32 {vr(t0)}, 15, {vr(lane)}")
    a(f"v_and_b32 {vr(t1)}, 1, {vr(t0)}")
    a(f"v_mov_b32 {vr(t2)}, 0x0c0c0100")
    a(f"v_mov_b32 {vr(t3)}, 0x01000c0c")
    a(f"v_cmp_eq_u32 vcc, 1, {vr(t1)}")
    a("s_nop 1")
    a(f"v_cndmask_b32 {vr(t2)}, {vr(t2)}, {vr(t3)}, vcc")
    a(f"v_mov_b32 {vr(t3)}, 0x0c0c0302")
    a(f"v_mov_b32 {vr(t1)}, 0x03020c0c")
    a(f"v_cndmask_b32 {vr(t3)}, {vr(t3)}, {vr(t1)}, vcc")
    a(f"v_lshrrev_b32 {vr(t0)}, 1, {vr(t0)}")
    a(f"v_mov_b32 {vr(t1)}, 0x0c0c0c0c")
    for k in range(4):
        a(f"v_cmp_eq_u32 vcc, {k}, {vr(t0)}")
        a("s_nop 1")
        a(f"v_cndmask_b32 {vr(selE+k)}, {vr(t1)}, {vr(t2)}, vcc")
        a(f"v_cndmask_b32 {vr(selO+k)}, {vr(t1)}, {vr(t3)}, vcc")

def diag(a, dst, P, parity, selE, selO):
    sel = selO if parity else selE
    for k in range(4):
        a(f"v_perm_b32 {vr(dst+k)}, {vr(P)}, {vr(P)}, {vr(sel+k)}")

def mfma(a, D, A, B, C):
    c = "0" if C is None else vr(C,4)
    a(f"v_mfma_f32_16x16x32_bf16 {vr(D,4)}, {vr(A,4)}, {vr(B,4)}, {c}")

def stamp(a, cfg, idx):
    if cfg.PROSTAMP and idx in (2,4,5): return
    if cfg.STAMPS or ((cfg.DBGT or cfg.SPINTO or cfg.SPINX >= 0) and idx in (0,1,2,3)):
        a(f"s_memrealtime {sr(S_STAMP+2*idx,2)}")

def srd(a, d, base, off_lo_sreg_or_none, size):
    if off_lo_sreg_or_none is None:
        a(f"s_mov_b32 {sr(d)}, {sr(base)}")
        a(f"s_mov_b32 {sr(d+1)}, {sr(base+1)}")
    else:
        a(f"s_add_u32 {sr(d)}, {sr(base)}, {sr(off_lo_sreg_or_none)}")
        a(f"s_addc_u32 {sr(d+1)}, {sr(base+1)}, 0")
    if isinstance(size, int):
        a(f"s_mov_b32 {sr(d+2)}, {size}")
    else:
        a(f"s_mov_b32 {sr(d+2)}, {size}")
    a(f"s_mov_b32 {sr(d+3)}, 0x20000")

def gen_stream(a, cfg):
    N = cfg.N
    LAG = 3 + N
    PR = cfg.PROUNDS
    assert PR in (0, 2, 4)
    V_LANE=0
    VK=2
    VV=6
    VVD=7
    VKR=8
    VVR=12
    VT=13
    VQ=16
    VA=32
    VS=48
    VP=56
    VAO=60
    VO=68
    VM=72; VL=73; VAL=74; VMC=75
    SELE=76; SELO=80
    VX=84
    VD=96

    a.label("L_stream")
    if cfg.PRIO: a(f"s_setprio {cfg.PRIO}")
    a(f"s_lshl_b32 {sr(S_T0)}, {sr(S_WG)}, 20")
    srd(a, S_SRDK, S_K, S_T0, 0x100000)
    srd(a, S_SRDV, S_V, S_T0, 0x100000)
    a(f"s_lshl_b32 {sr(S_OFFA)}, {sr(S_WAVE)}, 13")
    a(f"s_add_u32 {sr(S_OFFB)}, {sr(S_OFFA)}, 4096")
    a(f"s_lshl_b32 {sr(S_RING)}, {sr(S_WAVE)}, 15")

    NP = 16*PR
    def load_desc(i):
        if i < NP:
            r, p = divmod(i, 16)
            half = (p % 8)//4; j = p % 4
            if p < 8: return dict(kind='K', j=j, half=half, slot=2*r+half, last=False, req=None)
            return dict(kind='VD', j=j, half=half, dst=VD+32*r+16*half+4*j, last=(p == 15), req=None)
        ip = i - NP
        g = ip//4; j = ip % 4; pos = (ip % 16)//4
        slot = g % 8
        if ip < 32:
            req = None if slot >= 2*PR else 4*(slot//2) + (slot % 2)
        else:
            req = 4*PR + (ip-32)//4
        return dict(kind='K' if pos < 2 else 'V', j=j, half=pos % 2, slot=slot, last=(ip % 16 == 15), req=req)
    def unit_desc(u):
        if u < 4*PR:
            r, pos = divmod(u, 4)
            if pos < 2: return dict(pos=pos, slot=2*r+pos, need=16*r+4*pos+3, direct=None)
            return dict(pos=pos, slot=None, need=16*r+8+4*(pos-2)+3, direct=VD+32*r+16*(pos-2))
        g = u - 4*PR
        return dict(pos=g % 4, slot=g % 8, need=NP+4*g+3, direct=None)

    state = {"m0": None}
    win = {"n": N}
    def issue(i, wait=True):
        d = load_desc(i)
        so = S_OFFB if d['half'] else S_OFFA
        if d['kind'] != 'VD' and state["m0"] != d['slot']:
            a(f"s_add_u32 m0, {sr(S_RING)}, {d['slot']*4096}")
            state["m0"] = d['slot']
            if not wait: a("s_nop 0")
        if wait: a(f"s_waitcnt vmcnt({win['n']-1})")
        j = d['j']
        if d['kind'] == 'K':
            a(f"buffer_load_dwordx4 {vr(VK+j)}, {sr(S_SRDK,4)}, {sr(so)} offen offset:{j*1024} {cfg.KFLAGS} lds")
        elif d['kind'] == 'V':
            a(f"buffer_load_dwordx4 {vr(VV)}, {sr(S_SRDV,4)}, {sr(so)} offen offset:{j*1024} {cfg.VFLAGS} lds")
        else:
            a(f"buffer_load_dwordx4 {vr(d['dst'],4)}, {vr(VVD)}, {sr(S_SRDV,4)}, {sr(so)} offen offset:{j*256} {cfg.VFLAGS}")
        if d['last']:
            a(f"s_add_u32 {sr(S_OFFA)}, {sr(S_OFFA)}, 32768")
            a(f"s_add_u32 {sr(S_OFFB)}, {sr(S_OFFB)}, 32768")

    def piece(u, p):
        if cfg.NOCONS: return
        d = unit_desc(u)
        pos = d['pos']
        if pos < 2:
            S = VS + 4*pos
            slot = d['slot']*4096
            if p == 0:
                for t in range(4):
                    a(f"ds_read_b128 {vr(VA+4*t,4)}, {vr(VKR+t)} offset:{slot}")
            elif p == 1:
                for t in range(4):
                    a(f"s_waitcnt lgkmcnt({3-t})")
                    mfma(a, S, VA+4*t, VQ+4*t, None if t == 0 else S)
            elif pos == 1 and p == 2:
                softmax_a()
            elif pos == 1 and p == 3:
                softmax_b()
        else:
            half = pos - 2
            if d['direct'] is None:
                if p == 0:
                    for r in range(4):
                        a(f"ds_read_b128 {vr(VA+4*r,4)}, {vr(VVR)} offset:{d['slot']*4096 + r*256}")
                r = p
                ao = VAO + 4*(r&1)
                diag(a, ao, VP + 2*half + (r>>1), r&1, SELE, SELO)
                a(f"s_waitcnt lgkmcnt({3-r})")
                a("s_nop 0")
                mfma(a, VO, ao, VA+4*r, VO)
            else:
                r = p
                ao = VAO + 4*(r&1)
                diag(a, ao, VP + 2*half + (r>>1), r&1, SELE, SELO)
                a("s_nop 1")
                mfma(a, VO, ao, d['direct']+4*r, VO)

    def softmax_a():
        a(f"v_max3_f32 {vr(VX)}, {vr(VS)}, {vr(VS+1)}, {vr(VS+2)}")
        a(f"v_max3_f32 {vr(VX)}, {vr(VX)}, {vr(VS+3)}, {vr(VM)}")
        a("s_nop 5")
        a(f"v_max3_f32 {vr(VX+1)}, {vr(VS+4)}, {vr(VS+5)}, {vr(VS+6)}")
        a(f"v_max3_f32 {vr(VX)}, {vr(VX)}, {vr(VS+7)}, {vr(VX+1)}")
        groups_allreduce(a, VX, VX+1, "v_max_f32")
        a(f"v_sub_f32 {vr(VAL)}, {vr(VM)}, {vr(VX)}")
        a(f"v_mul_f32 {vr(VMC)}, {sr(S_C)}, {vr(VX)}")
        a(f"v_mul_f32 {vr(VAL)}, {sr(S_C)}, {vr(VAL)}")
        a(f"v_mov_b32 {vr(VM)}, {vr(VX)}")
        a(f"v_exp_f32 {vr(VAL)}, {vr(VAL)}")
        for r in range(8):
            a(f"v_fma_f32 {vr(VS+r)}, {vr(VS+r)}, {sr(S_C)}, -{vr(VMC)}")
    def softmax_b():
        for r in range(8):
            a(f"v_exp_f32 {vr(VS+r)}, {vr(VS+r)}")
        for r in range(4):
            a(f"v_mul_f32 {vr(VO+r)}, {vr(VO+r)}, {vr(VAL)}")
        a(f"v_mul_f32 {vr(VL)}, {vr(VL)}, {vr(VAL)}")
        a(f"v_add_f32 {vr(VX)}, {vr(VS)}, {vr(VS+1)}")
        a(f"v_add_f32 {vr(VX+1)}, {vr(VS+2)}, {vr(VS+3)}")
        a(f"v_add_f32 {vr(VX+2)}, {vr(VS+4)}, {vr(VS+5)}")
        a(f"v_add_f32 {vr(VX+3)}, {vr(VS+6)}, {vr(VS+7)}")
        for r in range(4):
            a(f"v_cvt_pk_bf16_f32 {vr(VP+r)}, {vr(VS+2*r)}, {vr(VS+2*r+1)}")
        a(f"v_add_f32 {vr(VX)}, {vr(VX)}, {vr(VX+1)}")
        a(f"v_add_f32 {vr(VX+2)}, {vr(VX+2)}, {vr(VX+3)}")
        a(f"v_add_f32 {vr(VL)}, {vr(VL)}, {vr(VX)}")
        a(f"v_add_f32 {vr(VL)}, {vr(VL)}, {vr(VX+2)}")

    a(f"v_lshrrev_b32 {vr(VT)}, 4, {vr(V_LANE)}")
    a(f"v_and_b32 {vr(VT+1)}, 15, {vr(V_LANE)}")
    for j in range(4):
        a(f"v_add_u32 {vr(VK+j)}, {4*j}, {vr(VT)}")
        a(f"v_xor_b32 {vr(VK+j)}, {vr(VK+j)}, {vr(VT+1)}")
        a(f"v_lshlrev_b32 {vr(VK+j)}, 4, {vr(VK+j)}")
        a(f"v_lshl_add_u32 {vr(VK+j)}, {vr(VT)}, 8, {vr(VK+j)}")
    for i in range(N): issue(i, wait=False)
    a(f"v_lshlrev_b32 {vr(VV)}, 4, {vr(V_LANE)}")
    a(f"v_lshlrev_b32 {vr(VVD)}, 10, {vr(VT)}")
    a(f"v_lshl_add_u32 {vr(VVD)}, {vr(VT+1)}, 4, {vr(VVD)}")
    for t in range(4):
        a(f"v_add_u32 {vr(VKR+t)}, {4*t}, {vr(VT)}")
        a(f"v_xor_b32 {vr(VKR+t)}, {vr(VKR+t)}, {vr(VT+1)}")
        a(f"v_lshlrev_b32 {vr(VKR+t)}, 4, {vr(VKR+t)}")
        a(f"v_lshl_add_u32 {vr(VKR+t)}, {vr(VT+1)}, 8, {vr(VKR+t)}")
        a(f"v_add_u32 {vr(VKR+t)}, {sr(S_RING)}, {vr(VKR+t)}")
    a(f"v_add_u32 {vr(VVR)}, {sr(S_RING)}, {vr(VVD)}")
    make_selectors(a, V_LANE, SELE, SELO, VX, VX+1, VX+2, VX+3)
    a(f"v_mov_b32 {vr(VM)}, 0xff800000")
    a(f"v_mov_b32 {vr(VL)}, 0")
    for r in range(4): a(f"v_mov_b32 {vr(VO+r)}, 0")
    a(f"s_mov_b32 {sr(S_C)}, {hexf(C_SCALE)}")

    RA = cfg.RUNAHEAD
    for i in range(N, RA):
        assert load_desc(i)['req'] is None
        issue(i)
        if cfg.PROSTAMP and i == N: a(f"s_memrealtime {sr(S_STAMP+4,2)}")
        if cfg.PROSTAMP and i == 20: a(f"s_memrealtime {sr(S_STAMP+8,2)}")
        if cfg.PROSTAMP and i == 40: a(f"s_memrealtime {sr(S_STAMP+10,2)}")
    stamp(a, cfg, 1)
    a("s_barrier")
    stamp(a, cfg, 2)
    nxt = RA
    def try_issue(done_units):
        nonlocal nxt
        d = load_desc(nxt)
        if d['req'] is not None and d['req'] >= done_units: return False
        issue(nxt); nxt += 1
        return True
    a(f"v_lshlrev_b32 {vr(VX)}, 4, {vr(V_LANE)}")
    a(f"v_and_b32 {vr(VX)}, 0x1ff, {vr(VX)}")
    a(f"v_add_u32 {vr(VX)}, {QPART}, {vr(VX)}")
    for p in range(4):
        a(f"ds_read_b128 {vr(VA+4*p,4)}, {vr(VX)} offset:{p*512}")
    try_issue(0); try_issue(0)
    a("s_waitcnt lgkmcnt(0)")
    for e in range(4):
        a(f"v_add_f32 {vr(VA+e)}, {vr(VA+e)}, {vr(VA+4+e)}")
        a(f"v_add_f32 {vr(VA+8+e)}, {vr(VA+8+e)}, {vr(VA+12+e)}")
    for e in range(4):
        a(f"v_add_f32 {vr(VA+e)}, {vr(VA+e)}, {vr(VA+8+e)}")
    a(f"v_cvt_pk_bf16_f32 {vr(VA+4)}, {vr(VA)}, {vr(VA+1)}")
    a(f"v_cvt_pk_bf16_f32 {vr(VA+5)}, {vr(VA+2)}, {vr(VA+3)}")
    a(f"v_lshlrev_b32 {vr(VX+1)}, 3, {vr(V_LANE)}")
    a(f"v_and_b32 {vr(VX+1)}, 0xff, {vr(VX+1)}")
    a(f"s_lshl_b32 {sr(S_T0)}, {sr(S_WAVE)}, 8")
    a(f"s_add_u32 {sr(S_T0)}, {sr(S_T0)}, {QBF}")
    a(f"v_add_u32 {vr(VX+1)}, {sr(S_T0)}, {vr(VX+1)}")
    a(f"ds_write_b64 {vr(VX+1)}, {vr(VA+4,2)}")
    a(f"v_lshrrev_b32 {vr(VX+2)}, 4, {vr(V_LANE)}")
    a(f"v_lshlrev_b32 {vr(VX+2)}, 4, {vr(VX+2)}")
    a(f"v_add_u32 {vr(VX+2)}, {sr(S_T0)}, {vr(VX+2)}")
    a("s_waitcnt lgkmcnt(0)")
    for t in range(4):
        a(f"ds_read_b128 {vr(VQ+4*t,4)}, {vr(VX+2)} offset:{t*64}")
    try_issue(0)
    a("s_waitcnt lgkmcnt(0)")
    VERS = [int(x) for x in cfg.VERS.split(',')]
    NMAX = max(VERS + [N])
    U0 = 4*PR + 8*cfg.K0
    target = NP + 32*cfg.K0 + NMAX + 3
    u = 0
    while u < U0 or nxt < target:
        d = unit_desc(u) if u < U0 else None
        if d is not None and nxt - 1 - N >= d['need']:
            ahead = (nxt - 1 - N) - d['need']
            for p in range(4):
                piece(u, p)
                want = (ahead < 2) or (p in (1, 3))
                if want and nxt < target:
                    try_issue(u)
            u += 1
        else:
            if not (nxt < target and try_issue(u)):
                raise RuntimeError(f"schedule deadlock u={u} nxt={nxt}")
    assert nxt == target and u == U0, (nxt, target, u, U0)
    if cfg.POLL:
        poll_setup(a, cfg)
    niter = (128 - U0)//8
    assert (128 - U0) % 8 == 0
    S_POL = S_TS
    VPG = 224
    if cfg.WPOL:
        wp = [int(x) for x in cfg.WPOL.split(',')]
        a(f"s_mov_b32 {sr(S_POL)}, {wp[0]}")
        for w in range(1, 4):
            a(f"s_cmp_eq_u32 {sr(S_WAVE)}, {w}")
            a(f"s_cselect_b32 {sr(S_POL)}, {wp[w]}, {sr(S_POL)}")
    else:
        a(f"s_mov_b32 {sr(S_POL)}, {N}")
    if cfg.CTL:
        a(f"v_mov_b32 {vr(VPG)}, {FLAG+8}")
    a(f"s_mov_b32 {sr(S_CNT)}, 1")
    a.label("L_sloop")
    if cfg.KT:
        a(f"s_cmp_gt_u32 {sr(S_CNT)}, {niter - cfg.KT}")
        a(f"s_cselect_b32 {sr(S_POL)}, {cfg.NT}, {sr(S_POL)}")
        assert cfg.NT in VERS
    if cfg.CTL:
        a(f"v_mov_b32 {vr(VPG+1)}, {sr(S_CNT)}")
        a(f"s_cmp_lg_u32 {sr(S_WAVE)}, 0")
        a("s_cbranch_scc1 L_nopg")
        a(f"ds_write_b32 {vr(VPG)}, {vr(VPG+1)}")
        a.label("L_nopg")
    for vi, n in enumerate(VERS[:-1]):
        a(f"s_cmp_eq_u32 {sr(S_POL)}, {n}")
        a(f"s_cbranch_scc1 L_ver{n}")
    order = [VERS[-1]] + VERS[:-1]
    for vi, n in enumerate(order):
        a.label(f"L_ver{n}")
        win["n"] = n
        state["m0"] = None
        for uu in range(32):
            issue(target + uu)
            if cfg.CTL and uu == 28:
                a(f"ds_read_b32 {vr(VPG+2)}, {vr(VPG)} offset:4")
            piece(U0 + uu//4, uu % 4)
        if vi < len(order) - 1:
            a("s_branch L_snext")
    a.label("L_snext")
    if cfg.CTL:
        a(f"v_readfirstlane_b32 {sr(S_POL)}, {vr(VPG+2)}")
    a(f"s_add_u32 {sr(S_CNT)}, {sr(S_CNT)}, 1")
    a(f"s_cmp_le_u32 {sr(S_CNT)}, {niter}")
    a("s_cbranch_scc1 L_sloop")
    stamp(a, cfg, 3)
    groups_allreduce(a, VL, VX, "v_add_f32")
    a(f"v_and_b32 {vr(VX)}, 15, {vr(V_LANE)}")
    a(f"v_lshrrev_b32 {vr(VX+1)}, 4, {vr(V_LANE)}")
    a(f"v_lshlrev_b32 {vr(VX)}, 5, {vr(VX)}")
    a(f"v_lshl_add_u32 {vr(VX)}, {vr(VX+1)}, 4, {vr(VX)}")
    a(f"s_lshl_b32 {sr(S_T0)}, {sr(S_WAVE)}, 9")
    a(f"s_add_u32 {sr(S_T0)}, {sr(S_T0)}, {OPART}")
    a(f"v_add_u32 {vr(VX)}, {sr(S_T0)}, {vr(VX)}")
    a(f"s_lshl_b32 {sr(S_T0)}, {sr(S_WAVE)}, 2")
    a(f"s_add_u32 {sr(S_T0)}, {sr(S_T0)}, {ML}")
    a(f"v_mov_b32 {vr(VX+2)}, {sr(S_T0)}")
    a("s_mov_b32 exec_hi, 0")
    a(f"ds_write_b128 {vr(VX)}, {vr(VO,4)}")
    a("s_mov_b64 exec, 1")
    a(f"ds_write_b32 {vr(VX+2)}, {vr(VM)}")
    a(f"ds_write_b32 {vr(VX+2)}, {vr(VL)} offset:16")
    a("s_mov_b64 exec, -1")
    a("s_waitcnt lgkmcnt(0)")
    a("s_barrier")
    if cfg.POLL:
        a(f"s_cmp_eq_u32 {sr(S_H)}, {cfg.RED_H}")
        a("s_cbranch_scc1 L_reducer")
    else:
        a("s_waitcnt vmcnt(0)")
    a("s_branch L_tail")

def gen_stream_sr(a, cfg):
    N = cfg.N
    LAG = 3 + N
    PR = cfg.PROUNDS
    assert PR in (0, 2, 4)
    V_LANE=0
    VK=2
    VV=6
    VVD=7
    VKR=8
    VVR=12
    VT=13
    VQ=16
    VA=32
    VS=48
    VP=80
    VAO=82
    VO=92
    VM=90; VL=91; VAL=96; VMC=97
    SELE=98; SELO=102
    VX=106
    VMX=14
    VD=112
    set_poll_regs(112)
    S_SOF = S_OFFB

    a.label("L_stream")
    if cfg.PRIO: a(f"s_setprio {cfg.PRIO}")
    a(f"s_lshl_b32 {sr(S_OFFA)}, {sr(S_WAVE)}, 13")
    a(f"s_lshl_b32 {sr(S_RING)}, {sr(S_WAVE)}, 15")
    a(f"v_lshrrev_b32 {vr(VT)}, 4, {vr(V_LANE)}")
    a(f"v_and_b32 {vr(VT+1)}, 15, {vr(V_LANE)}")
    for j in range(4):
        a(f"v_add_u32 {vr(VK+j)}, {4*j}, {vr(VT)}")
        a(f"v_xor_b32 {vr(VK+j)}, {vr(VK+j)}, {vr(VT+1)}")
        a(f"v_lshlrev_b32 {vr(VK+j)}, 4, {vr(VK+j)}")
        a(f"v_lshl_add_u32 {vr(VK+j)}, {vr(VT)}, 8, {vr(VK+j)}")
    a(f"s_lshl_b32 {sr(S_T0)}, {sr(S_WG)}, 20")
    a("s_waitcnt lgkmcnt(0)")
    srd(a, S_SRDK, S_K, S_T0, 0x100000)
    srd(a, S_SRDV, S_V, S_T0, 0x100000)

    NP = 64
    def load_desc(i):
        if i < NP:
            p = i % 32; r = p//8; half = (p % 8)//4; j = p % 4
            if i < 32: return dict(kind='K', j=j, r=r, half=half, slot=p//4, last=False, req=None)
            return dict(kind='VD', j=j, r=r, half=half, dst=VD+32*r+16*half+4*j, last=(i == 63), req=None)
        ip = i - NP
        g = ip//4; j = ip % 4; p = ip % 64
        pp = p % 32; r = pp//8; half = (pp % 8)//4
        req = g if ip < 32 else 16 + (ip-32)//4
        return dict(kind='K' if p < 32 else 'V', j=j, r=r, half=half, slot=g % 8, last=(p == 63), req=req)
    def unit_desc(u):
        if u < 16:
            if u < 8: return dict(k=True, r=u//2, half=u % 2, slot=u, need=4*u+3, direct=None)
            q = u - 8
            return dict(k=False, r=q//2, half=q % 2, slot=None, need=32+4*q+3, direct=VD+32*(q//2)+16*(q % 2))
        g = u - 16; q = g % 16
        qq = q % 8
        return dict(k=(q < 8), r=qq//2, half=qq % 2, slot=g % 8, need=NP+4*g+3, direct=None)

    state = {"m0": None, "sof": None}
    win = {"n": N}
    def issue(i, wait=True):
        d = load_desc(i)
        key = (d['r'], d['half'])
        if state["sof"] != key or d['j'] == 0:
            a(f"s_add_u32 {sr(S_SOF)}, {sr(S_OFFA)}, {d['r']*32768 + d['half']*4096}")
            state["sof"] = key
        if d['kind'] != 'VD' and state["m0"] != d['slot']:
            a(f"s_add_u32 m0, {sr(S_RING)}, {d['slot']*4096}")
            state["m0"] = d['slot']
            if not wait: a("s_nop 0")
        if wait: a(f"s_waitcnt vmcnt({win['n']-1})")
        j = d['j']
        if d['kind'] == 'K':
            a(f"buffer_load_dwordx4 {vr(VK+j)}, {sr(S_SRDK,4)}, {sr(S_SOF)} offen offset:{j*1024} {cfg.KFLAGS} lds")
        elif d['kind'] == 'V':
            a(f"buffer_load_dwordx4 {vr(VV)}, {sr(S_SRDV,4)}, {sr(S_SOF)} offen offset:{j*1024} {cfg.VFLAGS} lds")
        else:
            a(f"buffer_load_dwordx4 {vr(d['dst'],4)}, {vr(VVD)}, {sr(S_SRDV,4)}, {sr(S_SOF)} offen offset:{j*256} {cfg.VFLAGS}")
        if d['last']:
            a(f"s_add_u32 {sr(S_OFFA)}, {sr(S_OFFA)}, 131072")
            state["sof"] = None

    def piece(u, p):
        if cfg.NOCONS: return
        d = unit_desc(u)
        S = VS + 8*d['r'] + 4*d['half']
        if d['k']:
            slot = d['slot']*4096
            first = (d['r'] == 0 and d['half'] == 0)
            lastk = (d['r'] == 3 and d['half'] == 1)
            if p == 0:
                for t in range(4):
                    a(f"ds_read_b128 {vr(VA+4*t,4)}, {vr(VKR+t)} offset:{slot}")
            elif p == 1:
                for t in range(4):
                    a(f"s_waitcnt lgkmcnt({3-t})")
                    mfma(a, S, VA+4*t, VQ+4*t, None if t == 0 else S)
            elif p == 2:
                a("s_nop 7")
                if cfg.RSCORE:
                    for rnd in range(2):
                        a(f"v_cvt_pk_bf16_f32 {vr(VX)}, {vr(S)}, {vr(S+1)}")
                        a(f"v_cvt_pk_bf16_f32 {vr(VX+1)}, {vr(S+2)}, {vr(S+3)}")
                        a(f"v_lshlrev_b32 {vr(S)}, 16, {vr(VX)}")
                        a(f"v_and_b32 {vr(S+1)}, {sr(S_MASKHI)}, {vr(VX)}")
                        a(f"v_lshlrev_b32 {vr(S+2)}, 16, {vr(VX+1)}")
                        a(f"v_and_b32 {vr(S+3)}, {sr(S_MASKHI)}, {vr(VX+1)}")
                        if rnd == 0:
                            for e in range(4):
                                a(f"v_mul_f32 {vr(S+e)}, {sr(S_MASKHI+1)}, {vr(S+e)}")
                a(f"v_max3_f32 {vr(VMX)}, {vr(VM if first else VMX)}, {vr(S)}, {vr(S+1)}")
                a(f"v_max3_f32 {vr(VMX)}, {vr(VMX)}, {vr(S+2)}, {vr(S+3)}")
            elif p == 3 and lastk:
                groups_allreduce(a, VMX, VX, "v_max_f32")
                a(f"v_sub_f32 {vr(VAL)}, {vr(VM)}, {vr(VMX)}")
                a(f"v_mul_f32 {vr(VMC)}, {sr(S_C)}, {vr(VMX)}")
                a(f"v_mul_f32 {vr(VAL)}, {sr(S_C)}, {vr(VAL)}")
                a(f"v_mov_b32 {vr(VM)}, {vr(VMX)}")
                a(f"v_exp_f32 {vr(VAL)}, {vr(VAL)}")
                a("s_nop 0")
                for r in range(4):
                    a(f"v_mul_f32 {vr(VO+r)}, {vr(VO+r)}, {vr(VAL)}")
                a(f"v_mul_f32 {vr(VL)}, {vr(VL)}, {vr(VAL)}")
        else:
            direct = d['direct']
            if p == 0:
                if direct is None:
                    for r in range(4):
                        a(f"ds_read_b128 {vr(VA+4*r,4)}, {vr(VVR)} offset:{d['slot']*4096 + r*256}")
                for r in range(4):
                    a(f"v_fma_f32 {vr(S+r)}, {vr(S+r)}, {sr(S_C)}, -{vr(VMC)}")
                for r in range(4):
                    a(f"v_exp_f32 {vr(S+r)}, {vr(S+r)}")
                a("s_nop 0")
                a(f"v_cvt_pk_bf16_f32 {vr(VP)}, {vr(S)}, {vr(S+1)}")
                a(f"v_cvt_pk_bf16_f32 {vr(VP+1)}, {vr(S+2)}, {vr(S+3)}")
                a(f"v_add_f32 {vr(VX)}, {vr(S)}, {vr(S+1)}")
                a(f"v_add_f32 {vr(VX+1)}, {vr(S+2)}, {vr(S+3)}")
                a(f"v_add_f32 {vr(VL)}, {vr(VL)}, {vr(VX)}")
                a(f"v_add_f32 {vr(VL)}, {vr(VL)}, {vr(VX+1)}")
            r = p
            ao = VAO + 4*(r&1)
            diag(a, ao, VP + (r>>1), r&1, SELE, SELO)
            if direct is None:
                a(f"s_waitcnt lgkmcnt({3-r})")
                a("s_nop 0")
                mfma(a, VO, ao, VA+4*r, VO)
            else:
                a("s_nop 1")
                mfma(a, VO, ao, direct+4*r, VO)

    for i in range(N): issue(i, wait=False)
    a(f"v_lshlrev_b32 {vr(VV)}, 4, {vr(V_LANE)}")
    a(f"v_lshlrev_b32 {vr(VVD)}, 10, {vr(VT)}")
    a(f"v_lshl_add_u32 {vr(VVD)}, {vr(VT+1)}, 4, {vr(VVD)}")
    for t in range(4):
        a(f"v_add_u32 {vr(VKR+t)}, {4*t}, {vr(VT)}")
        a(f"v_xor_b32 {vr(VKR+t)}, {vr(VKR+t)}, {vr(VT+1)}")
        a(f"v_lshlrev_b32 {vr(VKR+t)}, 4, {vr(VKR+t)}")
        a(f"v_lshl_add_u32 {vr(VKR+t)}, {vr(VT+1)}, 8, {vr(VKR+t)}")
        a(f"v_add_u32 {vr(VKR+t)}, {sr(S_RING)}, {vr(VKR+t)}")
    a(f"v_add_u32 {vr(VVR)}, {sr(S_RING)}, {vr(VVD)}")
    make_selectors(a, V_LANE, SELE, SELO, VX, VX+1, VX+2, VX+3)
    a(f"v_mov_b32 {vr(VM)}, 0xff800000")
    a(f"v_mov_b32 {vr(VL)}, 0")
    for r in range(4): a(f"v_mov_b32 {vr(VO+r)}, 0")
    a(f"s_mov_b32 {sr(S_C)}, {hexf(math.log2(math.e) if cfg.RSCORE else C_SCALE)}")
    a(f"s_mov_b32 {sr(S_MASKHI)}, 0xffff0000")
    a(f"s_mov_b32 {sr(S_MASKHI+1)}, {hexf(128 ** -0.5)}")

    RA = cfg.RUNAHEAD
    for i in range(N, RA):
        assert load_desc(i)['req'] is None
        issue(i)
        if cfg.PROSTAMP and i == N: a(f"s_memrealtime {sr(S_STAMP+4,2)}")
        if cfg.PROSTAMP and i == 20: a(f"s_memrealtime {sr(S_STAMP+8,2)}")
        if cfg.PROSTAMP and i == 40: a(f"s_memrealtime {sr(S_STAMP+10,2)}")
    stamp(a, cfg, 1)
    a("s_barrier")
    stamp(a, cfg, 2)
    nxt = RA
    def try_issue(done_units):
        nonlocal nxt
        d = load_desc(nxt)
        if d['req'] is not None and d['req'] >= done_units: return False
        issue(nxt); nxt += 1
        return True
    a(f"v_lshlrev_b32 {vr(VX)}, 4, {vr(V_LANE)}")
    a(f"v_and_b32 {vr(VX)}, 0x1ff, {vr(VX)}")
    a(f"v_add_u32 {vr(VX)}, {QPART}, {vr(VX)}")
    for p in range(4):
        a(f"ds_read_b128 {vr(VA+4*p,4)}, {vr(VX)} offset:{p*512}")
    try_issue(0); try_issue(0)
    a("s_waitcnt lgkmcnt(0)")
    for e in range(4):
        a(f"v_add_f32 {vr(VA+e)}, {vr(VA+e)}, {vr(VA+4+e)}")
        a(f"v_add_f32 {vr(VA+8+e)}, {vr(VA+8+e)}, {vr(VA+12+e)}")
    for e in range(4):
        a(f"v_add_f32 {vr(VA+e)}, {vr(VA+e)}, {vr(VA+8+e)}")
    a(f"v_cvt_pk_bf16_f32 {vr(VA+4)}, {vr(VA)}, {vr(VA+1)}")
    a(f"v_cvt_pk_bf16_f32 {vr(VA+5)}, {vr(VA+2)}, {vr(VA+3)}")
    a(f"v_lshlrev_b32 {vr(VX+1)}, 3, {vr(V_LANE)}")
    a(f"v_and_b32 {vr(VX+1)}, 0xff, {vr(VX+1)}")
    a(f"s_lshl_b32 {sr(S_T0)}, {sr(S_WAVE)}, 8")
    a(f"s_add_u32 {sr(S_T0)}, {sr(S_T0)}, {QBF}")
    a(f"v_add_u32 {vr(VX+1)}, {sr(S_T0)}, {vr(VX+1)}")
    a(f"ds_write_b64 {vr(VX+1)}, {vr(VA+4,2)}")
    a(f"v_lshrrev_b32 {vr(VX+2)}, 4, {vr(V_LANE)}")
    a(f"v_lshlrev_b32 {vr(VX+2)}, 4, {vr(VX+2)}")
    a(f"v_add_u32 {vr(VX+2)}, {sr(S_T0)}, {vr(VX+2)}")
    a("s_waitcnt lgkmcnt(0)")
    for t in range(4):
        a(f"ds_read_b128 {vr(VQ+4*t,4)}, {vr(VX+2)} offset:{t*64}")
    try_issue(0)
    a("s_waitcnt lgkmcnt(0)")
    VERS = [int(x) for x in cfg.VERS.split(',')]
    ramp = [tuple(int(y) for y in x.split(':')) for x in cfg.RAMP.split(',')] if cfg.RAMP else []
    NMAX = max([v for v in VERS if v != 99] + [N] + [r[0] for r in ramp])
    U0 = 32
    target = NP + 64 + NMAX + 3
    u = 0
    while u < U0 or nxt < target:
        d = unit_desc(u) if u < U0 else None
        if d is not None and nxt - 1 - N >= d['need']:
            ahead = (nxt - 1 - N) - d['need']
            for p in range(4):
                piece(u, p)
                want = (ahead < 2) or (p in (1, 3))
                if want and nxt < target:
                    try_issue(u)
            u += 1
        else:
            if not (nxt < target and try_issue(u)):
                raise RuntimeError(f"schedule deadlock u={u} nxt={nxt}")
    assert nxt == target and u == U0, (nxt, target, u, U0)
    if cfg.POLL:
        poll_setup(a, cfg)
    niter = (128 - U0)//16
    S_POL = S_TS
    VPG = 224
    if cfg.WPOL:
        wp = [int(x) for x in cfg.WPOL.split(',')]
        a(f"s_mov_b32 {sr(S_POL)}, {wp[0]}")
        for w in range(1, 4):
            a(f"s_cmp_eq_u32 {sr(S_WAVE)}, {w}")
            a(f"s_cselect_b32 {sr(S_POL)}, {wp[w]}, {sr(S_POL)}")
    else:
        a(f"s_mov_b32 {sr(S_POL)}, {N}")
    if cfg.CTL:
        a(f"v_mov_b32 {vr(VPG)}, {FLAG+8}")
    a(f"s_mov_b32 {sr(S_CNT)}, 1")
    a.label("L_sloop")
    if cfg.KT:
        a(f"s_cmp_gt_u32 {sr(S_CNT)}, {niter - cfg.KT}")
        a(f"s_cselect_b32 {sr(S_POL)}, {cfg.NT}, {sr(S_POL)}")
        assert cfg.NT in VERS
    if cfg.CTL:
        a(f"v_mov_b32 {vr(VPG+1)}, {sr(S_CNT)}")
        a(f"s_cmp_lg_u32 {sr(S_WAVE)}, 0")
        a("s_cbranch_scc1 L_nopg")
        a(f"ds_write_b32 {vr(VPG)}, {vr(VPG+1)}")
        a.label("L_nopg")
    for vi, n in enumerate(VERS[:-1]):
        a(f"s_cmp_eq_u32 {sr(S_POL)}, {n}")
        a(f"s_cbranch_scc1 L_ver{n}")
    order = [VERS[-1]] + VERS[:-1]
    for vi, n in enumerate(order):
        a.label(f"L_ver{n}")
        win["n"] = n
        state["m0"] = None; state["sof"] = None
        for uu in range(64):
            if n == 99:
                win["n"] = [w for (w, f) in ramp if f <= uu][-1]
            issue(target + uu)
            piece(U0 + uu//4, uu % 4)
        if vi < len(order) - 1:
            a("s_branch L_snext")
    a.label("L_snext")
    if cfg.CTL:
        a(f"v_readfirstlane_b32 {sr(S_POL)}, {vr(VPG+2)}")
    a(f"s_add_u32 {sr(S_CNT)}, {sr(S_CNT)}, 1")
    a(f"s_cmp_le_u32 {sr(S_CNT)}, {niter}")
    a("s_cbranch_scc1 L_sloop")
    stamp(a, cfg, 3)
    groups_allreduce(a, VL, VX, "v_add_f32")
    a(f"v_and_b32 {vr(VX)}, 15, {vr(V_LANE)}")
    a(f"v_lshrrev_b32 {vr(VX+1)}, 4, {vr(V_LANE)}")
    a(f"v_lshlrev_b32 {vr(VX)}, 5, {vr(VX)}")
    a(f"v_lshl_add_u32 {vr(VX)}, {vr(VX+1)}, 4, {vr(VX)}")
    a(f"s_lshl_b32 {sr(S_T0)}, {sr(S_WAVE)}, 9")
    a(f"s_add_u32 {sr(S_T0)}, {sr(S_T0)}, {OPART}")
    a(f"v_add_u32 {vr(VX)}, {sr(S_T0)}, {vr(VX)}")
    a(f"s_lshl_b32 {sr(S_T0)}, {sr(S_WAVE)}, 2")
    a(f"s_add_u32 {sr(S_T0)}, {sr(S_T0)}, {ML}")
    a(f"v_mov_b32 {vr(VX+2)}, {sr(S_T0)}")
    a("s_mov_b32 exec_hi, 0")
    a(f"ds_write_b128 {vr(VX)}, {vr(VO,4)}")
    a("s_mov_b64 exec, 1")
    a(f"ds_write_b32 {vr(VX+2)}, {vr(VM)}")
    a(f"ds_write_b32 {vr(VX+2)}, {vr(VL)} offset:16")
    a("s_mov_b64 exec, -1")
    a("s_waitcnt lgkmcnt(0)")
    a("s_barrier")
    if cfg.POLL:
        a(f"s_cmp_eq_u32 {sr(S_H)}, {cfg.RED_H}")
        a("s_cbranch_scc1 L_reducer")
    else:
        a("s_waitcnt vmcnt(0)")
    a("s_branch L_tail")

def gen_side(a, cfg):
    V_LANE=0
    VF=2
    VXR=12
    VT=17
    SELE=28; SELO=32
    VAO=36
    VACC=44
    VH0=64; VH1=68
    VXA=72
    VOF=90
    VW=96
    VWA=VACC
    WF = cfg.WFLAGS
    D = cfg.DEPTH
    S_ROT = S_CNT
    S_SO = S_OFFA

    a.label("L_side")
    a(f"s_sub_u32 {sr(S_SW)}, {sr(S_WAVE)}, 4")
    a("s_waitcnt lgkmcnt(0)")
    a(f"s_mul_i32 {sr(S_T0)}, {sr(S_B)}, 1152")
    srd(a, S_SRDK, S_X, S_T0, 1152)
    a(f"v_lshlrev_b32 {vr(VT)}, 2, {vr(V_LANE)}")
    for k in range(5):
        a(f"buffer_load_dword {vr(VXR+k)}, {vr(VT)}, {sr(S_SRDK,4)}, 0 offen offset:{256*k}")
    a(f"s_lshl_b32 {sr(S_T0)}, {sr(S_H)}, 8")
    a(f"s_sub_u32 {sr(S_T1)}, {576*8192}, {sr(S_T0)}")
    srd(a, S_SRDV, S_WQ, S_T0, sr(S_T1))
    if cfg.ROT:
        a(f"s_mul_i32 {sr(S_ROT)}, {sr(S_B)}, 18")
        a(f"s_lshr_b32 {sr(S_ROT)}, {sr(S_ROT)}, 3")
        a(f"s_lshl_b32 {sr(S_ROT)}, {sr(S_ROT)}, 1")
    else:
        a(f"s_mov_b32 {sr(S_ROT)}, 0")
    a(f"v_lshrrev_b32 {vr(VT+1)}, 4, {vr(V_LANE)}")
    a(f"v_and_b32 {vr(VT+2)}, 15, {vr(V_LANE)}")
    a(f"v_mul_u32_u24 {vr(VT+3)}, 36, {vr(VT+1)}")
    a(f"s_mul_i32 {sr(S_T2)}, {sr(S_SW)}, 144")
    a(f"v_add_u32 {vr(VT+3)}, {sr(S_T2)}, {vr(VT+3)}")
    a(f"v_lshlrev_b32 {vr(VOF)}, 13, {vr(VT+3)}")
    a(f"v_lshl_add_u32 {vr(VOF)}, {vr(VT+2)}, 4, {vr(VOF)}")
    def adv(step, n):
        a(f"s_add_u32 {sr(S_SO)}, {sr(S_SO)}, {step}")
        a(f"s_cmp_ge_u32 {sr(S_SO)}, {step*n}")
        a(f"s_cselect_b32 {sr(S_SO)}, 0, {sr(S_SO)}")
    a(f"s_lshl_b32 {sr(S_SO)}, {sr(S_ROT)}, 13")
    DQ = cfg.DQ
    def wq_load(t):
        a(f"buffer_load_dwordx4 {vr(VW+4*t,4)}, {vr(VOF)}, {sr(S_SRDV,4)}, {sr(S_SO)} offen {WF}")
        if t < 35: adv(8192, 36)
    for t in range(DQ): wq_load(t)
    a(f"s_mov_b32 {sr(S_T3)}, 9216")
    a(f"v_mul_lo_u32 {vr(VOF+1)}, {vr(VT+3)}, {sr(S_T3)}")
    a(f"v_lshl_add_u32 {vr(VOF+1)}, {vr(VT+2)}, 4, {vr(VOF+1)}")
    a(f"v_add_u32 {vr(VOF+2)}, 256, {vr(VOF+1)}")
    a(f"v_mov_b32 {vr(VT+4)}, 0x7f000000")
    a(f"v_cmp_gt_u32 vcc, 2, {vr(VT+2)}")
    a("s_nop 1")
    a(f"v_cndmask_b32 {vr(VOF+2)}, {vr(VT+4)}, {vr(VOF+2)}, vcc")
    make_selectors(a, V_LANE, SELE, SELO, VT+4, VT+5, VT+6, VT+7)
    a(f"s_mov_b32 {sr(S_MASKHI)}, 0xffff0000")
    a(f"s_mul_i32 {sr(S_T0)}, {sr(S_SW)}, 2560")
    a(f"s_add_u32 {sr(S_T0)}, {sr(S_T0)}, {XPRIV}")
    a(f"s_movk_i32 {sr(S_T1)}, 3641")
    for k in range(5):
        a(f"v_add_u32 {vr(VT+4)}, {64*k}, {vr(V_LANE)}")
        a(f"v_mul_u32_u24 {vr(VT+5)}, {sr(S_T1)}, {vr(VT+4)}")
        a(f"v_lshrrev_b32 {vr(VT+5)}, 16, {vr(VT+5)}")
        a(f"v_mul_u32_u24 {vr(VT+5)}, 72, {vr(VT+5)}")
        a(f"v_lshl_add_u32 {vr(VWA+k)}, {vr(VT+4)}, 2, {vr(VT+5)}")
        a(f"v_add_u32 {vr(VWA+k)}, {sr(S_T0)}, {vr(VWA+k)}")
    a(f"s_mul_i32 {sr(S_T1)}, {sr(S_SW)}, 576")
    a(f"s_add_u32 {sr(S_T0)}, {sr(S_T0)}, {sr(S_T1)}")
    a(f"s_lshl_b32 {sr(S_T1)}, {sr(S_ROT)}, 1")
    a(f"s_add_u32 {sr(S_T0)}, {sr(S_T0)}, {sr(S_T1)}")
    a(f"v_mul_u32_u24 {vr(VOF+4)}, 144, {vr(VT+1)}")
    a(f"v_add_u32 {vr(VOF+4)}, {sr(S_T0)}, {vr(VOF+4)}")
    a(f"s_mov_b32 {sr(S_EX)}, -1")
    a(f"s_mov_b32 {sr(S_EX+1)}, 0")
    a(f"v_mov_b32 {vr(VT+4)}, {FLAG+4}")
    a(f"v_mov_b32 {vr(VT+5)}, 0")
    a(f"ds_write_b32 {vr(VT+4)}, {vr(VT+5)}")
    a(f"ds_write_b32 {vr(VT+4)}, {vr(VT+5)} offset:4")
    a(f"v_mov_b32 {vr(VT+5)}, {cfg.N}")
    a(f"ds_write_b32 {vr(VT+4)}, {vr(VT+5)} offset:8")

    def layernorm():
        s = VT+8; t = VT+9; u = VT+10
        a(f"v_add_f32 {vr(s)}, {vr(VF)}, {vr(VF+1)}")
        for k in range(2,10): a(f"v_add_f32 {vr(s)}, {vr(s)}, {vr(VF+k)}")
        allreduce_sum(a, s, t)
        a(f"v_mul_f32 {vr(s)}, {hexf(1.0/576)}, {vr(s)}")
        a(f"v_sub_f32 {vr(t)}, {vr(VF)}, {vr(s)}")
        a(f"v_mul_f32 {vr(u)}, {vr(t)}, {vr(t)}")
        for k in range(1,10):
            a(f"v_sub_f32 {vr(t)}, {vr(VF+k)}, {vr(s)}")
            if k >= 8:
                a(f"v_cndmask_b32 {vr(t)}, 0, {vr(t)}, {sr(S_EX,2)}")
            a(f"v_fmac_f32 {vr(u)}, {vr(t)}, {vr(t)}")
        allreduce_sum(a, u, t)
        a(f"v_mul_f32 {vr(u)}, {hexf(1.0/576)}, {vr(u)}")
        a(f"v_cvt_pk_bf16_f32 {vr(t)}, {vr(s)}, {vr(u)}")
        a(f"v_lshlrev_b32 {vr(s)}, 16, {vr(t)}")
        a(f"v_and_b32 {vr(u)}, {sr(S_MASKHI)}, {vr(t)}")
        a(f"v_add_f32 {vr(u)}, {hexf(1e-5)}, {vr(u)}")
        a(f"v_cvt_pk_bf16_f32 {vr(u)}, {vr(u)}, {vr(u)}")
        a(f"v_and_b32 {vr(u)}, {sr(S_MASKHI)}, {vr(u)}")
        a(f"v_sqrt_f32 {vr(u)}, {vr(u)}")
        a("s_nop 0")
        a(f"v_cvt_pk_bf16_f32 {vr(u)}, {vr(u)}, {vr(u)}")
        a(f"v_and_b32 {vr(u)}, {sr(S_MASKHI)}, {vr(u)}")
        a(f"v_rcp_f32 {vr(u)}, {vr(u)}")
        for k in range(5):
            A0 = VF+2*k; A1 = A0+1
            a(f"v_sub_f32 {vr(A0)}, {vr(A0)}, {vr(s)}")
            a(f"v_sub_f32 {vr(A1)}, {vr(A1)}, {vr(s)}")
            a(f"v_cvt_pk_bf16_f32 {vr(t)}, {vr(A0)}, {vr(A1)}")
            a(f"v_lshlrev_b32 {vr(A0)}, 16, {vr(t)}")
            a(f"v_and_b32 {vr(A1)}, {sr(S_MASKHI)}, {vr(t)}")
            a(f"v_mul_f32 {vr(A0)}, {vr(A0)}, {vr(u)}")
            a(f"v_mul_f32 {vr(A1)}, {vr(A1)}, {vr(u)}")
            a(f"v_cvt_pk_bf16_f32 {vr(VXR+k)}, {vr(A0)}, {vr(A1)}")
            a(f"v_lshlrev_b32 {vr(A0)}, 16, {vr(VXR+k)}")
            a(f"v_and_b32 {vr(A1)}, {sr(S_MASKHI)}, {vr(VXR+k)}")
            if k == 4: a("s_mov_b32 exec_hi, 0")
            a(f"ds_write_b32 {vr(VWA+k)}, {vr(VXR+k)}")
            a(f"ds_write_b32 {vr(VWA+k)}, {vr(VXR+k)} offset:72")
            if k == 4: a("s_mov_b64 exec, -1")
        a(f"v_cndmask_b32 {vr(VF+8)}, 0, {vr(VF+8)}, {sr(S_EX,2)}")
        a(f"v_cndmask_b32 {vr(VF+9)}, 0, {vr(VF+9)}, {sr(S_EX,2)}")
        a("s_waitcnt lgkmcnt(0)")
        for k in range(9):
            a(f"ds_read2_b32 {vr(VXA+2*k,2)}, {vr(VOF+4)} offset0:{2*k} offset1:{2*k+1}")

    a(f"s_waitcnt vmcnt({DQ})")
    for k in range(5):
        a(f"v_lshlrev_b32 {vr(VF+2*k)}, 16, {vr(VXR+k)}")
        a(f"v_and_b32 {vr(VF+2*k+1)}, {sr(S_MASKHI)}, {vr(VXR+k)}")
    layernorm()
    a("s_waitcnt lgkmcnt(0)")
    for t in range(36):
        ao = VAO + 4*(t&1)
        diag(a, ao, VXA + (t>>1), t&1, SELE, SELO)
        a(f"s_waitcnt vmcnt({min(DQ, 36-t)-1})")
        a("s_nop 0")
        mfma(a, VH0, ao, VW+4*t, None if t == 0 else VH0)
        if t + DQ < 36: wq_load(t + DQ)
    a(f"v_and_b32 {vr(VT)}, 15, {vr(V_LANE)}")
    a(f"v_lshrrev_b32 {vr(VT+1)}, 4, {vr(V_LANE)}")
    a(f"v_lshlrev_b32 {vr(VT)}, 5, {vr(VT)}")
    a(f"v_lshl_add_u32 {vr(VOF+5)}, {vr(VT+1)}, 4, {vr(VT)}")
    a(f"s_lshl_b32 {sr(S_T0)}, {sr(S_SW)}, 9")
    a(f"s_add_u32 {sr(S_T0)}, {sr(S_T0)}, {QPART}")
    a(f"v_add_u32 {vr(VT)}, {sr(S_T0)}, {vr(VOF+5)}")
    a("s_nop 4")
    a("s_mov_b32 exec_hi, 0")
    a(f"ds_write_b128 {vr(VT)}, {vr(VH0,4)}")
    a("s_mov_b64 exec, -1")
    a("s_waitcnt lgkmcnt(0)")
    stamp(a, cfg, 1)
    a("s_barrier")
    if cfg.NOSIDE:
        a("s_barrier")
        a("s_branch L_tail")

    if cfg.POLL:
        a(f"s_cmp_lg_u32 {sr(S_SW)}, 0")
        a("s_cbranch_scc1 L_noreset")
        a(f"s_mul_i32 {sr(S_T0)}, {sr(S_WG)}, 2304")
        srd(a, S_SRD2, S_WS, S_T0, 2304)
        a(f"v_lshlrev_b32 {vr(VT)}, 4, {vr(V_LANE)}")
        for e in range(4): a(f"v_mov_b32 {vr(VW+e)}, -1")
        for k in range(3):
            a(f"buffer_store_dwordx4 {vr(VW,4)}, {vr(VT)}, {sr(S_SRD2,4)}, 0 offen offset:{1024*k} sc1")
        a("s_waitcnt vmcnt(0)")
        if cfg.STARTSIG == 'atomic':
            a(f"s_lshl_b32 {sr(S_T0)}, {sr(S_B)}, 5")
            a(f"v_mov_b32 {vr(VT)}, {sr(S_T0)}")
            a(f"v_mov_b32 {vr(VT+1)}, 1")
            a("s_mov_b64 exec, 1")
            a(f"global_atomic_add {vr(VT)}, {vr(VT+1)}, {sr(S_DBG,2)} offset:4")
            a("s_mov_b64 exec, -1")
            a("s_waitcnt vmcnt(0)")
        elif cfg.STARTSIG == 'byte':
            a(f"v_mov_b32 {vr(VT)}, {sr(S_WG)}")
            a(f"v_mov_b32 {vr(VT+1)}, 1")
            a("s_mov_b64 exec, 1")
            a(f"global_store_byte {vr(VT)}, {vr(VT+1)}, {sr(S_DBG,2)} sc1")
            a("s_mov_b64 exec, -1")
            a("s_waitcnt vmcnt(0)")
        a.label("L_noreset")

    def paced(units, compute, D=D):
        flat = [(u, f) for u, fs in enumerate(units) for f in fs]
        last = {}
        for idx, (u, f) in enumerate(flat): last[u] = idx
        done = 0
        nu = len(units)
        for idx, (u, f) in enumerate(flat):
            if idx >= D: a(f"s_waitcnt vmcnt({D-1})")
            f()
            landed = idx - D if idx >= D else -1
            while done < nu and last[done] <= landed:
                compute(done); done += 1
        n = len(flat)
        while done < nu:
            a(f"s_waitcnt vmcnt({n-1-last[done]})")
            compute(done); done += 1

    if cfg.MMAP:
        a(f"s_and_b32 {sr(S_M)}, {sr(S_H)}, 7")
        a(f"s_lshl_b32 {sr(S_M)}, {sr(S_M)}, 2")
        a(f"s_lshr_b32 {sr(S_T0)}, {sr(S_H)}, 3")
        a(f"s_add_u32 {sr(S_M)}, {sr(S_M)}, {sr(S_T0)}")
    else:
        a(f"s_mov_b32 {sr(S_M)}, {sr(S_H)}")
    a(f"s_mul_i32 {sr(S_T0)}, {sr(S_M)}, 288")
    a(f"s_sub_u32 {sr(S_T1)}, {576*9216}, {sr(S_T0)}")
    srd(a, S_SRDV, S_W1, S_T0, sr(S_T1))
    layernorm()
    a(f"s_mul_i32 {sr(S_SO)}, {sr(S_ROT)}, 9216")
    a("s_waitcnt lgkmcnt(0)")
    NB = D + 2
    def w1_unit(t):
        b = VW + 8*(t % NB)
        def f0(): a(f"buffer_load_dwordx4 {vr(b,4)}, {vr(VOF+1)}, {sr(S_SRDV,4)}, {sr(S_SO)} offen {WF}")
        def f1():
            a(f"buffer_load_dwordx4 {vr(b+4,4)}, {vr(VOF+2)}, {sr(S_SRDV,4)}, {sr(S_SO)} offen {WF}")
            if t < 35: adv(9216, 36)
        return [f0, f1]
    def w1_comp(t):
        b = VW + 8*(t % NB)
        ao = VAO + 4*(t&1)
        diag(a, ao, VXA + (t>>1), t&1, SELE, SELO)
        a("s_nop 1")
        mfma(a, VH0, ao, b, None if t == 0 else VH0)
        mfma(a, VH1, ao, b+4, None if t == 0 else VH1)
    paced([w1_unit(t) for t in range(36)], w1_comp)
    a(f"s_mul_i32 {sr(S_T0)}, {sr(S_M)}, 288")
    srd(a, S_SRDK, S_B1, S_T0, 288)
    a(f"v_lshrrev_b32 {vr(VT+1)}, 4, {vr(V_LANE)}")
    a(f"v_mul_u32_u24 {vr(VT+2)}, 9, {vr(VT+1)}")
    a(f"s_mul_i32 {sr(S_T2)}, {sr(S_SW)}, 36")
    a(f"v_add_u32 {vr(VT+2)}, {sr(S_T2)}, {vr(VT+2)}")
    a(f"v_lshlrev_b32 {vr(VT+3)}, 1, {vr(VT+2)}")
    for t in range(9):
        a(f"buffer_load_ushort {vr(VF+t)}, {vr(VT+3)}, {sr(S_SRDK,4)}, 0 offen offset:{2*t}")
    a(f"s_lshl_b32 {sr(S_T0)}, {sr(S_SW)}, 10")
    a(f"s_add_u32 {sr(S_T0)}, {sr(S_T0)}, {HPART}")
    a(f"v_add_u32 {vr(VT)}, {sr(S_T0)}, {vr(VOF+5)}")
    a("s_mov_b32 exec_hi, 0")
    a(f"ds_write_b128 {vr(VT)}, {vr(VH0,4)}")
    a(f"ds_write_b128 {vr(VT)}, {vr(VH1,4)} offset:512")
    a("s_mov_b64 exec, -1")
    a(f"s_mul_i32 {sr(S_T0)}, {sr(S_M)}, {144*1152}")
    srd(a, S_SRDV, S_W2, S_T0, 144*1152)
    a(f"v_and_b32 {vr(VT+4)}, 15, {vr(V_LANE)}")
    a(f"s_movk_i32 {sr(S_T3)}, 1152")
    a(f"v_mul_lo_u32 {vr(VOF)}, {vr(VT+2)}, {sr(S_T3)}")
    a(f"v_lshl_add_u32 {vr(VOF)}, {vr(VT+4)}, 4, {vr(VOF)}")
    a(f"v_add_u32 {vr(VOF+1)}, 1024, {vr(VOF)}")
    a(f"v_mov_b32 {vr(VT+5)}, 0x7f000000")
    a(f"v_cmp_gt_u32 vcc, 8, {vr(VT+4)}")
    a("s_nop 1")
    a(f"v_cndmask_b32 {vr(VOF+1)}, {vr(VT+5)}, {vr(VOF+1)}, vcc")
    a(f"v_lshlrev_b32 {vr(VOF+2)}, 2, {vr(VT+2)}")
    a(f"v_add_u32 {vr(VOF+2)}, {HPART}, {vr(VOF+2)}")
    a(f"v_mov_b32 {vr(VT)}, {FLAG+4}")
    a(f"v_mov_b32 {vr(VT+1)}, 1")
    a("s_waitcnt lgkmcnt(0)")
    a("s_mov_b64 exec, 1")
    a(f"ds_add_u32 {vr(VT)}, {vr(VT+1)}")
    a("s_mov_b64 exec, -1")
    a.label("L_hsync")
    a(f"ds_read_b32 {vr(VT+1)}, {vr(VT)}")
    a("s_waitcnt lgkmcnt(0)")
    a(f"v_readfirstlane_b32 {sr(S_T0)}, {vr(VT+1)}")
    a("s_nop 3")
    a(f"s_cmp_ge_u32 {sr(S_T0)}, 4")
    a("s_cbranch_scc1 L_hsync_done")
    a("s_sleep 4")
    a("s_branch L_hsync")
    a.label("L_hsync_done")
    HS = VXA
    for t in range(9):
        a(f"ds_read_b32 {vr(HS+t)}, {vr(VOF+2)} offset:{4*t}")
        a(f"ds_read_b32 {vr(VT)}, {vr(VOF+2)} offset:{1024+4*t}")
        a(f"ds_read_b32 {vr(VT+1)}, {vr(VOF+2)} offset:{2048+4*t}")
        a(f"ds_read_b32 {vr(VT+2)}, {vr(VOF+2)} offset:{3072+4*t}")
        a("s_waitcnt lgkmcnt(0)")
        a(f"v_add_f32 {vr(HS+t)}, {vr(HS+t)}, {vr(VT)}")
        a(f"v_add_f32 {vr(VT+1)}, {vr(VT+1)}, {vr(VT+2)}")
        a(f"v_add_f32 {vr(HS+t)}, {vr(HS+t)}, {vr(VT+1)}")
    a("s_waitcnt vmcnt(0)")
    K1 = -2.0*math.log2(math.e)*math.sqrt(2.0/math.pi)
    a(f"s_mov_b32 {sr(S_T0)}, {hexf(0.044715)}")
    a(f"s_mov_b32 {sr(S_T1)}, {hexf(K1)}")
    for t in range(9):
        x = HS+t
        a(f"v_cvt_pk_bf16_f32 {vr(x)}, {vr(x)}, {vr(x)}")
        a(f"v_and_b32 {vr(x)}, {sr(S_MASKHI)}, {vr(x)}")
        a(f"v_lshlrev_b32 {vr(VF+t)}, 16, {vr(VF+t)}")
        a(f"v_add_f32 {vr(x)}, {vr(x)}, {vr(VF+t)}")
        a(f"v_cvt_pk_bf16_f32 {vr(x)}, {vr(x)}, {vr(x)}")
        a(f"v_and_b32 {vr(x)}, {sr(S_MASKHI)}, {vr(x)}")
        a(f"v_mul_f32 {vr(VT)}, {vr(x)}, {vr(x)}")
        a(f"v_mul_f32 {vr(VT)}, {vr(VT)}, {vr(x)}")
        a(f"v_fma_f32 {vr(VT)}, {vr(VT)}, {sr(S_T0)}, {vr(x)}")
        a(f"v_mul_f32 {vr(VT)}, {sr(S_T1)}, {vr(VT)}")
        a(f"v_exp_f32 {vr(VT)}, {vr(VT)}")
        a("s_nop 0")
        a(f"v_add_f32 {vr(VT)}, 1.0, {vr(VT)}")
        a(f"v_rcp_f32 {vr(VT)}, {vr(VT)}")
        a("s_nop 0")
        a(f"v_mul_f32 {vr(x)}, {vr(x)}, {vr(VT)}")
    HP = VF
    for k in range(4):
        a(f"v_cvt_pk_bf16_f32 {vr(HP+k)}, {vr(HS+2*k)}, {vr(HS+2*k+1)}")
    a(f"v_cvt_pk_bf16_f32 {vr(HP+4)}, {vr(HS+8)}, {vr(HS+8)}")

    def out_unit(t, base):
        fs = []
        for cg in range(4):
            def f(cg=cg):
                if cg == 0:
                    if cfg.ROT2 and t < 8:
                        a(f"s_and_b32 {sr(S_T3)}, {sr(S_B)}, {cfg.ROT2}")
                        a(f"s_xor_b32 {sr(S_T3)}, {sr(S_T3)}, {t}")
                        a(f"s_mul_i32 {sr(S_T3)}, {sr(S_T3)}, 1152")
                    else:
                        a(f"s_movk_i32 {sr(S_T3)}, {t*1152}")
                a(f"buffer_load_dwordx4 {vr(base+4*cg,4)}, {vr(VOF)}, {sr(S_SRDV,4)}, {sr(S_T3)} offen offset:{256*cg} {WF}")
            fs.append(f)
        fs.append(lambda: a(f"buffer_load_dwordx4 {vr(base+16,4)}, {vr(VOF+1)}, {sr(S_SRDV,4)}, {sr(S_T3)} offen {WF}"))
        return fs
    def out_comp(t, base, src, first):
        ao = VAO + 4*(t&1)
        diag(a, ao, src + (t>>1), t&1, SELE, SELO)
        a("s_nop 1")
        for cg in range(5):
            mfma(a, VACC+4*cg, ao, base+4*cg, None if first else VACC+4*cg)
    NB2 = 3
    paced([out_unit(t, VW + 20*(t % NB2)) for t in range(9)],
          lambda t: out_comp(t, VW + 20*(t % NB2), HP, t == 0), D=cfg.D2 or D)
    a(f"s_mul_i32 {sr(S_T0)}, {sr(S_H)}, {128*1152}")
    srd(a, S_SRDV, S_WO, S_T0, 128*1152)
    a(f"v_lshrrev_b32 {vr(VT+1)}, 4, {vr(V_LANE)}")
    a(f"v_and_b32 {vr(VT+4)}, 15, {vr(V_LANE)}")
    a(f"v_lshlrev_b32 {vr(VT+2)}, 3, {vr(VT+1)}")
    a(f"s_lshl_b32 {sr(S_T2)}, {sr(S_SW)}, 5")
    a(f"v_add_u32 {vr(VT+2)}, {sr(S_T2)}, {vr(VT+2)}")
    a(f"s_movk_i32 {sr(S_T3)}, 1152")
    a(f"v_mul_lo_u32 {vr(VOF)}, {vr(VT+2)}, {sr(S_T3)}")
    a(f"v_lshl_add_u32 {vr(VOF)}, {vr(VT+4)}, 4, {vr(VOF)}")
    a(f"v_add_u32 {vr(VOF+1)}, 1024, {vr(VOF)}")
    a(f"v_mov_b32 {vr(VT+5)}, 0x7f000000")
    a(f"v_cmp_gt_u32 vcc, 8, {vr(VT+4)}")
    a("s_nop 1")
    a(f"v_cndmask_b32 {vr(VOF+1)}, {vr(VT+5)}, {vr(VOF+1)}, vcc")
    paced([out_unit(t, VW + 20*t) for t in range(8)], lambda t: None, D=cfg.D3 or D)
    a(f"v_lshlrev_b32 {vr(VOF+2)}, 2, {vr(VT+2)}")
    a(f"v_add_u32 {vr(VOF+2)}, {OPART}, {vr(VOF+2)}")
    a(f"s_mul_i32 {sr(S_T0)}, {sr(S_SW)}, 2560")
    a(f"s_add_u32 {sr(S_T0)}, {sr(S_T0)}, {OUTP}")
    a(f"v_add_u32 {vr(VOF+3)}, {sr(S_T0)}, {vr(VOF+5)}")
    a(f"v_mov_b32 {vr(VOF+4)}, {ML}")
    a(f"s_mov_b32 {sr(S_C)}, {hexf(math.log2(math.e) if (cfg.RSCORE and cfg.SR) else C_SCALE)}")
    a("s_waitcnt vmcnt(0)")
    if cfg.POLL:
        a(f"s_cmp_lg_u32 {sr(S_H)}, {cfg.RED_H}")
        a("s_cbranch_scc1 L_started")
        a(f"s_cmp_lg_u32 {sr(S_SW)}, 0")
        a("s_cbranch_scc1 L_started")
        if cfg.STARTSIG == 'atomic':
            a(f"s_lshl_b32 {sr(S_T0)}, {sr(S_B)}, 5")
            a(f"v_mov_b32 {vr(VT)}, {sr(S_T0)}")
            a(f"s_mov_b32 {sr(S_T1)}, 200000")
            a.label("L_startchk")
            a(f"s_sub_u32 {sr(S_T1)}, {sr(S_T1)}, 1")
            a("s_cbranch_scc1 L_started")
            a(f"global_load_dword {vr(VT+1)}, {vr(VT)}, {sr(S_DBG,2)} offset:4 sc1")
            a("s_waitcnt vmcnt(0)")
            a(f"v_readfirstlane_b32 {sr(S_T0)}, {vr(VT+1)}")
            a("s_nop 3")
            a(f"s_cmp_ge_u32 {sr(S_T0)}, 32")
            a("s_cbranch_scc1 L_started")
            a("s_sleep 8")
            a("s_branch L_startchk")
        elif cfg.STARTSIG == 'byte':
            a(f"s_lshl_b32 {sr(S_T0)}, {sr(S_B)}, 5")
            a(f"v_and_b32 {vr(VT)}, 7, {vr(V_LANE)}")
            a(f"v_lshlrev_b32 {vr(VT)}, 2, {vr(VT)}")
            a(f"v_add_u32 {vr(VT)}, {sr(S_T0)}, {vr(VT)}")
            a(f"s_mov_b32 {sr(S_T1)}, 200000")
            a(f"s_mov_b32 {sr(S_T2)}, 0x01010101")
            a.label("L_startchk")
            a(f"s_sub_u32 {sr(S_T1)}, {sr(S_T1)}, 1")
            a("s_cbranch_scc1 L_started")
            a(f"global_load_dword {vr(VT+1)}, {vr(VT)}, {sr(S_DBG,2)} sc1")
            a("s_waitcnt vmcnt(0)")
            a(f"v_cmp_ne_u32 vcc, {sr(S_T2)}, {vr(VT+1)}")
            a("s_cbranch_vccz L_started")
            a("s_sleep 8")
            a("s_branch L_startchk")
        a.label("L_started")
    if cfg.CTL:
        T1, T2, nA, nB, nC = [int(x) for x in cfg.CTL.split(',')]
        niter = (128 - (4*cfg.PROUNDS + 8*cfg.K0))//8
        a(f"s_cmp_lg_u32 {sr(S_SW)}, 0")
        a("s_cbranch_scc1 L_ctl_done")
        a(f"v_mov_b32 {vr(VT)}, {FLAG+8}")
        a(f"ds_read_b32 {vr(VT+1)}, {vr(VT)}")
        a("s_waitcnt lgkmcnt(0)")
        a(f"v_readfirstlane_b32 {sr(S_T3)}, {vr(VT+1)}")
        a.label("L_ctl")
        a(f"s_cmp_ge_u32 {sr(S_T3)}, {niter - cfg.CTLSTOP}")
        a("s_cbranch_scc1 L_ctl_done")
        a("s_sleep 2")
        a(f"ds_read_b32 {vr(VT+1)}, {vr(VT)}")
        a("s_waitcnt lgkmcnt(0)")
        a(f"v_readfirstlane_b32 {sr(S_T2)}, {vr(VT+1)}")
        a("s_nop 3")
        a(f"s_cmp_eq_u32 {sr(S_T2)}, {sr(S_T3)}")
        a("s_cbranch_scc1 L_ctl")
        a(f"s_mov_b32 {sr(S_T3)}, {sr(S_T2)}")
        a(f"s_and_b32 {sr(S_T0)}, {sr(S_T3)}, 7")
        a(f"s_lshl_b32 {sr(S_T0)}, {sr(S_T0)}, 5")
        a(f"s_lshr_b32 {sr(S_T1)}, {sr(S_T3)}, 3")
        a(f"s_lshl_b32 {sr(S_T1)}, {sr(S_T1)}, 2")
        a(f"s_add_u32 {sr(S_T0)}, {sr(S_T0)}, {sr(S_T1)}")
        a(f"v_mov_b32 {vr(VT+2)}, {sr(S_T0)}")
        a(f"v_mov_b32 {vr(VT+3)}, 1")
        a("s_mov_b64 exec, 1")
        a(f"global_atomic_add {vr(VT+4)}, {vr(VT+2)}, {vr(VT+3)}, {sr(S_DBG,2)} offset:8 sc0")
        a("s_mov_b64 exec, -1")
        a("s_waitcnt vmcnt(0)")
        a(f"v_readfirstlane_b32 {sr(S_T0)}, {vr(VT+4)}")
        a("s_nop 3")
        a(f"s_mov_b32 {sr(S_T1)}, {nC}")
        a(f"s_cmp_lt_u32 {sr(S_T0)}, {T2}")
        a(f"s_cselect_b32 {sr(S_T1)}, {nB}, {sr(S_T1)}")
        a(f"s_cmp_lt_u32 {sr(S_T0)}, {T1}")
        a(f"s_cselect_b32 {sr(S_T1)}, {nA}, {sr(S_T1)}")
        a(f"v_mov_b32 {vr(VT+2)}, {sr(S_T1)}")
        a(f"ds_write_b32 {vr(VT)}, {vr(VT+2)} offset:4")
        a("s_branch L_ctl")
        a.label("L_ctl_done")
        a("s_waitcnt lgkmcnt(0)")
    stamp(a, cfg, 2)
    a("s_barrier")
    stamp(a, cfg, 3)
    MM = VXA; LL = VXA+4
    a(f"ds_read_b128 {vr(MM,4)}, {vr(VOF+4)}")
    a(f"ds_read_b128 {vr(LL,4)}, {vr(VOF+4)} offset:16")
    OR = [2, 10, 18, 80]
    for w in range(4):
        a(f"ds_read_b128 {vr(OR[w],4)}, {vr(VOF+2)} offset:{w*512}")
        a(f"ds_read_b128 {vr(OR[w]+4,4)}, {vr(VOF+2)} offset:{w*512+16}")
    a("s_waitcnt lgkmcnt(8)")
    mx = 26; tt = 27
    a(f"v_max3_f32 {vr(mx)}, {vr(MM)}, {vr(MM+1)}, {vr(MM+2)}")
    a(f"v_max_f32 {vr(mx)}, {vr(mx)}, {vr(MM+3)}")
    for w in range(4):
        a(f"v_sub_f32 {vr(MM+w)}, {vr(MM+w)}, {vr(mx)}")
    for w in range(4):
        a(f"v_mul_f32 {vr(MM+w)}, {sr(S_C)}, {vr(MM+w)}")
    for w in range(4):
        a(f"v_exp_f32 {vr(MM+w)}, {vr(MM+w)}")
    a("s_nop 0")
    a(f"v_mul_f32 {vr(tt)}, {vr(MM)}, {vr(LL)}")
    for w in range(1,4):
        a(f"v_fmac_f32 {vr(tt)}, {vr(MM+w)}, {vr(LL+w)}")
    a(f"v_rcp_f32 {vr(tt)}, {vr(tt)}")
    a("s_nop 0")
    for w in range(4):
        a(f"v_mul_f32 {vr(MM+w)}, {vr(MM+w)}, {vr(tt)}")
    a("s_waitcnt lgkmcnt(0)")
    for e in range(8):
        a(f"v_mul_f32 {vr(OR[0]+e)}, {vr(OR[0]+e)}, {vr(MM)}")
    for w in range(1,4):
        for e in range(8):
            a(f"v_fmac_f32 {vr(OR[0]+e)}, {vr(OR[w]+e)}, {vr(MM+w)}")
    OPK = 10
    for k in range(4):
        a(f"v_cvt_pk_bf16_f32 {vr(OPK+k)}, {vr(OR[0]+2*k)}, {vr(OR[0]+2*k+1)}")
    diag(a, VAO, OPK, 0, SELE, SELO)
    diag(a, VAO+4, OPK, 1, SELE, SELO)
    for t in range(8):
        ao = VAO + 4*(t&1)
        for cg in range(5):
            mfma(a, VACC+4*cg, ao, VW + 20*t + 4*cg, VACC+4*cg)
        if t + 2 < 8:
            diag(a, ao, OPK + ((t+2)>>1), (t+2)&1, SELE, SELO)
    a("s_mov_b32 exec_hi, 0")
    a("s_nop 2")
    for cg in range(5):
        a(f"ds_write_b128 {vr(VOF+3)}, {vr(VACC+4*cg,4)} offset:{512*cg}")
    a("s_mov_b64 exec, -1")
    a("s_waitcnt lgkmcnt(0)")


PR1=96; PR2=160; POWN=168; PXB=184; PVO=188; PVO0=189; PV2A=190; PV2B=191; PLA=192; POUT=193; PT=194
def set_poll_regs(base):
    global PR1, PR2, POWN, PXB, PVO, PVO0, PV2A, PV2B, PLA, POUT, PT
    PR1=base; PR2=base+64; POWN=base+72; PXB=base+88; PVO=base+92; PVO0=base+93; PV2A=base+94; PV2B=base+95; PLA=base+96; POUT=base+97; PT=base+98

def poll_setup(a, cfg):
    assert cfg.RED_H == 0
    L = 0
    a(f"s_mul_i32 {sr(S_T0)}, {sr(S_B)}, {32*2304}")
    srd(a, S_SRD2, S_WS, S_T0, 32*2304)
    a(f"s_mul_i32 {sr(S_T2)}, {sr(S_WAVE)}, 36")
    a(f"v_and_b32 {vr(PT)}, 31, {vr(L)}")
    a(f"v_add_u32 {vr(PT)}, {sr(S_T2)}, {vr(PT)}")
    a(f"v_lshlrev_b32 {vr(PVO)}, 4, {vr(PT)}")
    a(f"v_lshrrev_b32 {vr(PT+1)}, 5, {vr(L)}")
    a(f"s_mov_b32 {sr(S_T3)}, {16*2304}")
    a(f"v_mul_lo_u32 {vr(PT+1)}, {vr(PT+1)}, {sr(S_T3)}")
    a(f"v_add_u32 {vr(PVO)}, {vr(PVO)}, {vr(PT+1)}")
    a(f"v_mov_b32 {vr(PT+2)}, 0x7f000000")
    a(f"v_cmp_gt_u32 vcc, 32, {vr(L)}")
    a("s_nop 1")
    a(f"v_cndmask_b32 {vr(PVO0)}, {vr(PVO)}, {vr(PT+2)}, vcc")
    a(f"v_and_b32 {vr(PT)}, 3, {vr(L)}")
    a(f"v_add_u32 {vr(PT)}, {sr(S_T2)}, {vr(PT)}")
    a(f"v_add_u32 {vr(PT)}, 32, {vr(PT)}")
    a(f"v_lshlrev_b32 {vr(PV2A)}, 4, {vr(PT)}")
    a(f"v_lshrrev_b32 {vr(PT+1)}, 2, {vr(L)}")
    a(f"s_movk_i32 {sr(S_T3)}, {2*2304}")
    a(f"v_mul_lo_u32 {vr(PT+1)}, {vr(PT+1)}, {sr(S_T3)}")
    a(f"v_add_u32 {vr(PV2A)}, {vr(PV2A)}, {vr(PT+1)}")
    a(f"v_add_u32 {vr(PV2B)}, 2304, {vr(PV2A)}")
    a(f"v_cmp_gt_u32 vcc, 4, {vr(L)}")
    a("s_nop 1")
    a(f"v_cndmask_b32 {vr(PV2A)}, {vr(PV2A)}, {vr(PT+2)}, vcc")
    a(f"v_add_u32 {vr(PT)}, {sr(S_T2)}, {vr(L)}")
    a(f"v_lshlrev_b32 {vr(PLA)}, 4, {vr(PT)}")
    a(f"v_add_u32 {vr(PLA)}, {OUTP}, {vr(PLA)}")
    a(f"v_lshlrev_b32 {vr(POUT)}, 3, {vr(PT)}")
    a(f"v_cmp_gt_u32 vcc, 36, {vr(L)}")
    a("s_nop 1")
    a(f"v_cndmask_b32 {vr(POUT)}, {vr(PT+2)}, {vr(POUT)}, vcc")
    a(f"s_mul_i32 {sr(S_T0)}, {sr(S_B)}, 1152")
    srd(a, S_SRD3, S_X, S_T0, 1152)
    a(f"buffer_load_dwordx2 {vr(PXB,2)}, {vr(POUT)}, {sr(S_SRD3,4)}, 0 offen")
    srd(a, S_SRD3, S_B2, None, 1152)
    a(f"buffer_load_dwordx2 {vr(PXB+2,2)}, {vr(POUT)}, {sr(S_SRD3,4)}, 0 offen")

def gen_poll_tail(a, cfg):
    V_LANE = 0
    a("s_barrier")
    stamp(a, cfg, 4)
    a("s_branch L_done")
    a.label("L_tail")
    a(f"s_lshl_b32 {sr(S_T0)}, {sr(S_WAVE)}, 10")
    a(f"v_lshl_add_u32 v2, {vr(V_LANE)}, 4, {sr(S_T0)}")
    a(f"v_add_u32 v3, {OUTP}, v2")
    a(f"s_mul_i32 {sr(S_T0)}, {sr(S_WG)}, 2304")
    srd(a, S_SRD3, S_WS, S_T0, 2304)
    a("s_barrier")
    stamp(a, cfg, 4)
    a(f"s_cmp_ge_u32 {sr(S_WAVE)}, 3")
    a("s_cbranch_scc1 L_done")
    for sw in range(4):
        a(f"ds_read_b128 {vr(8+4*sw,4)}, v3 offset:{sw*2560}")
    a("s_waitcnt lgkmcnt(2)")
    a("v_pk_add_f32 v[8:9], v[8:9], v[12:13]")
    a("v_pk_add_f32 v[10:11], v[10:11], v[14:15]")
    a("s_waitcnt lgkmcnt(0)")
    a("v_pk_add_f32 v[16:17], v[16:17], v[20:21]")
    a("v_pk_add_f32 v[18:19], v[18:19], v[22:23]")
    a("v_pk_add_f32 v[8:9], v[8:9], v[16:17]")
    a("v_pk_add_f32 v[10:11], v[10:11], v[18:19]")
    a(f"buffer_store_dwordx4 v[8:11], v2, {sr(S_SRD3,4)}, 0 offen sc1")
    a("s_branch L_done")

    def pload(s):
        if s < 16:
            a(f"s_mov_b32 {sr(S_T0)}, {s*2304}")
            a(f"buffer_load_dwordx4 {vr(PR1+4*s,4)}, {vr(PVO0 if s == 0 else PVO)}, {sr(S_SRD2,4)}, {sr(S_T0)} offen sc1")
        else:
            a(f"buffer_load_dwordx4 {vr(PR2+4*(s-16),4)}, {vr(PV2A if s == 16 else PV2B)}, {sr(S_SRD2,4)}, 0 offen sc1")
    def reg(s): return PR1+4*s if s < 16 else PR2+4*(s-16)
    a.label("L_reducer")
    for s_ in range(18): pload(s_)
    a("s_barrier")
    stamp(a, cfg, 4)
    for sw in range(4):
        a(f"ds_read_b128 {vr(POWN+4*sw,4)}, {vr(PLA)} offset:{sw*2560}")
    a("s_waitcnt lgkmcnt(0)")
    for e in range(4):
        a(f"v_add_f32 {vr(POWN+e)}, {vr(POWN+e)}, {vr(POWN+4+e)}")
        a(f"v_add_f32 {vr(POWN+8+e)}, {vr(POWN+8+e)}, {vr(POWN+12+e)}")
    for e in range(4):
        a(f"v_add_f32 {vr(POWN+e)}, {vr(POWN+e)}, {vr(POWN+8+e)}")
    a(f"s_mov_b32 {sr(S_T1)}, 0xffff0000")
    for src in (PXB, PXB+2):
        a(f"v_lshlrev_b32 {vr(PT)}, 16, {vr(src)}")
        a(f"v_and_b32 {vr(PT+1)}, {sr(S_T1)}, {vr(src)}")
        a(f"v_lshlrev_b32 {vr(PT+2)}, 16, {vr(src+1)}")
        a(f"v_and_b32 {vr(PT+3)}, {sr(S_T1)}, {vr(src+1)}")
        for e in range(4):
            a(f"v_add_f32 {vr(POWN+e)}, {vr(POWN+e)}, {vr(PT+e)}")
    a(f"s_mul_i32 {sr(S_T0)}, {sr(S_B)}, 1152")
    srd(a, S_SRD3, S_OUT, S_T0, 1152)
    a(f"s_mov_b32 {sr(S_CNT)}, 200000")
    TS = PT + 4
    TQ = TS + 32
    a.label("L_poll")
    a(f"s_sub_u32 {sr(S_CNT)}, {sr(S_CNT)}, 1")
    a("s_cbranch_scc1 L_pollok")
    if cfg.POLLDBG:
        a(f"s_mov_b32 {sr(S_STAMP+2)}, {sr(S_STAMP+8)}")
        a(f"s_mov_b32 {sr(S_STAMP+3)}, {sr(S_STAMP+9)}")
        a(f"s_memrealtime {sr(S_STAMP+4,2)}")
    a("s_waitcnt vmcnt(0)")
    if cfg.POLLDBG:
        a(f"s_memrealtime {sr(S_STAMP+8,2)}")
        a("s_waitcnt lgkmcnt(0)")
    for k in range(0, 32, 2):
        a(f"v_pk_add_f32 {vr(TS+k,2)}, {vr(PR1+k,2)}, {vr(PR1+k+32,2)}")
    for k in (0, 2):
        a(f"v_pk_add_f32 {vr(TQ+k,2)}, {vr(PR2+k,2)}, {vr(PR2+4+k,2)}")
    for step in (16, 8, 4):
        for k in range(0, step, 2):
            a(f"v_pk_add_f32 {vr(TS+k,2)}, {vr(TS+k,2)}, {vr(TS+k+step,2)}")
    a(f"v_pk_add_f32 {vr(TS+4,2)}, {vr(TS,2)}, {vr(TS+2,2)}")
    a(f"v_pk_add_f32 {vr(TS+6,2)}, {vr(TQ,2)}, {vr(TQ+2,2)}")
    a(f"v_pk_add_f32 {vr(TS+4,2)}, {vr(TS+4,2)}, {vr(TS+6,2)}")
    a(f"v_cmp_u_f32 vcc, {vr(TS+4)}, {vr(TS+5)}")
    a("s_cbranch_vccz L_pollok")
    MASK = [16,18,20,22,24,26,28,30, 84,86,88,90,92,94,96,98,100, 4]
    tt = [PT, PT+1, PT+2, PT+3]
    for s_ in range(18):
        r = reg(s_); t0 = tt[s_ % 4]
        a(f"v_max3_u32 {vr(t0)}, {vr(r)}, {vr(r+1)}, {vr(r+2)}")
        a(f"v_max_u32 {vr(t0)}, {vr(t0)}, {vr(r+3)}")
        a(f"v_cmp_eq_u32 {sr(MASK[s_],2)}, -1, {vr(t0)}")
    a(f"s_mov_b32 {sr(S_T2)}, 0")
    a("s_nop 2")
    for s_ in range(18):
        a(f"s_cmp_lg_u64 {sr(MASK[s_],2)}, 0")
        a(f"s_cbranch_scc1 L_rl{s_}")
        a.label(f"L_rb{s_}")
    a(f"s_cmp_lg_u32 {sr(S_T2)}, 0")
    a("s_cbranch_scc1 L_poll")
    a("s_branch L_pollok")
    for s_ in range(18):
        a.label(f"L_rl{s_}")
        a(f"s_mov_b64 exec, {sr(MASK[s_],2)}")
        if s_ < 16:
            a(f"s_mov_b32 {sr(S_T0)}, {s_*2304}")
            a(f"buffer_load_dwordx4 {vr(PR1+4*s_,4)}, {vr(PVO0 if s_ == 0 else PVO)}, {sr(S_SRD2,4)}, {sr(S_T0)} offen sc1")
        else:
            a(f"buffer_load_dwordx4 {vr(PR2+4*(s_-16),4)}, {vr(PV2A if s_ == 16 else PV2B)}, {sr(S_SRD2,4)}, 0 offen sc1")
        a("s_mov_b64 exec, -1")
        a(f"s_mov_b32 {sr(S_T2)}, 1")
        a(f"s_branch L_rb{s_}")
    a.label("L_pollok")
    stamp(a, cfg, 5)
    if cfg.POLLDBG:
        a(f"s_sub_u32 {sr(S_STAMP+6)}, 200000, {sr(S_CNT)}")
        a(f"s_mov_b32 {sr(S_STAMP+7)}, 0")
    for e in range(4):
        a(f"v_mov_b32 {vr(PR1+e)}, {vr(TS+e)}")
        a(f"v_mov_b32 {vr(PR2+e)}, {vr(TQ+e)}")
    for e in range(4):
        a(f"v_mov_b32 {vr(PR1+8+e)}, {vr(PR1+e)}")
    a("s_nop 1")
    for e in range(4):
        a(f"v_permlane32_swap_b32 {vr(PR1+e)}, {vr(PR1+8+e)}")
    for r_ in (4, 8):
        for e in range(4):
            a(f"v_add_f32_dpp {vr(PR2+e)}, {vr(PR2+e)}, {vr(PR2+e)} row_ror:{r_} row_mask:0xf bank_mask:0xf")
    for e in range(4):
        a(f"v_add_f32 {vr(PR1+e)}, {vr(PR1+e)}, {vr(PR1+8+e)}")
    for e in range(4):
        a(f"v_mov_b32 {vr(PR2+4+e)}, {vr(PR2+e)}")
    a("s_nop 1")
    for e in range(4):
        a(f"v_permlane16_swap_b32 {vr(PR2+e)}, {vr(PR2+4+e)}")
    a("s_nop 1")
    for e in range(4):
        a(f"v_add_f32 {vr(PR2+e)}, {vr(PR2+e)}, {vr(PR2+4+e)}")
    for e in range(4):
        a(f"v_mov_b32 {vr(PR2+4+e)}, {vr(PR2+e)}")
    a("s_nop 1")
    for e in range(4):
        a(f"v_permlane32_swap_b32 {vr(PR2+e)}, {vr(PR2+4+e)}")
    a("s_nop 1")
    for e in range(4):
        a(f"v_add_f32 {vr(PR2+e)}, {vr(PR2+e)}, {vr(PR2+4+e)}")
    a(f"v_cmp_gt_u32 vcc, 32, {vr(V_LANE)}")
    a(f"s_mov_b32 {sr(S_T1)}, 0xffff0000")
    a("s_nop 0")
    for e in range(4):
        a(f"v_cndmask_b32 {vr(PR1+e)}, {vr(PR2+e)}, {vr(PR1+e)}, vcc")
    for e in range(4):
        a(f"v_add_f32 {vr(PR1+e)}, {vr(PR1+e)}, {vr(POWN+e)}")
    a(f"v_cvt_pk_bf16_f32 {vr(PR1)}, {vr(PR1)}, {vr(PR1+1)}")
    a(f"v_cvt_pk_bf16_f32 {vr(PR1+1)}, {vr(PR1+2)}, {vr(PR1+3)}")
    a(f"buffer_store_dwordx2 {vr(PR1,2)}, {vr(POUT)}, {sr(S_SRD3,4)}, 0 offen")

def gen_tail(a, cfg):
    V_LANE=0
    if cfg.POLL:
        gen_poll_tail(a, cfg)
    else:
        gen_count_tail(a, cfg)
    gen_end(a, cfg)

def gen_count_tail(a, cfg):
    V_LANE=0
    a.label("L_tail")
    a("s_barrier")
    stamp(a, cfg, 4)
    a(f"s_cmp_lg_u32 {sr(S_WAVE)}, 0")
    a("s_cbranch_scc1 L_wait_flag")
    a(f"v_lshlrev_b32 v2, 4, {vr(V_LANE)}")
    a(f"v_add_u32 v3, {OUTP}, v2")
    for k in range(3):
        for sw in range(4):
            a(f"ds_read_b128 {vr(8+16*k+4*sw,4)}, v3 offset:{sw*2560 + k*1024}")
    a(f"s_mul_i32 {sr(S_T0)}, {sr(S_WG)}, 2304")
    srd(a, S_SRD2, S_WS, S_T0, 2304)
    for k in range(3):
        a(f"s_waitcnt lgkmcnt({8-4*k})")
        b = 8+16*k
        for e in range(4):
            a(f"v_add_f32 {vr(b+e)}, {vr(b+e)}, {vr(b+4+e)}")
            a(f"v_add_f32 {vr(b+8+e)}, {vr(b+8+e)}, {vr(b+12+e)}")
        for e in range(4):
            a(f"v_add_f32 {vr(b+e)}, {vr(b+e)}, {vr(b+8+e)}")
        a(f"buffer_store_dwordx4 {vr(b,4)}, v2, {sr(S_SRD2,4)}, 0 offen offset:{1024*k} sc1")
    a("s_waitcnt vmcnt(0)")
    a(f"s_lshl_b32 {sr(S_T0)}, {sr(S_B)}, 5")
    a(f"v_mov_b32 v4, {sr(S_T0)}")
    a("v_mov_b32 v5, 1")
    a("s_mov_b64 exec, 1")
    a(f"global_atomic_add v6, v4, v5, {sr(S_DBG,2)} sc0")
    a("s_waitcnt vmcnt(0)")
    a(f"v_mov_b32 v7, {FLAG}")
    a("ds_write_b32 v7, v6")
    a("s_mov_b64 exec, -1")
    a("s_waitcnt lgkmcnt(0)")
    a.label("L_wait_flag")
    a("s_barrier")
    stamp(a, cfg, 5)
    a(f"v_mov_b32 v7, {FLAG}")
    a("ds_read_b32 v6, v7")
    a("s_waitcnt lgkmcnt(0)")
    a("s_nop 0")
    a(f"v_readfirstlane_b32 {sr(S_T0)}, v6")
    a("s_nop 3")
    a(f"s_cmp_lg_u32 {sr(S_T0)}, 31")
    a("s_cbranch_scc1 L_done")
    a(f"s_mul_i32 {sr(S_T0)}, {sr(S_B)}, {32*2304}")
    srd(a, S_SRD2, S_WS, S_T0, 32*2304)
    a(f"v_lshlrev_b32 v2, 4, {vr(V_LANE)}")
    a(f"v_add_u32 v3, 2048, v2")
    a("v_mov_b32 v4, 0x7f000000")
    a(f"v_cmp_gt_u32 vcc, 16, {vr(V_LANE)}")
    a("s_nop 1")
    a("v_cndmask_b32 v3, v4, v3, vcc")
    a(f"s_mul_i32 {sr(S_T1)}, {sr(S_WAVE)}, {4*2304}")
    for u in range(4):
        a(f"buffer_load_dwordx4 {vr(8+12*u,4)}, v2, {sr(S_SRD2,4)}, {sr(S_T1)} offen sc1")
        a(f"buffer_load_dwordx4 {vr(12+12*u,4)}, v2, {sr(S_SRD2,4)}, {sr(S_T1)} offen offset:1024 sc1")
        a(f"buffer_load_dwordx4 {vr(16+12*u,4)}, v3, {sr(S_SRD2,4)}, {sr(S_T1)} offen sc1")
        if u < 3: a(f"s_add_u32 {sr(S_T1)}, {sr(S_T1)}, 2304")
    a(f"s_mul_i32 {sr(S_T0)}, {sr(S_B)}, 1152")
    srd(a, S_SRD3, S_X, S_T0, 1152)
    srd(a, S_SRDK, S_B2, None, 1152)
    a(f"s_lshl_b32 {sr(S_T2)}, {sr(S_WAVE)}, 6")
    a(f"v_add_u32 v5, {sr(S_T2)}, {vr(V_LANE)}")
    a("v_lshlrev_b32 v6, 3, v5")
    a(f"buffer_load_dwordx2 v[60:61], v6, {sr(S_SRD3,4)}, 0 offen")
    a(f"buffer_load_dwordx2 v[62:63], v6, {sr(S_SRDK,4)}, 0 offen")
    a("s_waitcnt vmcnt(2)")
    for e in range(12):
        a(f"v_add_f32 {vr(8+e)}, {vr(8+e)}, {vr(20+e)}")
        a(f"v_add_f32 {vr(32+e)}, {vr(32+e)}, {vr(44+e)}")
    for e in range(12):
        a(f"v_add_f32 {vr(8+e)}, {vr(8+e)}, {vr(32+e)}")
    a(f"s_mul_i32 {sr(S_T0)}, {sr(S_WAVE)}, 3072")
    a(f"v_add_u32 v7, {sr(S_T0)}, v2")
    for k in range(3):
        a(f"ds_write_b128 v7, {vr(8+4*k,4)} offset:{RED + 1024*k}")
    a("s_waitcnt lgkmcnt(0)")
    a("s_barrier")
    a(f"s_cmp_ge_u32 {sr(S_WAVE)}, 3")
    a("s_cbranch_scc1 L_done")
    a("v_lshlrev_b32 v7, 4, v5")
    for w in range(8):
        a(f"ds_read_b128 {vr(8+4*w,4)}, v7 offset:{RED + 3072*w}")
    a("s_waitcnt lgkmcnt(0)")
    for e in range(4):
        a(f"v_add_f32 {vr(8+e)}, {vr(8+e)}, {vr(12+e)}")
        a(f"v_add_f32 {vr(16+e)}, {vr(16+e)}, {vr(20+e)}")
        a(f"v_add_f32 {vr(24+e)}, {vr(24+e)}, {vr(28+e)}")
        a(f"v_add_f32 {vr(32+e)}, {vr(32+e)}, {vr(36+e)}")
    for e in range(4):
        a(f"v_add_f32 {vr(8+e)}, {vr(8+e)}, {vr(16+e)}")
        a(f"v_add_f32 {vr(24+e)}, {vr(24+e)}, {vr(32+e)}")
    for e in range(4):
        a(f"v_add_f32 {vr(8+e)}, {vr(8+e)}, {vr(24+e)}")
    a("s_waitcnt vmcnt(0)")
    a(f"s_mov_b32 {sr(S_T1)}, 0xffff0000")
    for (src) in (60, 62):
        a(f"v_lshlrev_b32 v40, 16, {vr(src)}")
        a(f"v_and_b32 v41, {sr(S_T1)}, {vr(src)}")
        a(f"v_lshlrev_b32 v42, 16, {vr(src+1)}")
        a(f"v_and_b32 v43, {sr(S_T1)}, {vr(src+1)}")
        for e in range(4):
            a(f"v_add_f32 {vr(8+e)}, {vr(8+e)}, {vr(40+e)}")
    a("v_cvt_pk_bf16_f32 v8, v8, v9")
    a("v_cvt_pk_bf16_f32 v9, v10, v11")
    a(f"s_mul_i32 {sr(S_T0)}, {sr(S_B)}, 1152")
    srd(a, S_SRD2, S_OUT, S_T0, 1152)
    a(f"buffer_store_dwordx2 v[8:9], v6, {sr(S_SRD2,4)}, 0 offen")

def gen_end(a, cfg):
    a.label("L_done")
    if cfg.SPINTO or cfg.SPINX >= 0:
        a(f"s_cmp_lg_u32 {sr(S_WAVE)}, 0")
        a("s_cbranch_scc1 L_exit")
        a(f"s_memrealtime {sr(S_STAMP+12,2)}")
        a("s_waitcnt lgkmcnt(0)")
        if cfg.SPINTO:
            a(f"s_add_u32 {sr(S_T2)}, {sr(S_STAMP)}, {cfg.SPINTO}")
        else:
            a(f"s_sub_u32 {sr(S_T2)}, {sr(S_STAMP+2*cfg.SPINX)}, {sr(S_STAMP)}")
            a(f"s_add_u32 {sr(S_T2)}, {sr(S_T2)}, {sr(S_STAMP+12)}")
        a.label("L_spin")
        a(f"s_memrealtime {sr(S_STAMP+12,2)}")
        a("s_waitcnt lgkmcnt(0)")
        a(f"s_sub_u32 {sr(S_T3)}, {sr(S_STAMP+12)}, {sr(S_T2)}")
        a(f"s_cmp_lt_i32 {sr(S_T3)}, 0")
        a("s_cbranch_scc1 L_spin")
    if cfg.DBGT:
        a(f"s_memrealtime {sr(S_STAMP+12,2)}")
        a("s_waitcnt lgkmcnt(0)")
        a(f"s_cmp_lg_u32 {sr(S_WAVE)}, 0")
        a("s_cbranch_scc1 L_exit")
        a("s_mov_b64 exec, 1")
        a("v_mov_b32 v2, 0")
        for (w, idx, inv) in [(1,0,True),(2,2,False),(3,3,False),(4,6,False),(5,3,True),(6,6,True),(7,2,True)]:
            a(f"v_mov_b32 v4, {sr(S_STAMP+2*idx)}")
            if inv: a("v_not_b32 v4, v4")
            a(f"global_atomic_umax v2, v4, {sr(S_DBG,2)} offset:{4*w}")
    if cfg.STAMPS:
        stamp(a, cfg, 6)
        a("s_waitcnt lgkmcnt(0)")
        a(f"s_lshl_b32 {sr(S_T0)}, {sr(S_WG)}, 3")
        a(f"s_add_u32 {sr(S_T0)}, {sr(S_T0)}, {sr(S_WAVE)}")
        a(f"s_lshl_b32 {sr(S_T0)}, {sr(S_T0)}, 6")
        a(f"s_add_u32 {sr(S_T0)}, {sr(S_T0)}, 0x100000")
        a(f"v_mov_b32 v2, {sr(S_T0)}")
        a("s_mov_b64 exec, 1")
        for k in range(7):
            a(f"v_mov_b32 v4, {sr(S_STAMP+2*k)}")
            a(f"v_mov_b32 v5, {sr(S_STAMP+2*k+1)}")
            a(f"global_store_dwordx2 v2, v[4:5], {sr(S_WS,2)} offset:{8*k}")
    a.label("L_exit")
    a("s_endpgm")

def generate(cfg):
    a = Asm()
    stamp(a, cfg, 0)
    a(f"s_cmp_ge_u32 {sr(S_WG)}, 256")
    a("s_cbranch_scc1 L_exit")
    a(f"s_load_dwordx4 {sr(S_K,4)}, s[0:1], 8")
    a(f"s_load_dwordx2 {sr(S_X,2)}, s[0:1], 0")
    a(f"s_load_dwordx4 {sr(S_WQ,4)}, s[0:1], 24")
    a(f"s_load_dwordx4 {sr(S_W1,4)}, s[0:1], 48")
    a(f"s_load_dwordx4 {sr(S_W2,4)}, s[0:1], 64")
    a(f"s_load_dwordx4 {sr(S_OUT,4)}, s[0:1], 80")
    a(f"s_load_dwordx2 {sr(S_WS,2)}, s[0:1], 96")
    a("v_lshrrev_b32 v1, 6, v0")
    a(f"s_lshr_b32 {sr(S_B)}, {sr(S_WG)}, 5")
    a(f"v_readfirstlane_b32 {sr(S_WAVE)}, v1")
    if cfg.HMAP:
        a(f"s_and_b32 {sr(S_H)}, {sr(S_WG)}, 7")
        a(f"s_lshl_b32 {sr(S_H)}, {sr(S_H)}, 2")
        a(f"s_bfe_u32 {sr(S_T0)}, {sr(S_WG)}, 0x20003")
        a(f"s_add_u32 {sr(S_H)}, {sr(S_H)}, {sr(S_T0)}")
    else:
        a(f"s_and_b32 {sr(S_H)}, {sr(S_WG)}, 31")
    a("v_and_b32 v0, 63, v0")
    if cfg.HMAP:
        a(f"s_lshl_b32 {sr(S_WG)}, {sr(S_B)}, 5")
        a(f"s_add_u32 {sr(S_WG)}, {sr(S_WG)}, {sr(S_H)}")
    a("s_nop 1")
    a(f"s_cmp_ge_u32 {sr(S_WAVE)}, 4")
    if not cfg.SR: a("s_waitcnt lgkmcnt(0)")
    a("s_cbranch_scc1 L_side")
    (gen_stream_sr if cfg.SR else gen_stream)(a, cfg)
    gen_side(a, cfg)
    gen_tail(a, cfg)
    body = a.text()
    hdr = f"""; Fused decode block: LN -> (MHA over KV cache -> out proj) + (LN -> MLP) + residual.
; Kernarg layout (104 bytes): A_x, K, V, wq, wo, B_x, w1, b1, w2, b2, out, debug, ws
; @launch grid=(256,1,1) block=(512,1,1) lds={LDS_BYTES}
.amdgcn_target "amdgcn-amd-amdhsa--gfx950"
.text
.globl {KNAME}
.p2align 8
.type {KNAME},@function
{KNAME}:
"""
    ftr = f"""
.section .rodata,"a"
.p2align 6
.amdhsa_kernel {KNAME}
  .amdhsa_next_free_vgpr 256
  .amdhsa_next_free_sgpr 102
  .amdhsa_accum_offset 256
  .amdhsa_group_segment_fixed_size 0
  .amdhsa_kernarg_size 104
  .amdhsa_user_sgpr_count 2
  .amdhsa_user_sgpr_kernarg_segment_ptr 1
  .amdhsa_system_sgpr_workgroup_id_x 1
  .amdhsa_float_denorm_mode_32 3
.end_amdhsa_kernel
"""
    return hdr + body + ftr

if __name__ == "__main__":
    cfg = Cfg()
    out = sys.argv[1]
    for kv in sys.argv[2:]:
        k, v = kv.split("=")
        cur = getattr(cfg, k)
        if isinstance(cur, bool): v = v in ("1","True","true")
        elif isinstance(cur, int): v = int(v)
        setattr(cfg, k, v)
    open(out, "w").write(generate(cfg))
    print("wrote", out, "LDS", LDS_BYTES)
```

```python
import sys, math

KNAME = "parallel_sum__mha_block_cached__mixer_channel_mlp__decode_kernel"

class Cfg:
    N = 5
    RUNAHEAD = 56
    PROUNDS = 4
    XTRA = 1
    RSCORE = 1
    RAMP = ''
    MMAP = 1
    POLLDBG = False
    D2 = 0
    D3 = 3
    SR = 1
    DQ = 4
    ROT2 = 0
    HMAP = 0
    STARTSIG = 'atomic'
    CTLSTOP = 1
    VERS = '5,7'
    WPOL = ''
    CTL = ''
    NT = 7
    KT = 1
    POLL = True
    RED_H = 0
    K0 = 1
    B2_ITER = 3
    WFLAGS = ""
    NOSIDE = False
    NOCONS = False
    ITSTAMP = False
    DEPTH = 2
    ROT = True
    DBGT = False
    SPINTO = 0
    SPINX = -1
    PROSTAMP = False
    KFLAGS = "nt"
    VFLAGS = "nt"
    STAMPS = False
    PRIO = 2
    perm = 0

RING = 0
MISC = 131072
QPART = MISC
QBF   = QPART + 2048
HPART = QBF + 1024
OPART = HPART + 4096
ML    = OPART + 2048
OUTP  = ML + 64
XPRIV = OUTP
FLAG  = OUTP + 10240
LDS_END = FLAG + 64
RED   = 0
LDS_BYTES = (LDS_END + 1024 + 255)//256*256

C_SCALE = (128 ** -0.5) * math.log2(math.e)

import struct
def f2u(x): return struct.unpack("<I", struct.pack("<f", x))[0]
def hexf(x): return "0x%08x" % f2u(x)

class Asm:
    def __init__(self): self.L = []
    def __call__(self, s): self.L.append("  " + s)
    def label(self, s): self.L.append(s + ":")
    def c(self, s): self.L.append("  ; " + s)
    def text(self): return "\n".join(self.L)

def vr(b, n=1): return f"v{b}" if n == 1 else f"v[{b}:{b+n-1}]"
def sr(b, n=1): return f"s{b}" if n == 1 else f"s[{b}:{b+n-1}]"

S_WG=2; S_WAVE=3
S_K=4; S_V=6
S_SRDK=8; S_SRDV=12
S_X=16
S_WQ=20; S_WO=22
S_W1=24; S_B1=26
S_W2=28; S_B2=30
S_OUT=32; S_DBG=34
S_WS=36
S_B=38; S_H=39; S_M=63
S_T0=40; S_T1=41; S_T2=42; S_T3=43
S_OFFA=44; S_OFFB=45; S_RING=46; S_CNT=47
S_C=48
S_SRD2=52
S_SRD3=56
S_EX=60
S_SW=62
S_STAMP=64
S_MASKHI=80
S_TS=82

def allreduce_sum(a, v, t):
    for r in (8,4,2,1):
        a("s_nop 1")
        a(f"v_add_f32_dpp {vr(v)}, {vr(v)}, {vr(v)} row_ror:{r} row_mask:0xf bank_mask:0xf")
    a(f"v_mov_b32 {vr(t)}, {vr(v)}")
    a("s_nop 1")
    a(f"v_permlane16_swap_b32 {vr(v)}, {vr(t)}")
    a("s_nop 1")
    a(f"v_add_f32 {vr(v)}, {vr(v)}, {vr(t)}")
    a(f"v_mov_b32 {vr(t)}, {vr(v)}")
    a("s_nop 1")
    a(f"v_permlane32_swap_b32 {vr(v)}, {vr(t)}")
    a("s_nop 1")
    a(f"v_add_f32 {vr(v)}, {vr(v)}, {vr(t)}")

def groups_allreduce(a, v, t, op):
    a(f"v_mov_b32 {vr(t)}, {vr(v)}")
    a("s_nop 1")
    a(f"v_permlane16_swap_b32 {vr(v)}, {vr(t)}")
    a("s_nop 1")
    a(f"{op} {vr(v)}, {vr(v)}, {vr(t)}")
    a(f"v_mov_b32 {vr(t)}, {vr(v)}")
    a("s_nop 1")
    a(f"v_permlane32_swap_b32 {vr(v)}, {vr(t)}")
    a("s_nop 1")
    a(f"{op} {vr(v)}, {vr(v)}, {vr(t)}")

def make_selectors(a, lane, selE, selO, t0, t1, t2, t3):
    a(f"v_and_b32 {vr(t0)}, 15, {vr(lane)}")
    a(f"v_and_b32 {vr(t1)}, 1, {vr(t0)}")
    a(f"v_mov_b32 {vr(t2)}, 0x0c0c0100")
    a(f"v_mov_b32 {vr(t3)}, 0x01000c0c")
    a(f"v_cmp_eq_u32 vcc, 1, {vr(t1)}")
    a("s_nop 1")
    a(f"v_cndmask_b32 {vr(t2)}, {vr(t2)}, {vr(t3)}, vcc")
    a(f"v_mov_b32 {vr(t3)}, 0x0c0c0302")
    a(f"v_mov_b32 {vr(t1)}, 0x03020c0c")
    a(f"v_cndmask_b32 {vr(t3)}, {vr(t3)}, {vr(t1)}, vcc")
    a(f"v_lshrrev_b32 {vr(t0)}, 1, {vr(t0)}")
    a(f"v_mov_b32 {vr(t1)}, 0x0c0c0c0c")
    for k in range(4):
        a(f"v_cmp_eq_u32 vcc, {k}, {vr(t0)}")
        a("s_nop 1")
        a(f"v_cndmask_b32 {vr(selE+k)}, {vr(t1)}, {vr(t2)}, vcc")
        a(f"v_cndmask_b32 {vr(selO+k)}, {vr(t1)}, {vr(t3)}, vcc")

def diag(a, dst, P, parity, selE, selO):
    sel = selO if parity else selE
    for k in range(4):
        a(f"v_perm_b32 {vr(dst+k)}, {vr(P)}, {vr(P)}, {vr(sel+k)}")

def mfma(a, D, A, B, C):
    c = "0" if C is None else vr(C,4)
    a(f"v_mfma_f32_16x16x32_bf16 {vr(D,4)}, {vr(A,4)}, {vr(B,4)}, {c}")

def stamp(a, cfg, idx):
    if cfg.PROSTAMP and idx in (2,4,5): return
    if cfg.STAMPS or ((cfg.DBGT or cfg.SPINTO or cfg.SPINX >= 0) and idx in (0,1,2,3)):
        a(f"s_memrealtime {sr(S_STAMP+2*idx,2)}")

def srd(a, d, base, off_lo_sreg_or_none, size):
    if off_lo_sreg_or_none is None:
        a(f"s_mov_b32 {sr(d)}, {sr(base)}")
        a(f"s_mov_b32 {sr(d+1)}, {sr(base+1)}")
    else:
        a(f"s_add_u32 {sr(d)}, {sr(base)}, {sr(off_lo_sreg_or_none)}")
        a(f"s_addc_u32 {sr(d+1)}, {sr(base+1)}, 0")
    if isinstance(size, int):
        a(f"s_mov_b32 {sr(d+2)}, {size}")
    else:
        a(f"s_mov_b32 {sr(d+2)}, {size}")
    a(f"s_mov_b32 {sr(d+3)}, 0x20000")

def gen_stream(a, cfg):
    N = cfg.N
    LAG = 3 + N
    PR = cfg.PROUNDS
    assert PR in (0, 2, 4)
    V_LANE=0
    VK=2
    VV=6
    VVD=7
    VKR=8
    VVR=12
    VT=13
    VQ=16
    VA=32
    VS=48
    VP=56
    VAO=60
    VO=68
    VM=72; VL=73; VAL=74; VMC=75
    SELE=76; SELO=80
    VX=84
    VD=96

    a.label("L_stream")
    if cfg.PRIO: a(f"s_setprio {cfg.PRIO}")
    a(f"s_lshl_b32 {sr(S_T0)}, {sr(S_WG)}, 20")
    srd(a, S_SRDK, S_K, S_T0, 0x100000)
    srd(a, S_SRDV, S_V, S_T0, 0x100000)
    a(f"s_lshl_b32 {sr(S_OFFA)}, {sr(S_WAVE)}, 13")
    a(f"s_add_u32 {sr(S_OFFB)}, {sr(S_OFFA)}, 4096")
    a(f"s_lshl_b32 {sr(S_RING)}, {sr(S_WAVE)}, 15")

    NP = 16*PR
    def load_desc(i):
        if i < NP:
            r, p = divmod(i, 16)
            half = (p % 8)//4; j = p % 4
            if p < 8: return dict(kind='K', j=j, half=half, slot=2*r+half, last=False, req=None)
            return dict(kind='VD', j=j, half=half, dst=VD+32*r+16*half+4*j, last=(p == 15), req=None)
        ip = i - NP
        g = ip//4; j = ip % 4; pos = (ip % 16)//4
        slot = g % 8
        if ip < 32:
            req = None if slot >= 2*PR else 4*(slot//2) + (slot % 2)
        else:
            req = 4*PR + (ip-32)//4
        return dict(kind='K' if pos < 2 else 'V', j=j, half=pos % 2, slot=slot, last=(ip % 16 == 15), req=req)
    def unit_desc(u):
        if u < 4*PR:
            r, pos = divmod(u, 4)
            if pos < 2: return dict(pos=pos, slot=2*r+pos, need=16*r+4*pos+3, direct=None)
            return dict(pos=pos, slot=None, need=16*r+8+4*(pos-2)+3, direct=VD+32*r+16*(pos-2))
        g = u - 4*PR
        return dict(pos=g % 4, slot=g % 8, need=NP+4*g+3, direct=None)

    state = {"m0": None}
    win = {"n": N}
    def issue(i, wait=True):
        d = load_desc(i)
        so = S_OFFB if d['half'] else S_OFFA
        if d['kind'] != 'VD' and state["m0"] != d['slot']:
            a(f"s_add_u32 m0, {sr(S_RING)}, {d['slot']*4096}")
            state["m0"] = d['slot']
            if not wait: a("s_nop 0")
        if wait: a(f"s_waitcnt vmcnt({win['n']-1})")
        j = d['j']
        if d['kind'] == 'K':
            a(f"buffer_load_dwordx4 {vr(VK+j)}, {sr(S_SRDK,4)}, {sr(so)} offen offset:{j*1024} {cfg.KFLAGS} lds")
        elif d['kind'] == 'V':
            a(f"buffer_load_dwordx4 {vr(VV)}, {sr(S_SRDV,4)}, {sr(so)} offen offset:{j*1024} {cfg.VFLAGS} lds")
        else:
            a(f"buffer_load_dwordx4 {vr(d['dst'],4)}, {vr(VVD)}, {sr(S_SRDV,4)}, {sr(so)} offen offset:{j*256} {cfg.VFLAGS}")
        if d['last']:
            a(f"s_add_u32 {sr(S_OFFA)}, {sr(S_OFFA)}, 32768")
            a(f"s_add_u32 {sr(S_OFFB)}, {sr(S_OFFB)}, 32768")

    def piece(u, p):
        if cfg.NOCONS: return
        d = unit_desc(u)
        pos = d['pos']
        if pos < 2:
            S = VS + 4*pos
            slot = d['slot']*4096
            if p == 0:
                for t in range(4):
                    a(f"ds_read_b128 {vr(VA+4*t,4)}, {vr(VKR+t)} offset:{slot}")
            elif p == 1:
                for t in range(4):
                    a(f"s_waitcnt lgkmcnt({3-t})")
                    mfma(a, S, VA+4*t, VQ+4*t, None if t == 0 else S)
            elif pos == 1 and p == 2:
                softmax_a()
            elif pos == 1 and p == 3:
                softmax_b()
        else:
            half = pos - 2
            if d['direct'] is None:
                if p == 0:
                    for r in range(4):
                        a(f"ds_read_b128 {vr(VA+4*r,4)}, {vr(VVR)} offset:{d['slot']*4096 + r*256}")
                r = p
                ao = VAO + 4*(r&1)
                diag(a, ao, VP + 2*half + (r>>1), r&1, SELE, SELO)
                a(f"s_waitcnt lgkmcnt({3-r})")
                a("s_nop 0")
                mfma(a, VO, ao, VA+4*r, VO)
            else:
                r = p
                ao = VAO + 4*(r&1)
                diag(a, ao, VP + 2*half + (r>>1), r&1, SELE, SELO)
                a("s_nop 1")
                mfma(a, VO, ao, d['direct']+4*r, VO)

    def softmax_a():
        a(f"v_max3_f32 {vr(VX)}, {vr(VS)}, {vr(VS+1)}, {vr(VS+2)}")
        a(f"v_max3_f32 {vr(VX)}, {vr(VX)}, {vr(VS+3)}, {vr(VM)}")
        a("s_nop 5")
        a(f"v_max3_f32 {vr(VX+1)}, {vr(VS+4)}, {vr(VS+5)}, {vr(VS+6)}")
        a(f"v_max3_f32 {vr(VX)}, {vr(VX)}, {vr(VS+7)}, {vr(VX+1)}")
        groups_allreduce(a, VX, VX+1, "v_max_f32")
        a(f"v_sub_f32 {vr(VAL)}, {vr(VM)}, {vr(VX)}")
        a(f"v_mul_f32 {vr(VMC)}, {sr(S_C)}, {vr(VX)}")
        a(f"v_mul_f32 {vr(VAL)}, {sr(S_C)}, {vr(VAL)}")
        a(f"v_mov_b32 {vr(VM)}, {vr(VX)}")
        a(f"v_exp_f32 {vr(VAL)}, {vr(VAL)}")
        for r in range(8):
            a(f"v_fma_f32 {vr(VS+r)}, {vr(VS+r)}, {sr(S_C)}, -{vr(VMC)}")
    def softmax_b():
        for r in range(8):
            a(f"v_exp_f32 {vr(VS+r)}, {vr(VS+r)}")
        for r in range(4):
            a(f"v_mul_f32 {vr(VO+r)}, {vr(VO+r)}, {vr(VAL)}")
        a(f"v_mul_f32 {vr(VL)}, {vr(VL)}, {vr(VAL)}")
        a(f"v_add_f32 {vr(VX)}, {vr(VS)}, {vr(VS+1)}")
        a(f"v_add_f32 {vr(VX+1)}, {vr(VS+2)}, {vr(VS+3)}")
        a(f"v_add_f32 {vr(VX+2)}, {vr(VS+4)}, {vr(VS+5)}")
        a(f"v_add_f32 {vr(VX+3)}, {vr(VS+6)}, {vr(VS+7)}")
        for r in range(4):
            a(f"v_cvt_pk_bf16_f32 {vr(VP+r)}, {vr(VS+2*r)}, {vr(VS+2*r+1)}")
        a(f"v_add_f32 {vr(VX)}, {vr(VX)}, {vr(VX+1)}")
        a(f"v_add_f32 {vr(VX+2)}, {vr(VX+2)}, {vr(VX+3)}")
        a(f"v_add_f32 {vr(VL)}, {vr(VL)}, {vr(VX)}")
        a(f"v_add_f32 {vr(VL)}, {vr(VL)}, {vr(VX+2)}")

    a(f"v_lshrrev_b32 {vr(VT)}, 4, {vr(V_LANE)}")
    a(f"v_and_b32 {vr(VT+1)}, 15, {vr(V_LANE)}")
    for j in range(4):
        a(f"v_add_u32 {vr(VK+j)}, {4*j}, {vr(VT)}")
        a(f"v_xor_b32 {vr(VK+j)}, {vr(VK+j)}, {vr(VT+1)}")
        a(f"v_lshlrev_b32 {vr(VK+j)}, 4, {vr(VK+j)}")
        a(f"v_lshl_add_u32 {vr(VK+j)}, {vr(VT)}, 8, {vr(VK+j)}")
    for i in range(N): issue(i, wait=False)
    a(f"v_lshlrev_b32 {vr(VV)}, 4, {vr(V_LANE)}")
    a(f"v_lshlrev_b32 {vr(VVD)}, 10, {vr(VT)}")
    a(f"v_lshl_add_u32 {vr(VVD)}, {vr(VT+1)}, 4, {vr(VVD)}")
    for t in range(4):
        a(f"v_add_u32 {vr(VKR+t)}, {4*t}, {vr(VT)}")
        a(f"v_xor_b32 {vr(VKR+t)}, {vr(VKR+t)}, {vr(VT+1)}")
        a(f"v_lshlrev_b32 {vr(VKR+t)}, 4, {vr(VKR+t)}")
        a(f"v_lshl_add_u32 {vr(VKR+t)}, {vr(VT+1)}, 8, {vr(VKR+t)}")
        a(f"v_add_u32 {vr(VKR+t)}, {sr(S_RING)}, {vr(VKR+t)}")
    a(f"v_add_u32 {vr(VVR)}, {sr(S_RING)}, {vr(VVD)}")
    make_selectors(a, V_LANE, SELE, SELO, VX, VX+1, VX+2, VX+3)
    a(f"v_mov_b32 {vr(VM)}, 0xff800000")
    a(f"v_mov_b32 {vr(VL)}, 0")
    for r in range(4): a(f"v_mov_b32 {vr(VO+r)}, 0")
    a(f"s_mov_b32 {sr(S_C)}, {hexf(C_SCALE)}")

    RA = cfg.RUNAHEAD
    for i in range(N, RA):
        assert load_desc(i)['req'] is None
        issue(i)
        if cfg.PROSTAMP and i == N: a(f"s_memrealtime {sr(S_STAMP+4,2)}")
        if cfg.PROSTAMP and i == 20: a(f"s_memrealtime {sr(S_STAMP+8,2)}")
        if cfg.PROSTAMP and i == 40: a(f"s_memrealtime {sr(S_STAMP+10,2)}")
    stamp(a, cfg, 1)
    a("s_barrier")
    stamp(a, cfg, 2)
    nxt = RA
    def try_issue(done_units):
        nonlocal nxt
        d = load_desc(nxt)
        if d['req'] is not None and d['req'] >= done_units: return False
        issue(nxt); nxt += 1
        return True
    a(f"v_lshlrev_b32 {vr(VX)}, 4, {vr(V_LANE)}")
    a(f"v_and_b32 {vr(VX)}, 0x1ff, {vr(VX)}")
    a(f"v_add_u32 {vr(VX)}, {QPART}, {vr(VX)}")
    for p in range(4):
        a(f"ds_read_b128 {vr(VA+4*p,4)}, {vr(VX)} offset:{p*512}")
    try_issue(0); try_issue(0)
    a("s_waitcnt lgkmcnt(0)")
    for e in range(4):
        a(f"v_add_f32 {vr(VA+e)}, {vr(VA+e)}, {vr(VA+4+e)}")
        a(f"v_add_f32 {vr(VA+8+e)}, {vr(VA+8+e)}, {vr(VA+12+e)}")
    for e in range(4):
        a(f"v_add_f32 {vr(VA+e)}, {vr(VA+e)}, {vr(VA+8+e)}")
    a(f"v_cvt_pk_bf16_f32 {vr(VA+4)}, {vr(VA)}, {vr(VA+1)}")
    a(f"v_cvt_pk_bf16_f32 {vr(VA+5)}, {vr(VA+2)}, {vr(VA+3)}")
    a(f"v_lshlrev_b32 {vr(VX+1)}, 3, {vr(V_LANE)}")
    a(f"v_and_b32 {vr(VX+1)}, 0xff, {vr(VX+1)}")
    a(f"s_lshl_b32 {sr(S_T0)}, {sr(S_WAVE)}, 8")
    a(f"s_add_u32 {sr(S_T0)}, {sr(S_T0)}, {QBF}")
    a(f"v_add_u32 {vr(VX+1)}, {sr(S_T0)}, {vr(VX+1)}")
    a(f"ds_write_b64 {vr(VX+1)}, {vr(VA+4,2)}")
    a(f"v_lshrrev_b32 {vr(VX+2)}, 4, {vr(V_LANE)}")
    a(f"v_lshlrev_b32 {vr(VX+2)}, 4, {vr(VX+2)}")
    a(f"v_add_u32 {vr(VX+2)}, {sr(S_T0)}, {vr(VX+2)}")
    a("s_waitcnt lgkmcnt(0)")
    for t in range(4):
        a(f"ds_read_b128 {vr(VQ+4*t,4)}, {vr(VX+2)} offset:{t*64}")
    try_issue(0)
    a("s_waitcnt lgkmcnt(0)")
    VERS = [int(x) for x in cfg.VERS.split(',')]
    NMAX = max(VERS + [N])
    U0 = 4*PR + 8*cfg.K0
    target = NP + 32*cfg.K0 + NMAX + 3
    u = 0
    while u < U0 or nxt < target:
        d = unit_desc(u) if u < U0 else None
        if d is not None and nxt - 1 - N >= d['need']:
            ahead = (nxt - 1 - N) - d['need']
            for p in range(4):
                piece(u, p)
                want = (ahead < 2) or (p in (1, 3))
                if want and nxt < target:
                    try_issue(u)
            u += 1
        else:
            if not (nxt < target and try_issue(u)):
                raise RuntimeError(f"schedule deadlock u={u} nxt={nxt}")
    assert nxt == target and u == U0, (nxt, target, u, U0)
    if cfg.POLL:
        poll_setup(a, cfg)
    niter = (128 - U0)//8
    assert (128 - U0) % 8 == 0
    S_POL = S_TS
    VPG = 224
    if cfg.WPOL:
        wp = [int(x) for x in cfg.WPOL.split(',')]
        a(f"s_mov_b32 {sr(S_POL)}, {wp[0]}")
        for w in range(1, 4):
            a(f"s_cmp_eq_u32 {sr(S_WAVE)}, {w}")
            a(f"s_cselect_b32 {sr(S_POL)}, {wp[w]}, {sr(S_POL)}")
    else:
        a(f"s_mov_b32 {sr(S_POL)}, {N}")
    if cfg.CTL:
        a(f"v_mov_b32 {vr(VPG)}, {FLAG+8}")
    a(f"s_mov_b32 {sr(S_CNT)}, 1")
    a.label("L_sloop")
    if cfg.KT:
        a(f"s_cmp_gt_u32 {sr(S_CNT)}, {niter - cfg.KT}")
        a(f"s_cselect_b32 {sr(S_POL)}, {cfg.NT}, {sr(S_POL)}")
        assert cfg.NT in VERS
    if cfg.CTL:
        a(f"v_mov_b32 {vr(VPG+1)}, {sr(S_CNT)}")
        a(f"s_cmp_lg_u32 {sr(S_WAVE)}, 0")
        a("s_cbranch_scc1 L_nopg")
        a(f"ds_write_b32 {vr(VPG)}, {vr(VPG+1)}")
        a.label("L_nopg")
    for vi, n in enumerate(VERS[:-1]):
        a(f"s_cmp_eq_u32 {sr(S_POL)}, {n}")
        a(f"s_cbranch_scc1 L_ver{n}")
    order = [VERS[-1]] + VERS[:-1]
    for vi, n in enumerate(order):
        a.label(f"L_ver{n}")
        win["n"] = n
        state["m0"] = None
        for uu in range(32):
            issue(target + uu)
            if cfg.CTL and uu == 28:
                a(f"ds_read_b32 {vr(VPG+2)}, {vr(VPG)} offset:4")
            piece(U0 + uu//4, uu % 4)
        if vi < len(order) - 1:
            a("s_branch L_snext")
    a.label("L_snext")
    if cfg.CTL:
        a(f"v_readfirstlane_b32 {sr(S_POL)}, {vr(VPG+2)}")
    a(f"s_add_u32 {sr(S_CNT)}, {sr(S_CNT)}, 1")
    a(f"s_cmp_le_u32 {sr(S_CNT)}, {niter}")
    a("s_cbranch_scc1 L_sloop")
    stamp(a, cfg, 3)
    groups_allreduce(a, VL, VX, "v_add_f32")
    a(f"v_and_b32 {vr(VX)}, 15, {vr(V_LANE)}")
    a(f"v_lshrrev_b32 {vr(VX+1)}, 4, {vr(V_LANE)}")
    a(f"v_lshlrev_b32 {vr(VX)}, 5, {vr(VX)}")
    a(f"v_lshl_add_u32 {vr(VX)}, {vr(VX+1)}, 4, {vr(VX)}")
    a(f"s_lshl_b32 {sr(S_T0)}, {sr(S_WAVE)}, 9")
    a(f"s_add_u32 {sr(S_T0)}, {sr(S_T0)}, {OPART}")
    a(f"v_add_u32 {vr(VX)}, {sr(S_T0)}, {vr(VX)}")
    a(f"s_lshl_b32 {sr(S_T0)}, {sr(S_WAVE)}, 2")
    a(f"s_add_u32 {sr(S_T0)}, {sr(S_T0)}, {ML}")
    a(f"v_mov_b32 {vr(VX+2)}, {sr(S_T0)}")
    a("s_mov_b32 exec_hi, 0")
    a(f"ds_write_b128 {vr(VX)}, {vr(VO,4)}")
    a("s_mov_b64 exec, 1")
    a(f"ds_write_b32 {vr(VX+2)}, {vr(VM)}")
    a(f"ds_write_b32 {vr(VX+2)}, {vr(VL)} offset:16")
    a("s_mov_b64 exec, -1")
    a("s_waitcnt lgkmcnt(0)")
    a("s_barrier")
    if cfg.POLL:
        a(f"s_cmp_eq_u32 {sr(S_H)}, {cfg.RED_H}")
        a("s_cbranch_scc1 L_reducer")
    else:
        a("s_waitcnt vmcnt(0)")
    a("s_branch L_tail")

def gen_stream_sr(a, cfg):
    N = cfg.N
    LAG = 3 + N
    PR = cfg.PROUNDS
    assert PR in (0, 2, 4)
    V_LANE=0
    VK=2
    VV=6
    VVD=7
    VKR=8
    VVR=12
    VT=13
    VQ=16
    VA=32
    VS=48
    VP=80
    VAO=82
    VO=92
    VM=90; VL=91; VAL=96; VMC=97
    SELE=98; SELO=102
    VX=106
    VMX=14
    VD=112
    set_poll_regs(112)
    S_SOF = S_OFFB

    a.label("L_stream")
    if cfg.PRIO: a(f"s_setprio {cfg.PRIO}")
    a(f"s_lshl_b32 {sr(S_OFFA)}, {sr(S_WAVE)}, 13")
    a(f"s_lshl_b32 {sr(S_RING)}, {sr(S_WAVE)}, 15")
    a(f"v_lshrrev_b32 {vr(VT)}, 4, {vr(V_LANE)}")
    a(f"v_and_b32 {vr(VT+1)}, 15, {vr(V_LANE)}")
    for j in range(4):
        a(f"v_add_u32 {vr(VK+j)}, {4*j}, {vr(VT)}")
        a(f"v_xor_b32 {vr(VK+j)}, {vr(VK+j)}, {vr(VT+1)}")
        a(f"v_lshlrev_b32 {vr(VK+j)}, 4, {vr(VK+j)}")
        a(f"v_lshl_add_u32 {vr(VK+j)}, {vr(VT)}, 8, {vr(VK+j)}")
    a(f"s_lshl_b32 {sr(S_T0)}, {sr(S_WG)}, 20")
    a("s_waitcnt lgkmcnt(0)")
    srd(a, S_SRDK, S_K, S_T0, 0x100000)
    srd(a, S_SRDV, S_V, S_T0, 0x100000)

    NP = 64
    def load_desc(i):
        if i < NP:
            p = i % 32; r = p//8; half = (p % 8)//4; j = p % 4
            if i < 32: return dict(kind='K', j=j, r=r, half=half, slot=p//4, last=False, req=None)
            return dict(kind='VD', j=j, r=r, half=half, dst=VD+32*r+16*half+4*j, last=(i == 63), req=None)
        ip = i - NP
        g = ip//4; j = ip % 4; p = ip % 64
        pp = p % 32; r = pp//8; half = (pp % 8)//4
        req = g if ip < 32 else 16 + (ip-32)//4
        return dict(kind='K' if p < 32 else 'V', j=j, r=r, half=half, slot=g % 8, last=(p == 63), req=req)
    def unit_desc(u):
        if u < 16:
            if u < 8: return dict(k=True, r=u//2, half=u % 2, slot=u, need=4*u+3, direct=None)
            q = u - 8
            return dict(k=False, r=q//2, half=q % 2, slot=None, need=32+4*q+3, direct=VD+32*(q//2)+16*(q % 2))
        g = u - 16; q = g % 16
        qq = q % 8
        return dict(k=(q < 8), r=qq//2, half=qq % 2, slot=g % 8, need=NP+4*g+3, direct=None)

    state = {"m0": None, "sof": None}
    win = {"n": N}
    def issue(i, wait=True):
        d = load_desc(i)
        key = (d['r'], d['half'])
        if state["sof"] != key or d['j'] == 0:
            a(f"s_add_u32 {sr(S_SOF)}, {sr(S_OFFA)}, {d['r']*32768 + d['half']*4096}")
            state["sof"] = key
        if d['kind'] != 'VD' and state["m0"] != d['slot']:
            a(f"s_add_u32 m0, {sr(S_RING)}, {d['slot']*4096}")
            state["m0"] = d['slot']
            if not wait: a("s_nop 0")
        if wait: a(f"s_waitcnt vmcnt({win['n']-1})")
        j = d['j']
        if d['kind'] == 'K':
            a(f"buffer_load_dwordx4 {vr(VK+j)}, {sr(S_SRDK,4)}, {sr(S_SOF)} offen offset:{j*1024} {cfg.KFLAGS} lds")
        elif d['kind'] == 'V':
            a(f"buffer_load_dwordx4 {vr(VV)}, {sr(S_SRDV,4)}, {sr(S_SOF)} offen offset:{j*1024} {cfg.VFLAGS} lds")
        else:
            a(f"buffer_load_dwordx4 {vr(d['dst'],4)}, {vr(VVD)}, {sr(S_SRDV,4)}, {sr(S_SOF)} offen offset:{j*256} {cfg.VFLAGS}")
        if d['last']:
            a(f"s_add_u32 {sr(S_OFFA)}, {sr(S_OFFA)}, 131072")
            state["sof"] = None

    def piece(u, p):
        if cfg.NOCONS: return
        d = unit_desc(u)
        S = VS + 8*d['r'] + 4*d['half']
        if d['k']:
            slot = d['slot']*4096
            first = (d['r'] == 0 and d['half'] == 0)
            lastk = (d['r'] == 3 and d['half'] == 1)
            if p == 0:
                for t in range(4):
                    a(f"ds_read_b128 {vr(VA+4*t,4)}, {vr(VKR+t)} offset:{slot}")
            elif p == 1:
                for t in range(4):
                    a(f"s_waitcnt lgkmcnt({3-t})")
                    mfma(a, S, VA+4*t, VQ+4*t, None if t == 0 else S)
            elif p == 2:
                a("s_nop 7")
                if cfg.RSCORE:
                    for rnd in range(2):
                        a(f"v_cvt_pk_bf16_f32 {vr(VX)}, {vr(S)}, {vr(S+1)}")
                        a(f"v_cvt_pk_bf16_f32 {vr(VX+1)}, {vr(S+2)}, {vr(S+3)}")
                        a(f"v_lshlrev_b32 {vr(S)}, 16, {vr(VX)}")
                        a(f"v_and_b32 {vr(S+1)}, {sr(S_MASKHI)}, {vr(VX)}")
                        a(f"v_lshlrev_b32 {vr(S+2)}, 16, {vr(VX+1)}")
                        a(f"v_and_b32 {vr(S+3)}, {sr(S_MASKHI)}, {vr(VX+1)}")
                        if rnd == 0:
                            for e in range(4):
                                a(f"v_mul_f32 {vr(S+e)}, {sr(S_MASKHI+1)}, {vr(S+e)}")
                a(f"v_max3_f32 {vr(VMX)}, {vr(VM if first else VMX)}, {vr(S)}, {vr(S+1)}")
                a(f"v_max3_f32 {vr(VMX)}, {vr(VMX)}, {vr(S+2)}, {vr(S+3)}")
            elif p == 3 and lastk:
                groups_allreduce(a, VMX, VX, "v_max_f32")
                a(f"v_sub_f32 {vr(VAL)}, {vr(VM)}, {vr(VMX)}")
                a(f"v_mul_f32 {vr(VMC)}, {sr(S_C)}, {vr(VMX)}")
                a(f"v_mul_f32 {vr(VAL)}, {sr(S_C)}, {vr(VAL)}")
                a(f"v_mov_b32 {vr(VM)}, {vr(VMX)}")
                a(f"v_exp_f32 {vr(VAL)}, {vr(VAL)}")
                a("s_nop 0")
                for r in range(4):
                    a(f"v_mul_f32 {vr(VO+r)}, {vr(VO+r)}, {vr(VAL)}")
                a(f"v_mul_f32 {vr(VL)}, {vr(VL)}, {vr(VAL)}")
        else:
            direct = d['direct']
            if p == 0:
                if direct is None:
                    for r in range(4):
                        a(f"ds_read_b128 {vr(VA+4*r,4)}, {vr(VVR)} offset:{d['slot']*4096 + r*256}")
                for r in range(4):
                    a(f"v_fma_f32 {vr(S+r)}, {vr(S+r)}, {sr(S_C)}, -{vr(VMC)}")
                for r in range(4):
                    a(f"v_exp_f32 {vr(S+r)}, {vr(S+r)}")
                a("s_nop 0")
                a(f"v_cvt_pk_bf16_f32 {vr(VP)}, {vr(S)}, {vr(S+1)}")
                a(f"v_cvt_pk_bf16_f32 {vr(VP+1)}, {vr(S+2)}, {vr(S+3)}")
                a(f"v_add_f32 {vr(VX)}, {vr(S)}, {vr(S+1)}")
                a(f"v_add_f32 {vr(VX+1)}, {vr(S+2)}, {vr(S+3)}")
                a(f"v_add_f32 {vr(VL)}, {vr(VL)}, {vr(VX)}")
                a(f"v_add_f32 {vr(VL)}, {vr(VL)}, {vr(VX+1)}")
            r = p
            ao = VAO + 4*(r&1)
            diag(a, ao, VP + (r>>1), r&1, SELE, SELO)
            if direct is None:
                a(f"s_waitcnt lgkmcnt({3-r})")
                a("s_nop 0")
                mfma(a, VO, ao, VA+4*r, VO)
            else:
                a("s_nop 1")
                mfma(a, VO, ao, direct+4*r, VO)

    for i in range(N): issue(i, wait=False)
    a(f"v_lshlrev_b32 {vr(VV)}, 4, {vr(V_LANE)}")
    a(f"v_lshlrev_b32 {vr(VVD)}, 10, {vr(VT)}")
    a(f"v_lshl_add_u32 {vr(VVD)}, {vr(VT+1)}, 4, {vr(VVD)}")
    for t in range(4):
        a(f"v_add_u32 {vr(VKR+t)}, {4*t}, {vr(VT)}")
        a(f"v_xor_b32 {vr(VKR+t)}, {vr(VKR+t)}, {vr(VT+1)}")
        a(f"v_lshlrev_b32 {vr(VKR+t)}, 4, {vr(VKR+t)}")
        a(f"v_lshl_add_u32 {vr(VKR+t)}, {vr(VT+1)}, 8, {vr(VKR+t)}")
        a(f"v_add_u32 {vr(VKR+t)}, {sr(S_RING)}, {vr(VKR+t)}")
    a(f"v_add_u32 {vr(VVR)}, {sr(S_RING)}, {vr(VVD)}")
    make_selectors(a, V_LANE, SELE, SELO, VX, VX+1, VX+2, VX+3)
    a(f"v_mov_b32 {vr(VM)}, 0xff800000")
    a(f"v_mov_b32 {vr(VL)}, 0")
    for r in range(4): a(f"v_mov_b32 {vr(VO+r)}, 0")
    a(f"s_mov_b32 {sr(S_C)}, {hexf(math.log2(math.e) if cfg.RSCORE else C_SCALE)}")
    a(f"s_mov_b32 {sr(S_MASKHI)}, 0xffff0000")
    a(f"s_mov_b32 {sr(S_MASKHI+1)}, {hexf(128 ** -0.5)}")

    RA = cfg.RUNAHEAD
    for i in range(N, RA):
        assert load_desc(i)['req'] is None
        issue(i)
        if cfg.PROSTAMP and i == N: a(f"s_memrealtime {sr(S_STAMP+4,2)}")
        if cfg.PROSTAMP and i == 20: a(f"s_memrealtime {sr(S_STAMP+8,2)}")
        if cfg.PROSTAMP and i == 40: a(f"s_memrealtime {sr(S_STAMP+10,2)}")
    stamp(a, cfg, 1)
    a("s_barrier")
    stamp(a, cfg, 2)
    nxt = RA
    def try_issue(done_units):
        nonlocal nxt
        d = load_desc(nxt)
        if d['req'] is not None and d['req'] >= done_units: return False
        issue(nxt); nxt += 1
        return True
    a(f"v_lshlrev_b32 {vr(VX)}, 4, {vr(V_LANE)}")
    a(f"v_and_b32 {vr(VX)}, 0x1ff, {vr(VX)}")
    a(f"v_add_u32 {vr(VX)}, {QPART}, {vr(VX)}")
    for p in range(4):
        a(f"ds_read_b128 {vr(VA+4*p,4)}, {vr(VX)} offset:{p*512}")
    try_issue(0); try_issue(0)
    a("s_waitcnt lgkmcnt(0)")
    for e in range(4):
        a(f"v_add_f32 {vr(VA+e)}, {vr(VA+e)}, {vr(VA+4+e)}")
        a(f"v_add_f32 {vr(VA+8+e)}, {vr(VA+8+e)}, {vr(VA+12+e)}")
    for e in range(4):
        a(f"v_add_f32 {vr(VA+e)}, {vr(VA+e)}, {vr(VA+8+e)}")
    a(f"v_cvt_pk_bf16_f32 {vr(VA+4)}, {vr(VA)}, {vr(VA+1)}")
    a(f"v_cvt_pk_bf16_f32 {vr(VA+5)}, {vr(VA+2)}, {vr(VA+3)}")
    a(f"v_lshlrev_b32 {vr(VX+1)}, 3, {vr(V_LANE)}")
    a(f"v_and_b32 {vr(VX+1)}, 0xff, {vr(VX+1)}")
    a(f"s_lshl_b32 {sr(S_T0)}, {sr(S_WAVE)}, 8")
    a(f"s_add_u32 {sr(S_T0)}, {sr(S_T0)}, {QBF}")
    a(f"v_add_u32 {vr(VX+1)}, {sr(S_T0)}, {vr(VX+1)}")
    a(f"ds_write_b64 {vr(VX+1)}, {vr(VA+4,2)}")
    a(f"v_lshrrev_b32 {vr(VX+2)}, 4, {vr(V_LANE)}")
    a(f"v_lshlrev_b32 {vr(VX+2)}, 4, {vr(VX+2)}")
    a(f"v_add_u32 {vr(VX+2)}, {sr(S_T0)}, {vr(VX+2)}")
    a("s_waitcnt lgkmcnt(0)")
    for t in range(4):
        a(f"ds_read_b128 {vr(VQ+4*t,4)}, {vr(VX+2)} offset:{t*64}")
    try_issue(0)
    a("s_waitcnt lgkmcnt(0)")
    VERS = [int(x) for x in cfg.VERS.split(',')]
    ramp = [tuple(int(y) for y in x.split(':')) for x in cfg.RAMP.split(',')] if cfg.RAMP else []
    NMAX = max([v for v in VERS if v != 99] + [N] + [r[0] for r in ramp])
    U0 = 32
    target = NP + 64 + NMAX + 3
    u = 0
    while u < U0 or nxt < target:
        d = unit_desc(u) if u < U0 else None
        if d is not None and nxt - 1 - N >= d['need']:
            ahead = (nxt - 1 - N) - d['need']
            for p in range(4):
                piece(u, p)
                want = (ahead < 2) or (p in (1, 3))
                if want and nxt < target:
                    try_issue(u)
            u += 1
        else:
            if not (nxt < target and try_issue(u)):
                raise RuntimeError(f"schedule deadlock u={u} nxt={nxt}")
    assert nxt == target and u == U0, (nxt, target, u, U0)
    if cfg.POLL:
        poll_setup(a, cfg)
    niter = (128 - U0)//16
    S_POL = S_TS
    VPG = 224
    if cfg.WPOL:
        wp = [int(x) for x in cfg.WPOL.split(',')]
        a(f"s_mov_b32 {sr(S_POL)}, {wp[0]}")
        for w in range(1, 4):
            a(f"s_cmp_eq_u32 {sr(S_WAVE)}, {w}")
            a(f"s_cselect_b32 {sr(S_POL)}, {wp[w]}, {sr(S_POL)}")
    else:
        a(f"s_mov_b32 {sr(S_POL)}, {N}")
    if cfg.CTL:
        a(f"v_mov_b32 {vr(VPG)}, {FLAG+8}")
    a(f"s_mov_b32 {sr(S_CNT)}, 1")
    a.label("L_sloop")
    if cfg.KT:
        a(f"s_cmp_gt_u32 {sr(S_CNT)}, {niter - cfg.KT}")
        a(f"s_cselect_b32 {sr(S_POL)}, {cfg.NT}, {sr(S_POL)}")
        assert cfg.NT in VERS
    if cfg.CTL:
        a(f"v_mov_b32 {vr(VPG+1)}, {sr(S_CNT)}")
        a(f"s_cmp_lg_u32 {sr(S_WAVE)}, 0")
        a("s_cbranch_scc1 L_nopg")
        a(f"ds_write_b32 {vr(VPG)}, {vr(VPG+1)}")
        a.label("L_nopg")
    for vi, n in enumerate(VERS[:-1]):
        a(f"s_cmp_eq_u32 {sr(S_POL)}, {n}")
        a(f"s_cbranch_scc1 L_ver{n}")
    order = [VERS[-1]] + VERS[:-1]
    for vi, n in enumerate(order):
        a.label(f"L_ver{n}")
        win["n"] = n
        state["m0"] = None; state["sof"] = None
        for uu in range(64):
            if n == 99:
                win["n"] = [w for (w, f) in ramp if f <= uu][-1]
            issue(target + uu)
            piece(U0 + uu//4, uu % 4)
        if vi < len(order) - 1:
            a("s_branch L_snext")
    a.label("L_snext")
    if cfg.CTL:
        a(f"v_readfirstlane_b32 {sr(S_POL)}, {vr(VPG+2)}")
    a(f"s_add_u32 {sr(S_CNT)}, {sr(S_CNT)}, 1")
    a(f"s_cmp_le_u32 {sr(S_CNT)}, {niter}")
    a("s_cbranch_scc1 L_sloop")
    stamp(a, cfg, 3)
    groups_allreduce(a, VL, VX, "v_add_f32")
    a(f"v_and_b32 {vr(VX)}, 15, {vr(V_LANE)}")
    a(f"v_lshrrev_b32 {vr(VX+1)}, 4, {vr(V_LANE)}")
    a(f"v_lshlrev_b32 {vr(VX)}, 5, {vr(VX)}")
    a(f"v_lshl_add_u32 {vr(VX)}, {vr(VX+1)}, 4, {vr(VX)}")
    a(f"s_lshl_b32 {sr(S_T0)}, {sr(S_WAVE)}, 9")
    a(f"s_add_u32 {sr(S_T0)}, {sr(S_T0)}, {OPART}")
    a(f"v_add_u32 {vr(VX)}, {sr(S_T0)}, {vr(VX)}")
    a(f"s_lshl_b32 {sr(S_T0)}, {sr(S_WAVE)}, 2")
    a(f"s_add_u32 {sr(S_T0)}, {sr(S_T0)}, {ML}")
    a(f"v_mov_b32 {vr(VX+2)}, {sr(S_T0)}")
    a("s_mov_b32 exec_hi, 0")
    a(f"ds_write_b128 {vr(VX)}, {vr(VO,4)}")
    a("s_mov_b64 exec, 1")
    a(f"ds_write_b32 {vr(VX+2)}, {vr(VM)}")
    a(f"ds_write_b32 {vr(VX+2)}, {vr(VL)} offset:16")
    a("s_mov_b64 exec, -1")
    a("s_waitcnt lgkmcnt(0)")
    a("s_barrier")
    if cfg.POLL:
        a(f"s_cmp_eq_u32 {sr(S_H)}, {cfg.RED_H}")
        a("s_cbranch_scc1 L_reducer")
    else:
        a("s_waitcnt vmcnt(0)")
    a("s_branch L_tail")

def gen_side(a, cfg):
    V_LANE=0
    VF=2
    VXR=12
    VT=17
    SELE=28; SELO=32
    VAO=36
    VACC=44
    VH0=64; VH1=68
    VXA=72
    VOF=90
    VW=96
    VWA=VACC
    WF = cfg.WFLAGS
    D = cfg.DEPTH
    S_ROT = S_CNT
    S_SO = S_OFFA

    a.label("L_side")
    a(f"s_sub_u32 {sr(S_SW)}, {sr(S_WAVE)}, 4")
    a("s_waitcnt lgkmcnt(0)")
    a(f"s_mul_i32 {sr(S_T0)}, {sr(S_B)}, 1152")
    srd(a, S_SRDK, S_X, S_T0, 1152)
    a(f"v_lshlrev_b32 {vr(VT)}, 2, {vr(V_LANE)}")
    for k in range(5):
        a(f"buffer_load_dword {vr(VXR+k)}, {vr(VT)}, {sr(S_SRDK,4)}, 0 offen offset:{256*k}")
    a(f"s_lshl_b32 {sr(S_T0)}, {sr(S_H)}, 8")
    a(f"s_sub_u32 {sr(S_T1)}, {576*8192}, {sr(S_T0)}")
    srd(a, S_SRDV, S_WQ, S_T0, sr(S_T1))
    if cfg.ROT:
        a(f"s_mul_i32 {sr(S_ROT)}, {sr(S_B)}, 18")
        a(f"s_lshr_b32 {sr(S_ROT)}, {sr(S_ROT)}, 3")
        a(f"s_lshl_b32 {sr(S_ROT)}, {sr(S_ROT)}, 1")
    else:
        a(f"s_mov_b32 {sr(S_ROT)}, 0")
    a(f"v_lshrrev_b32 {vr(VT+1)}, 4, {vr(V_LANE)}")
    a(f"v_and_b32 {vr(VT+2)}, 15, {vr(V_LANE)}")
    a(f"v_mul_u32_u24 {vr(VT+3)}, 36, {vr(VT+1)}")
    a(f"s_mul_i32 {sr(S_T2)}, {sr(S_SW)}, 144")
    a(f"v_add_u32 {vr(VT+3)}, {sr(S_T2)}, {vr(VT+3)}")
    a(f"v_lshlrev_b32 {vr(VOF)}, 13, {vr(VT+3)}")
    a(f"v_lshl_add_u32 {vr(VOF)}, {vr(VT+2)}, 4, {vr(VOF)}")
    def adv(step, n):
        a(f"s_add_u32 {sr(S_SO)}, {sr(S_SO)}, {step}")
        a(f"s_cmp_ge_u32 {sr(S_SO)}, {step*n}")
        a(f"s_cselect_b32 {sr(S_SO)}, 0, {sr(S_SO)}")
    a(f"s_lshl_b32 {sr(S_SO)}, {sr(S_ROT)}, 13")
    DQ = cfg.DQ
    def wq_load(t):
        a(f"buffer_load_dwordx4 {vr(VW+4*t,4)}, {vr(VOF)}, {sr(S_SRDV,4)}, {sr(S_SO)} offen {WF}")
        if t < 35: adv(8192, 36)
    for t in range(DQ): wq_load(t)
    a(f"s_mov_b32 {sr(S_T3)}, 9216")
    a(f"v_mul_lo_u32 {vr(VOF+1)}, {vr(VT+3)}, {sr(S_T3)}")
    a(f"v_lshl_add_u32 {vr(VOF+1)}, {vr(VT+2)}, 4, {vr(VOF+1)}")
    a(f"v_add_u32 {vr(VOF+2)}, 256, {vr(VOF+1)}")
    a(f"v_mov_b32 {vr(VT+4)}, 0x7f000000")
    a(f"v_cmp_gt_u32 vcc, 2, {vr(VT+2)}")
    a("s_nop 1")
    a(f"v_cndmask_b32 {vr(VOF+2)}, {vr(VT+4)}, {vr(VOF+2)}, vcc")
    make_selectors(a, V_LANE, SELE, SELO, VT+4, VT+5, VT+6, VT+7)
    a(f"s_mov_b32 {sr(S_MASKHI)}, 0xffff0000")
    a(f"s_mul_i32 {sr(S_T0)}, {sr(S_SW)}, 2560")
    a(f"s_add_u32 {sr(S_T0)}, {sr(S_T0)}, {XPRIV}")
    a(f"s_movk_i32 {sr(S_T1)}, 3641")
    for k in range(5):
        a(f"v_add_u32 {vr(VT+4)}, {64*k}, {vr(V_LANE)}")
        a(f"v_mul_u32_u24 {vr(VT+5)}, {sr(S_T1)}, {vr(VT+4)}")
        a(f"v_lshrrev_b32 {vr(VT+5)}, 16, {vr(VT+5)}")
        a(f"v_mul_u32_u24 {vr(VT+5)}, 72, {vr(VT+5)}")
        a(f"v_lshl_add_u32 {vr(VWA+k)}, {vr(VT+4)}, 2, {vr(VT+5)}")
        a(f"v_add_u32 {vr(VWA+k)}, {sr(S_T0)}, {vr(VWA+k)}")
    a(f"s_mul_i32 {sr(S_T1)}, {sr(S_SW)}, 576")
    a(f"s_add_u32 {sr(S_T0)}, {sr(S_T0)}, {sr(S_T1)}")
    a(f"s_lshl_b32 {sr(S_T1)}, {sr(S_ROT)}, 1")
    a(f"s_add_u32 {sr(S_T0)}, {sr(S_T0)}, {sr(S_T1)}")
    a(f"v_mul_u32_u24 {vr(VOF+4)}, 144, {vr(VT+1)}")
    a(f"v_add_u32 {vr(VOF+4)}, {sr(S_T0)}, {vr(VOF+4)}")
    a(f"s_mov_b32 {sr(S_EX)}, -1")
    a(f"s_mov_b32 {sr(S_EX+1)}, 0")
    a(f"v_mov_b32 {vr(VT+4)}, {FLAG+4}")
    a(f"v_mov_b32 {vr(VT+5)}, 0")
    a(f"ds_write_b32 {vr(VT+4)}, {vr(VT+5)}")
    a(f"ds_write_b32 {vr(VT+4)}, {vr(VT+5)} offset:4")
    a(f"v_mov_b32 {vr(VT+5)}, {cfg.N}")
    a(f"ds_write_b32 {vr(VT+4)}, {vr(VT+5)} offset:8")

    def layernorm():
        s = VT+8; t = VT+9; u = VT+10
        a(f"v_add_f32 {vr(s)}, {vr(VF)}, {vr(VF+1)}")
        for k in range(2,10): a(f"v_add_f32 {vr(s)}, {vr(s)}, {vr(VF+k)}")
        allreduce_sum(a, s, t)
        a(f"v_mul_f32 {vr(s)}, {hexf(1.0/576)}, {vr(s)}")
        a(f"v_sub_f32 {vr(t)}, {vr(VF)}, {vr(s)}")
        a(f"v_mul_f32 {vr(u)}, {vr(t)}, {vr(t)}")
        for k in range(1,10):
            a(f"v_sub_f32 {vr(t)}, {vr(VF+k)}, {vr(s)}")
            if k >= 8:
                a(f"v_cndmask_b32 {vr(t)}, 0, {vr(t)}, {sr(S_EX,2)}")
            a(f"v_fmac_f32 {vr(u)}, {vr(t)}, {vr(t)}")
        allreduce_sum(a, u, t)
        a(f"v_mul_f32 {vr(u)}, {hexf(1.0/576)}, {vr(u)}")
        a(f"v_cvt_pk_bf16_f32 {vr(t)}, {vr(s)}, {vr(u)}")
        a(f"v_lshlrev_b32 {vr(s)}, 16, {vr(t)}")
        a(f"v_and_b32 {vr(u)}, {sr(S_MASKHI)}, {vr(t)}")
        a(f"v_add_f32 {vr(u)}, {hexf(1e-5)}, {vr(u)}")
        a(f"v_cvt_pk_bf16_f32 {vr(u)}, {vr(u)}, {vr(u)}")
        a(f"v_and_b32 {vr(u)}, {sr(S_MASKHI)}, {vr(u)}")
        a(f"v_sqrt_f32 {vr(u)}, {vr(u)}")
        a("s_nop 0")
        a(f"v_cvt_pk_bf16_f32 {vr(u)}, {vr(u)}, {vr(u)}")
        a(f"v_and_b32 {vr(u)}, {sr(S_MASKHI)}, {vr(u)}")
        a(f"v_rcp_f32 {vr(u)}, {vr(u)}")
        for k in range(5):
            A0 = VF+2*k; A1 = A0+1
            a(f"v_sub_f32 {vr(A0)}, {vr(A0)}, {vr(s)}")
            a(f"v_sub_f32 {vr(A1)}, {vr(A1)}, {vr(s)}")
            a(f"v_cvt_pk_bf16_f32 {vr(t)}, {vr(A0)}, {vr(A1)}")
            a(f"v_lshlrev_b32 {vr(A0)}, 16, {vr(t)}")
            a(f"v_and_b32 {vr(A1)}, {sr(S_MASKHI)}, {vr(t)}")
            a(f"v_mul_f32 {vr(A0)}, {vr(A0)}, {vr(u)}")
            a(f"v_mul_f32 {vr(A1)}, {vr(A1)}, {vr(u)}")
            a(f"v_cvt_pk_bf16_f32 {vr(VXR+k)}, {vr(A0)}, {vr(A1)}")
            a(f"v_lshlrev_b32 {vr(A0)}, 16, {vr(VXR+k)}")
            a(f"v_and_b32 {vr(A1)}, {sr(S_MASKHI)}, {vr(VXR+k)}")
            if k == 4: a("s_mov_b32 exec_hi, 0")
            a(f"ds_write_b32 {vr(VWA+k)}, {vr(VXR+k)}")
            a(f"ds_write_b32 {vr(VWA+k)}, {vr(VXR+k)} offset:72")
            if k == 4: a("s_mov_b64 exec, -1")
        a(f"v_cndmask_b32 {vr(VF+8)}, 0, {vr(VF+8)}, {sr(S_EX,2)}")
        a(f"v_cndmask_b32 {vr(VF+9)}, 0, {vr(VF+9)}, {sr(S_EX,2)}")
        a("s_waitcnt lgkmcnt(0)")
        for k in range(9):
            a(f"ds_read2_b32 {vr(VXA+2*k,2)}, {vr(VOF+4)} offset0:{2*k} offset1:{2*k+1}")

    a(f"s_waitcnt vmcnt({DQ})")
    for k in range(5):
        a(f"v_lshlrev_b32 {vr(VF+2*k)}, 16, {vr(VXR+k)}")
        a(f"v_and_b32 {vr(VF+2*k+1)}, {sr(S_MASKHI)}, {vr(VXR+k)}")
    layernorm()
    a("s_waitcnt lgkmcnt(0)")
    for t in range(36):
        ao = VAO + 4*(t&1)
        diag(a, ao, VXA + (t>>1), t&1, SELE, SELO)
        a(f"s_waitcnt vmcnt({min(DQ, 36-t)-1})")
        a("s_nop 0")
        mfma(a, VH0, ao, VW+4*t, None if t == 0 else VH0)
        if t + DQ < 36: wq_load(t + DQ)
    a(f"v_and_b32 {vr(VT)}, 15, {vr(V_LANE)}")
    a(f"v_lshrrev_b32 {vr(VT+1)}, 4, {vr(V_LANE)}")
    a(f"v_lshlrev_b32 {vr(VT)}, 5, {vr(VT)}")
    a(f"v_lshl_add_u32 {vr(VOF+5)}, {vr(VT+1)}, 4, {vr(VT)}")
    a(f"s_lshl_b32 {sr(S_T0)}, {sr(S_SW)}, 9")
    a(f"s_add_u32 {sr(S_T0)}, {sr(S_T0)}, {QPART}")
    a(f"v_add_u32 {vr(VT)}, {sr(S_T0)}, {vr(VOF+5)}")
    a("s_nop 4")
    a("s_mov_b32 exec_hi, 0")
    a(f"ds_write_b128 {vr(VT)}, {vr(VH0,4)}")
    a("s_mov_b64 exec, -1")
    a("s_waitcnt lgkmcnt(0)")
    stamp(a, cfg, 1)
    a("s_barrier")
    if cfg.NOSIDE:
        a("s_barrier")
        a("s_branch L_tail")

    if cfg.POLL:
        a(f"s_cmp_lg_u32 {sr(S_SW)}, 0")
        a("s_cbranch_scc1 L_noreset")
        a(f"s_mul_i32 {sr(S_T0)}, {sr(S_WG)}, 2304")
        srd(a, S_SRD2, S_WS, S_T0, 2304)
        a(f"v_lshlrev_b32 {vr(VT)}, 4, {vr(V_LANE)}")
        for e in range(4): a(f"v_mov_b32 {vr(VW+e)}, -1")
        for k in range(3):
            a(f"buffer_store_dwordx4 {vr(VW,4)}, {vr(VT)}, {sr(S_SRD2,4)}, 0 offen offset:{1024*k} sc1")
        a("s_waitcnt vmcnt(0)")
        if cfg.STARTSIG == 'atomic':
            a(f"s_lshl_b32 {sr(S_T0)}, {sr(S_B)}, 5")
            a(f"v_mov_b32 {vr(VT)}, {sr(S_T0)}")
            a(f"v_mov_b32 {vr(VT+1)}, 1")
            a("s_mov_b64 exec, 1")
            a(f"global_atomic_add {vr(VT)}, {vr(VT+1)}, {sr(S_DBG,2)} offset:4")
            a("s_mov_b64 exec, -1")
            a("s_waitcnt vmcnt(0)")
        elif cfg.STARTSIG == 'byte':
            a(f"v_mov_b32 {vr(VT)}, {sr(S_WG)}")
            a(f"v_mov_b32 {vr(VT+1)}, 1")
            a("s_mov_b64 exec, 1")
            a(f"global_store_byte {vr(VT)}, {vr(VT+1)}, {sr(S_DBG,2)} sc1")
            a("s_mov_b64 exec, -1")
            a("s_waitcnt vmcnt(0)")
        a.label("L_noreset")

    def paced(units, compute, D=D):
        flat = [(u, f) for u, fs in enumerate(units) for f in fs]
        last = {}
        for idx, (u, f) in enumerate(flat): last[u] = idx
        done = 0
        nu = len(units)
        for idx, (u, f) in enumerate(flat):
            if idx >= D: a(f"s_waitcnt vmcnt({D-1})")
            f()
            landed = idx - D if idx >= D else -1
            while done < nu and last[done] <= landed:
                compute(done); done += 1
        n = len(flat)
        while done < nu:
            a(f"s_waitcnt vmcnt({n-1-last[done]})")
            compute(done); done += 1

    if cfg.MMAP:
        a(f"s_and_b32 {sr(S_M)}, {sr(S_H)}, 7")
        a(f"s_lshl_b32 {sr(S_M)}, {sr(S_M)}, 2")
        a(f"s_lshr_b32 {sr(S_T0)}, {sr(S_H)}, 3")
        a(f"s_add_u32 {sr(S_M)}, {sr(S_M)}, {sr(S_T0)}")
    else:
        a(f"s_mov_b32 {sr(S_M)}, {sr(S_H)}")
    a(f"s_mul_i32 {sr(S_T0)}, {sr(S_M)}, 288")
    a(f"s_sub_u32 {sr(S_T1)}, {576*9216}, {sr(S_T0)}")
    srd(a, S_SRDV, S_W1, S_T0, sr(S_T1))
    layernorm()
    a(f"s_mul_i32 {sr(S_SO)}, {sr(S_ROT)}, 9216")
    a("s_waitcnt lgkmcnt(0)")
    NB = D + 2
    if not cfg.XTRA:
        def w1_unit(t):
            b = VW + 8*(t % NB)
            def f0(): a(f"buffer_load_dwordx4 {vr(b,4)}, {vr(VOF+1)}, {sr(S_SRDV,4)}, {sr(S_SO)} offen {WF}")
            def f1():
                a(f"buffer_load_dwordx4 {vr(b+4,4)}, {vr(VOF+2)}, {sr(S_SRDV,4)}, {sr(S_SO)} offen {WF}")
                if t < 35: adv(9216, 36)
            return [f0, f1]
        def w1_comp(t):
            b = VW + 8*(t % NB)
            ao = VAO + 4*(t&1)
            diag(a, ao, VXA + (t>>1), t&1, SELE, SELO)
            a("s_nop 1")
            mfma(a, VH0, ao, b, None if t == 0 else VH0)
            mfma(a, VH1, ao, b+4, None if t == 0 else VH1)
        paced([w1_unit(t) for t in range(36)], w1_comp)
    else:
        XW = 160; XY = 180; XA = 185; XT = 193; XE = 201; XE4 = 202
        a(f"v_lshrrev_b32 {vr(XT)}, 1, {vr(V_LANE)}")
        a(f"s_mul_i32 {sr(S_T2)}, {sr(S_SW)}, 144")
        a(f"v_add_u32 {vr(XT+1)}, {sr(S_T2)}, {vr(XT)}")
        a(f"s_movk_i32 {sr(S_T3)}, 9216")
        a(f"v_mul_lo_u32 {vr(XE)}, {vr(XT+1)}, {sr(S_T3)}")
        a(f"v_and_b32 {vr(XT+1)}, 1, {vr(V_LANE)}")
        a(f"v_lshl_add_u32 {vr(XE)}, {vr(XT+1)}, 4, {vr(XE)}")
        a(f"v_add_u32 {vr(XE)}, 256, {vr(XE)}")
        a(f"v_mov_b32 {vr(XT+1)}, 0x7f000000")
        a(f"v_cndmask_b32 {vr(XE4)}, {vr(XT+1)}, {vr(XE)}, {sr(S_EX,2)}")
        a(f"s_mul_i32 {sr(S_T0)}, {sr(S_SW)}, {2560+576}")
        a(f"s_add_u32 {sr(S_T0)}, {sr(S_T0)}, {XPRIV}")
        a(f"s_movk_i32 {sr(S_T1)}, 3641")
        a(f"v_and_b32 {vr(XT+2)}, 1, {vr(XT)}")
        a(f"v_lshlrev_b32 {vr(XT+2)}, 1, {vr(XT+2)}")
        a(f"v_add_u32 {vr(XT+2)}, {sr(S_T0)}, {vr(XT+2)}")
        a(f"v_lshrrev_b32 {vr(XT+3)}, 2, {vr(V_LANE)}")
        for m in range(5):
            a(f"v_add_u32 {vr(XT+4)}, {16*m}, {vr(XT+3)}")
            a(f"v_mul_u32_u24 {vr(XT+5)}, {sr(S_T1)}, {vr(XT+4)}")
            a(f"v_lshrrev_b32 {vr(XT+5)}, 16, {vr(XT+5)}")
            a(f"v_mul_u32_u24 {vr(XT+5)}, 72, {vr(XT+5)}")
            a(f"v_lshl_add_u32 {vr(XT+5)}, {vr(XT+4)}, 2, {vr(XT+5)}")
            a(f"v_add_u32 {vr(XT+5)}, {vr(XT+5)}, {vr(XT+2)}")
            a(f"ds_read_u16 {vr(XY+m)}, {vr(XT+5)}")
        a("s_waitcnt lgkmcnt(0)")
        for m in range(5):
            a(f"v_lshlrev_b32 {vr(XY+m)}, 16, {vr(XY+m)}")
        a(f"v_cndmask_b32 {vr(XY+4)}, 0, {vr(XY+4)}, {sr(S_EX,2)}")
        def x_unit(m):
            def f():
                a(f"s_mov_b32 {sr(S_T3)}, {32*m*9216}")
                a(f"buffer_load_dwordx4 {vr(XW+4*m,4)}, {vr(XE4 if m == 4 else XE)}, {sr(S_SRDV,4)}, {sr(S_T3)} offen {WF}")
            return [f]
        def x_comp(m):
            for k in range(4):
                a(f"v_lshlrev_b32 {vr(XT)}, 16, {vr(XW+4*m+k)}")
                a(f"v_and_b32 {vr(XT+1)}, {sr(S_MASKHI)}, {vr(XW+4*m+k)}")
                if m == 0:
                    a(f"v_mul_f32 {vr(XA+2*k)}, {vr(XY+m)}, {vr(XT)}")
                    a(f"v_mul_f32 {vr(XA+2*k+1)}, {vr(XY+m)}, {vr(XT+1)}")
                else:
                    a(f"v_fmac_f32 {vr(XA+2*k)}, {vr(XY+m)}, {vr(XT)}")
                    a(f"v_fmac_f32 {vr(XA+2*k+1)}, {vr(XY+m)}, {vr(XT+1)}")
        def w1_unit(t):
            b = VW + 4*(t % NB)
            def f0():
                a(f"buffer_load_dwordx4 {vr(b,4)}, {vr(VOF+1)}, {sr(S_SRDV,4)}, {sr(S_SO)} offen {WF}")
                if t < 35: adv(9216, 36)
            return [f0]
        def w1_comp(t):
            b = VW + 4*(t % NB)
            ao = VAO + 4*(t&1)
            diag(a, ao, VXA + (t>>1), t&1, SELE, SELO)
            a("s_nop 1")
            mfma(a, VH0, ao, b, None if t == 0 else VH0)
        paced([x_unit(m) for m in range(5)] + [w1_unit(t) for t in range(36)],
              lambda u: x_comp(u) if u < 5 else w1_comp(u-5))
        for r_ in (2, 4, 8):
            a("s_nop 1")
            for e in range(8):
                a(f"v_add_f32_dpp {vr(XA+e)}, {vr(XA+e)}, {vr(XA+e)} row_ror:{r_} row_mask:0xf bank_mask:0xf")
        for op in ("v_permlane16_swap_b32", "v_permlane32_swap_b32"):
            for e in range(8):
                a(f"v_mov_b32 {vr(XW+e)}, {vr(XA+e)}")
            a("s_nop 1")
            for e in range(8):
                a(f"{op} {vr(XA+e)}, {vr(XW+e)}")
            a("s_nop 1")
            for e in range(8):
                a(f"v_add_f32 {vr(XA+e)}, {vr(XA+e)}, {vr(XW+e)}")
        for e in range(8):
            a(f"v_mov_b32 {vr(XW+e)}, {vr(XA+e)}")
    a(f"s_mul_i32 {sr(S_T0)}, {sr(S_M)}, 288")
    srd(a, S_SRDK, S_B1, S_T0, 288)
    a(f"v_lshrrev_b32 {vr(VT+1)}, 4, {vr(V_LANE)}")
    a(f"v_mul_u32_u24 {vr(VT+2)}, 9, {vr(VT+1)}")
    a(f"s_mul_i32 {sr(S_T2)}, {sr(S_SW)}, 36")
    a(f"v_add_u32 {vr(VT+2)}, {sr(S_T2)}, {vr(VT+2)}")
    a(f"v_lshlrev_b32 {vr(VT+3)}, 1, {vr(VT+2)}")
    for t in range(9):
        a(f"buffer_load_ushort {vr(VF+t)}, {vr(VT+3)}, {sr(S_SRDK,4)}, 0 offen offset:{2*t}")
    a(f"s_lshl_b32 {sr(S_T0)}, {sr(S_SW)}, 10")
    a(f"s_add_u32 {sr(S_T0)}, {sr(S_T0)}, {HPART}")
    a(f"v_add_u32 {vr(VT)}, {sr(S_T0)}, {vr(VOF+5)}")
    a("s_mov_b32 exec_hi, 0")
    a(f"ds_write_b128 {vr(VT)}, {vr(VH0,4)}")
    if not cfg.XTRA:
        a(f"ds_write_b128 {vr(VT)}, {vr(VH1,4)} offset:512")
    else:
        a(f"v_lshlrev_b32 {vr(VT+4)}, 5, {vr(V_LANE)}")
        a(f"v_add_u32 {vr(VT+4)}, {sr(S_T0)}, {vr(VT+4)}")
        a("s_mov_b64 exec, 3")
        a(f"ds_write_b128 {vr(VT+4)}, {vr(160,4)} offset:512")
        a(f"ds_write_b128 {vr(VT+4)}, {vr(164,4)} offset:528")
    a("s_mov_b64 exec, -1")
    a(f"s_mul_i32 {sr(S_T0)}, {sr(S_M)}, {144*1152}")
    srd(a, S_SRDV, S_W2, S_T0, 144*1152)
    a(f"v_and_b32 {vr(VT+4)}, 15, {vr(V_LANE)}")
    a(f"s_movk_i32 {sr(S_T3)}, 1152")
    a(f"v_mul_lo_u32 {vr(VOF)}, {vr(VT+2)}, {sr(S_T3)}")
    a(f"v_lshl_add_u32 {vr(VOF)}, {vr(VT+4)}, 4, {vr(VOF)}")
    a(f"v_add_u32 {vr(VOF+1)}, 1024, {vr(VOF)}")
    a(f"v_mov_b32 {vr(VT+5)}, 0x7f000000")
    a(f"v_cmp_gt_u32 vcc, 8, {vr(VT+4)}")
    a("s_nop 1")
    a(f"v_cndmask_b32 {vr(VOF+1)}, {vr(VT+5)}, {vr(VOF+1)}, vcc")
    a(f"v_lshlrev_b32 {vr(VOF+2)}, 2, {vr(VT+2)}")
    a(f"v_add_u32 {vr(VOF+2)}, {HPART}, {vr(VOF+2)}")
    a(f"v_mov_b32 {vr(VT)}, {FLAG+4}")
    a(f"v_mov_b32 {vr(VT+1)}, 1")
    a("s_waitcnt lgkmcnt(0)")
    a("s_mov_b64 exec, 1")
    a(f"ds_add_u32 {vr(VT)}, {vr(VT+1)}")
    a("s_mov_b64 exec, -1")
    a.label("L_hsync")
    a(f"ds_read_b32 {vr(VT+1)}, {vr(VT)}")
    a("s_waitcnt lgkmcnt(0)")
    a(f"v_readfirstlane_b32 {sr(S_T0)}, {vr(VT+1)}")
    a("s_nop 3")
    a(f"s_cmp_ge_u32 {sr(S_T0)}, 4")
    a("s_cbranch_scc1 L_hsync_done")
    a("s_sleep 4")
    a("s_branch L_hsync")
    a.label("L_hsync_done")
    HS = VXA
    for t in range(9):
        a(f"ds_read_b32 {vr(HS+t)}, {vr(VOF+2)} offset:{4*t}")
        a(f"ds_read_b32 {vr(VT)}, {vr(VOF+2)} offset:{1024+4*t}")
        a(f"ds_read_b32 {vr(VT+1)}, {vr(VOF+2)} offset:{2048+4*t}")
        a(f"ds_read_b32 {vr(VT+2)}, {vr(VOF+2)} offset:{3072+4*t}")
        a("s_waitcnt lgkmcnt(0)")
        a(f"v_add_f32 {vr(HS+t)}, {vr(HS+t)}, {vr(VT)}")
        a(f"v_add_f32 {vr(VT+1)}, {vr(VT+1)}, {vr(VT+2)}")
        a(f"v_add_f32 {vr(HS+t)}, {vr(HS+t)}, {vr(VT+1)}")
    a("s_waitcnt vmcnt(0)")
    K1 = -2.0*math.log2(math.e)*math.sqrt(2.0/math.pi)
    a(f"s_mov_b32 {sr(S_T0)}, {hexf(0.044715)}")
    a(f"s_mov_b32 {sr(S_T1)}, {hexf(K1)}")
    for t in range(9):
        x = HS+t
        a(f"v_cvt_pk_bf16_f32 {vr(x)}, {vr(x)}, {vr(x)}")
        a(f"v_and_b32 {vr(x)}, {sr(S_MASKHI)}, {vr(x)}")
        a(f"v_lshlrev_b32 {vr(VF+t)}, 16, {vr(VF+t)}")
        a(f"v_add_f32 {vr(x)}, {vr(x)}, {vr(VF+t)}")
        a(f"v_cvt_pk_bf16_f32 {vr(x)}, {vr(x)}, {vr(x)}")
        a(f"v_and_b32 {vr(x)}, {sr(S_MASKHI)}, {vr(x)}")
        a(f"v_mul_f32 {vr(VT)}, {vr(x)}, {vr(x)}")
        a(f"v_mul_f32 {vr(VT)}, {vr(VT)}, {vr(x)}")
        a(f"v_fma_f32 {vr(VT)}, {vr(VT)}, {sr(S_T0)}, {vr(x)}")
        a(f"v_mul_f32 {vr(VT)}, {sr(S_T1)}, {vr(VT)}")
        a(f"v_exp_f32 {vr(VT)}, {vr(VT)}")
        a("s_nop 0")
        a(f"v_add_f32 {vr(VT)}, 1.0, {vr(VT)}")
        a(f"v_rcp_f32 {vr(VT)}, {vr(VT)}")
        a("s_nop 0")
        a(f"v_mul_f32 {vr(x)}, {vr(x)}, {vr(VT)}")
    HP = VF
    for k in range(4):
        a(f"v_cvt_pk_bf16_f32 {vr(HP+k)}, {vr(HS+2*k)}, {vr(HS+2*k+1)}")
    a(f"v_cvt_pk_bf16_f32 {vr(HP+4)}, {vr(HS+8)}, {vr(HS+8)}")

    def out_unit(t, base):
        fs = []
        for cg in range(4):
            def f(cg=cg):
                if cg == 0:
                    if cfg.ROT2 and t < 8:
                        a(f"s_and_b32 {sr(S_T3)}, {sr(S_B)}, {cfg.ROT2}")
                        a(f"s_xor_b32 {sr(S_T3)}, {sr(S_T3)}, {t}")
                        a(f"s_mul_i32 {sr(S_T3)}, {sr(S_T3)}, 1152")
                    else:
                        a(f"s_movk_i32 {sr(S_T3)}, {t*1152}")
                a(f"buffer_load_dwordx4 {vr(base+4*cg,4)}, {vr(VOF)}, {sr(S_SRDV,4)}, {sr(S_T3)} offen offset:{256*cg} {WF}")
            fs.append(f)
        fs.append(lambda: a(f"buffer_load_dwordx4 {vr(base+16,4)}, {vr(VOF+1)}, {sr(S_SRDV,4)}, {sr(S_T3)} offen {WF}"))
        return fs
    def out_comp(t, base, src, first):
        ao = VAO + 4*(t&1)
        diag(a, ao, src + (t>>1), t&1, SELE, SELO)
        a("s_nop 1")
        for cg in range(5):
            mfma(a, VACC+4*cg, ao, base+4*cg, None if first else VACC+4*cg)
    NB2 = 3
    paced([out_unit(t, VW + 20*(t % NB2)) for t in range(9)],
          lambda t: out_comp(t, VW + 20*(t % NB2), HP, t == 0), D=cfg.D2 or D)
    a(f"s_mul_i32 {sr(S_T0)}, {sr(S_H)}, {128*1152}")
    srd(a, S_SRDV, S_WO, S_T0, 128*1152)
    a(f"v_lshrrev_b32 {vr(VT+1)}, 4, {vr(V_LANE)}")
    a(f"v_and_b32 {vr(VT+4)}, 15, {vr(V_LANE)}")
    a(f"v_lshlrev_b32 {vr(VT+2)}, 3, {vr(VT+1)}")
    a(f"s_lshl_b32 {sr(S_T2)}, {sr(S_SW)}, 5")
    a(f"v_add_u32 {vr(VT+2)}, {sr(S_T2)}, {vr(VT+2)}")
    a(f"s_movk_i32 {sr(S_T3)}, 1152")
    a(f"v_mul_lo_u32 {vr(VOF)}, {vr(VT+2)}, {sr(S_T3)}")
    a(f"v_lshl_add_u32 {vr(VOF)}, {vr(VT+4)}, 4, {vr(VOF)}")
    a(f"v_add_u32 {vr(VOF+1)}, 1024, {vr(VOF)}")
    a(f"v_mov_b32 {vr(VT+5)}, 0x7f000000")
    a(f"v_cmp_gt_u32 vcc, 8, {vr(VT+4)}")
    a("s_nop 1")
    a(f"v_cndmask_b32 {vr(VOF+1)}, {vr(VT+5)}, {vr(VOF+1)}, vcc")
    paced([out_unit(t, VW + 20*t) for t in range(8)], lambda t: None, D=cfg.D3 or D)
    a(f"v_lshlrev_b32 {vr(VOF+2)}, 2, {vr(VT+2)}")
    a(f"v_add_u32 {vr(VOF+2)}, {OPART}, {vr(VOF+2)}")
    a(f"s_mul_i32 {sr(S_T0)}, {sr(S_SW)}, 2560")
    a(f"s_add_u32 {sr(S_T0)}, {sr(S_T0)}, {OUTP}")
    a(f"v_add_u32 {vr(VOF+3)}, {sr(S_T0)}, {vr(VOF+5)}")
    a(f"v_mov_b32 {vr(VOF+4)}, {ML}")
    a(f"s_mov_b32 {sr(S_C)}, {hexf(math.log2(math.e) if (cfg.RSCORE and cfg.SR) else C_SCALE)}")
    a("s_waitcnt vmcnt(0)")
    if cfg.POLL:
        a(f"s_cmp_lg_u32 {sr(S_H)}, {cfg.RED_H}")
        a("s_cbranch_scc1 L_started")
        a(f"s_cmp_lg_u32 {sr(S_SW)}, 0")
        a("s_cbranch_scc1 L_started")
        if cfg.STARTSIG == 'atomic':
            a(f"s_lshl_b32 {sr(S_T0)}, {sr(S_B)}, 5")
            a(f"v_mov_b32 {vr(VT)}, {sr(S_T0)}")
            a(f"s_mov_b32 {sr(S_T1)}, 200000")
            a.label("L_startchk")
            a(f"s_sub_u32 {sr(S_T1)}, {sr(S_T1)}, 1")
            a("s_cbranch_scc1 L_started")
            a(f"global_load_dword {vr(VT+1)}, {vr(VT)}, {sr(S_DBG,2)} offset:4 sc1")
            a("s_waitcnt vmcnt(0)")
            a(f"v_readfirstlane_b32 {sr(S_T0)}, {vr(VT+1)}")
            a("s_nop 3")
            a(f"s_cmp_ge_u32 {sr(S_T0)}, 32")
            a("s_cbranch_scc1 L_started")
            a("s_sleep 8")
            a("s_branch L_startchk")
        elif cfg.STARTSIG == 'byte':
            a(f"s_lshl_b32 {sr(S_T0)}, {sr(S_B)}, 5")
            a(f"v_and_b32 {vr(VT)}, 7, {vr(V_LANE)}")
            a(f"v_lshlrev_b32 {vr(VT)}, 2, {vr(VT)}")
            a(f"v_add_u32 {vr(VT)}, {sr(S_T0)}, {vr(VT)}")
            a(f"s_mov_b32 {sr(S_T1)}, 200000")
            a(f"s_mov_b32 {sr(S_T2)}, 0x01010101")
            a.label("L_startchk")
            a(f"s_sub_u32 {sr(S_T1)}, {sr(S_T1)}, 1")
            a("s_cbranch_scc1 L_started")
            a(f"global_load_dword {vr(VT+1)}, {vr(VT)}, {sr(S_DBG,2)} sc1")
            a("s_waitcnt vmcnt(0)")
            a(f"v_cmp_ne_u32 vcc, {sr(S_T2)}, {vr(VT+1)}")
            a("s_cbranch_vccz L_started")
            a("s_sleep 8")
            a("s_branch L_startchk")
        a.label("L_started")
    if cfg.CTL:
        T1, T2, nA, nB, nC = [int(x) for x in cfg.CTL.split(',')]
        niter = (128 - (4*cfg.PROUNDS + 8*cfg.K0))//8
        a(f"s_cmp_lg_u32 {sr(S_SW)}, 0")
        a("s_cbranch_scc1 L_ctl_done")
        a(f"v_mov_b32 {vr(VT)}, {FLAG+8}")
        a(f"ds_read_b32 {vr(VT+1)}, {vr(VT)}")
        a("s_waitcnt lgkmcnt(0)")
        a(f"v_readfirstlane_b32 {sr(S_T3)}, {vr(VT+1)}")
        a.label("L_ctl")
        a(f"s_cmp_ge_u32 {sr(S_T3)}, {niter - cfg.CTLSTOP}")
        a("s_cbranch_scc1 L_ctl_done")
        a("s_sleep 2")
        a(f"ds_read_b32 {vr(VT+1)}, {vr(VT)}")
        a("s_waitcnt lgkmcnt(0)")
        a(f"v_readfirstlane_b32 {sr(S_T2)}, {vr(VT+1)}")
        a("s_nop 3")
        a(f"s_cmp_eq_u32 {sr(S_T2)}, {sr(S_T3)}")
        a("s_cbranch_scc1 L_ctl")
        a(f"s_mov_b32 {sr(S_T3)}, {sr(S_T2)}")
        a(f"s_and_b32 {sr(S_T0)}, {sr(S_T3)}, 7")
        a(f"s_lshl_b32 {sr(S_T0)}, {sr(S_T0)}, 5")
        a(f"s_lshr_b32 {sr(S_T1)}, {sr(S_T3)}, 3")
        a(f"s_lshl_b32 {sr(S_T1)}, {sr(S_T1)}, 2")
        a(f"s_add_u32 {sr(S_T0)}, {sr(S_T0)}, {sr(S_T1)}")
        a(f"v_mov_b32 {vr(VT+2)}, {sr(S_T0)}")
        a(f"v_mov_b32 {vr(VT+3)}, 1")
        a("s_mov_b64 exec, 1")
        a(f"global_atomic_add {vr(VT+4)}, {vr(VT+2)}, {vr(VT+3)}, {sr(S_DBG,2)} offset:8 sc0")
        a("s_mov_b64 exec, -1")
        a("s_waitcnt vmcnt(0)")
        a(f"v_readfirstlane_b32 {sr(S_T0)}, {vr(VT+4)}")
        a("s_nop 3")
        a(f"s_mov_b32 {sr(S_T1)}, {nC}")
        a(f"s_cmp_lt_u32 {sr(S_T0)}, {T2}")
        a(f"s_cselect_b32 {sr(S_T1)}, {nB}, {sr(S_T1)}")
        a(f"s_cmp_lt_u32 {sr(S_T0)}, {T1}")
        a(f"s_cselect_b32 {sr(S_T1)}, {nA}, {sr(S_T1)}")
        a(f"v_mov_b32 {vr(VT+2)}, {sr(S_T1)}")
        a(f"ds_write_b32 {vr(VT)}, {vr(VT+2)} offset:4")
        a("s_branch L_ctl")
        a.label("L_ctl_done")
        a("s_waitcnt lgkmcnt(0)")
    stamp(a, cfg, 2)
    a("s_barrier")
    stamp(a, cfg, 3)
    MM = VXA; LL = VXA+4
    a(f"ds_read_b128 {vr(MM,4)}, {vr(VOF+4)}")
    a(f"ds_read_b128 {vr(LL,4)}, {vr(VOF+4)} offset:16")
    OR = [2, 10, 18, 80]
    for w in range(4):
        a(f"ds_read_b128 {vr(OR[w],4)}, {vr(VOF+2)} offset:{w*512}")
        a(f"ds_read_b128 {vr(OR[w]+4,4)}, {vr(VOF+2)} offset:{w*512+16}")
    a("s_waitcnt lgkmcnt(8)")
    mx = 26; tt = 27
    a(f"v_max3_f32 {vr(mx)}, {vr(MM)}, {vr(MM+1)}, {vr(MM+2)}")
    a(f"v_max_f32 {vr(mx)}, {vr(mx)}, {vr(MM+3)}")
    for w in range(4):
        a(f"v_sub_f32 {vr(MM+w)}, {vr(MM+w)}, {vr(mx)}")
    for w in range(4):
        a(f"v_mul_f32 {vr(MM+w)}, {sr(S_C)}, {vr(MM+w)}")
    for w in range(4):
        a(f"v_exp_f32 {vr(MM+w)}, {vr(MM+w)}")
    a("s_nop 0")
    a(f"v_mul_f32 {vr(tt)}, {vr(MM)}, {vr(LL)}")
    for w in range(1,4):
        a(f"v_fmac_f32 {vr(tt)}, {vr(MM+w)}, {vr(LL+w)}")
    a(f"v_rcp_f32 {vr(tt)}, {vr(tt)}")
    a("s_nop 0")
    for w in range(4):
        a(f"v_mul_f32 {vr(MM+w)}, {vr(MM+w)}, {vr(tt)}")
    a("s_waitcnt lgkmcnt(0)")
    for e in range(8):
        a(f"v_mul_f32 {vr(OR[0]+e)}, {vr(OR[0]+e)}, {vr(MM)}")
    for w in range(1,4):
        for e in range(8):
            a(f"v_fmac_f32 {vr(OR[0]+e)}, {vr(OR[w]+e)}, {vr(MM+w)}")
    OPK = 10
    for k in range(4):
        a(f"v_cvt_pk_bf16_f32 {vr(OPK+k)}, {vr(OR[0]+2*k)}, {vr(OR[0]+2*k+1)}")
    diag(a, VAO, OPK, 0, SELE, SELO)
    diag(a, VAO+4, OPK, 1, SELE, SELO)
    for t in range(8):
        ao = VAO + 4*(t&1)
        for cg in range(5):
            mfma(a, VACC+4*cg, ao, VW + 20*t + 4*cg, VACC+4*cg)
        if t + 2 < 8:
            diag(a, ao, OPK + ((t+2)>>1), (t+2)&1, SELE, SELO)
    a("s_mov_b32 exec_hi, 0")
    a("s_nop 2")
    for cg in range(5):
        a(f"ds_write_b128 {vr(VOF+3)}, {vr(VACC+4*cg,4)} offset:{512*cg}")
    a("s_mov_b64 exec, -1")
    a("s_waitcnt lgkmcnt(0)")


PR1=96; PR2=160; POWN=168; PXB=184; PVO=188; PVO0=189; PV2A=190; PV2B=191; PLA=192; POUT=193; PT=194
def set_poll_regs(base):
    global PR1, PR2, POWN, PXB, PVO, PVO0, PV2A, PV2B, PLA, POUT, PT
    PR1=base; PR2=base+64; POWN=base+72; PXB=base+88; PVO=base+92; PVO0=base+93; PV2A=base+94; PV2B=base+95; PLA=base+96; POUT=base+97; PT=base+98

def poll_setup(a, cfg):
    assert cfg.RED_H == 0
    L = 0
    a(f"s_mul_i32 {sr(S_T0)}, {sr(S_B)}, {32*2304}")
    srd(a, S_SRD2, S_WS, S_T0, 32*2304)
    a(f"s_mul_i32 {sr(S_T2)}, {sr(S_WAVE)}, 36")
    a(f"v_and_b32 {vr(PT)}, 31, {vr(L)}")
    a(f"v_add_u32 {vr(PT)}, {sr(S_T2)}, {vr(PT)}")
    a(f"v_lshlrev_b32 {vr(PVO)}, 4, {vr(PT)}")
    a(f"v_lshrrev_b32 {vr(PT+1)}, 5, {vr(L)}")
    a(f"s_mov_b32 {sr(S_T3)}, {16*2304}")
    a(f"v_mul_lo_u32 {vr(PT+1)}, {vr(PT+1)}, {sr(S_T3)}")
    a(f"v_add_u32 {vr(PVO)}, {vr(PVO)}, {vr(PT+1)}")
    a(f"v_mov_b32 {vr(PT+2)}, 0x7f000000")
    a(f"v_cmp_gt_u32 vcc, 32, {vr(L)}")
    a("s_nop 1")
    a(f"v_cndmask_b32 {vr(PVO0)}, {vr(PVO)}, {vr(PT+2)}, vcc")
    a(f"v_and_b32 {vr(PT)}, 3, {vr(L)}")
    a(f"v_add_u32 {vr(PT)}, {sr(S_T2)}, {vr(PT)}")
    a(f"v_add_u32 {vr(PT)}, 32, {vr(PT)}")
    a(f"v_lshlrev_b32 {vr(PV2A)}, 4, {vr(PT)}")
    a(f"v_lshrrev_b32 {vr(PT+1)}, 2, {vr(L)}")
    a(f"s_movk_i32 {sr(S_T3)}, {2*2304}")
    a(f"v_mul_lo_u32 {vr(PT+1)}, {vr(PT+1)}, {sr(S_T3)}")
    a(f"v_add_u32 {vr(PV2A)}, {vr(PV2A)}, {vr(PT+1)}")
    a(f"v_add_u32 {vr(PV2B)}, 2304, {vr(PV2A)}")
    a(f"v_cmp_gt_u32 vcc, 4, {vr(L)}")
    a("s_nop 1")
    a(f"v_cndmask_b32 {vr(PV2A)}, {vr(PV2A)}, {vr(PT+2)}, vcc")
    a(f"v_add_u32 {vr(PT)}, {sr(S_T2)}, {vr(L)}")
    a(f"v_lshlrev_b32 {vr(PLA)}, 4, {vr(PT)}")
    a(f"v_add_u32 {vr(PLA)}, {OUTP}, {vr(PLA)}")
    a(f"v_lshlrev_b32 {vr(POUT)}, 3, {vr(PT)}")
    a(f"v_cmp_gt_u32 vcc, 36, {vr(L)}")
    a("s_nop 1")
    a(f"v_cndmask_b32 {vr(POUT)}, {vr(PT+2)}, {vr(POUT)}, vcc")
    a(f"s_mul_i32 {sr(S_T0)}, {sr(S_B)}, 1152")
    srd(a, S_SRD3, S_X, S_T0, 1152)
    a(f"buffer_load_dwordx2 {vr(PXB,2)}, {vr(POUT)}, {sr(S_SRD3,4)}, 0 offen")
    srd(a, S_SRD3, S_B2, None, 1152)
    a(f"buffer_load_dwordx2 {vr(PXB+2,2)}, {vr(POUT)}, {sr(S_SRD3,4)}, 0 offen")

def gen_poll_tail(a, cfg):
    V_LANE = 0
    a("s_barrier")
    stamp(a, cfg, 4)
    a("s_branch L_done")
    a.label("L_tail")
    a(f"s_lshl_b32 {sr(S_T0)}, {sr(S_WAVE)}, 10")
    a(f"v_lshl_add_u32 v2, {vr(V_LANE)}, 4, {sr(S_T0)}")
    a(f"v_add_u32 v3, {OUTP}, v2")
    a(f"s_mul_i32 {sr(S_T0)}, {sr(S_WG)}, 2304")
    srd(a, S_SRD3, S_WS, S_T0, 2304)
    a("s_barrier")
    stamp(a, cfg, 4)
    a(f"s_cmp_ge_u32 {sr(S_WAVE)}, 3")
    a("s_cbranch_scc1 L_done")
    for sw in range(4):
        a(f"ds_read_b128 {vr(8+4*sw,4)}, v3 offset:{sw*2560}")
    a("s_waitcnt lgkmcnt(2)")
    a("v_pk_add_f32 v[8:9], v[8:9], v[12:13]")
    a("v_pk_add_f32 v[10:11], v[10:11], v[14:15]")
    a("s_waitcnt lgkmcnt(0)")
    a("v_pk_add_f32 v[16:17], v[16:17], v[20:21]")
    a("v_pk_add_f32 v[18:19], v[18:19], v[22:23]")
    a("v_pk_add_f32 v[8:9], v[8:9], v[16:17]")
    a("v_pk_add_f32 v[10:11], v[10:11], v[18:19]")
    a(f"buffer_store_dwordx4 v[8:11], v2, {sr(S_SRD3,4)}, 0 offen sc1")
    a("s_branch L_done")

    def pload(s):
        if s < 16:
            a(f"s_mov_b32 {sr(S_T0)}, {s*2304}")
            a(f"buffer_load_dwordx4 {vr(PR1+4*s,4)}, {vr(PVO0 if s == 0 else PVO)}, {sr(S_SRD2,4)}, {sr(S_T0)} offen sc1")
        else:
            a(f"buffer_load_dwordx4 {vr(PR2+4*(s-16),4)}, {vr(PV2A if s == 16 else PV2B)}, {sr(S_SRD2,4)}, 0 offen sc1")
    def reg(s): return PR1+4*s if s < 16 else PR2+4*(s-16)
    a.label("L_reducer")
    for s_ in range(18): pload(s_)
    a("s_barrier")
    stamp(a, cfg, 4)
    for sw in range(4):
        a(f"ds_read_b128 {vr(POWN+4*sw,4)}, {vr(PLA)} offset:{sw*2560}")
    a("s_waitcnt lgkmcnt(0)")
    for e in range(4):
        a(f"v_add_f32 {vr(POWN+e)}, {vr(POWN+e)}, {vr(POWN+4+e)}")
        a(f"v_add_f32 {vr(POWN+8+e)}, {vr(POWN+8+e)}, {vr(POWN+12+e)}")
    for e in range(4):
        a(f"v_add_f32 {vr(POWN+e)}, {vr(POWN+e)}, {vr(POWN+8+e)}")
    a(f"s_mov_b32 {sr(S_T1)}, 0xffff0000")
    for src in (PXB, PXB+2):
        a(f"v_lshlrev_b32 {vr(PT)}, 16, {vr(src)}")
        a(f"v_and_b32 {vr(PT+1)}, {sr(S_T1)}, {vr(src)}")
        a(f"v_lshlrev_b32 {vr(PT+2)}, 16, {vr(src+1)}")
        a(f"v_and_b32 {vr(PT+3)}, {sr(S_T1)}, {vr(src+1)}")
        for e in range(4):
            a(f"v_add_f32 {vr(POWN+e)}, {vr(POWN+e)}, {vr(PT+e)}")
    a(f"s_mul_i32 {sr(S_T0)}, {sr(S_B)}, 1152")
    srd(a, S_SRD3, S_OUT, S_T0, 1152)
    a(f"s_mov_b32 {sr(S_CNT)}, 200000")
    TS = PT + 4
    TQ = TS + 32
    a.label("L_poll")
    a(f"s_sub_u32 {sr(S_CNT)}, {sr(S_CNT)}, 1")
    a("s_cbranch_scc1 L_pollok")
    if cfg.POLLDBG:
        a(f"s_mov_b32 {sr(S_STAMP+2)}, {sr(S_STAMP+8)}")
        a(f"s_mov_b32 {sr(S_STAMP+3)}, {sr(S_STAMP+9)}")
        a(f"s_memrealtime {sr(S_STAMP+4,2)}")
    a("s_waitcnt vmcnt(0)")
    if cfg.POLLDBG:
        a(f"s_memrealtime {sr(S_STAMP+8,2)}")
        a("s_waitcnt lgkmcnt(0)")
    for k in range(0, 32, 2):
        a(f"v_pk_add_f32 {vr(TS+k,2)}, {vr(PR1+k,2)}, {vr(PR1+k+32,2)}")
    for k in (0, 2):
        a(f"v_pk_add_f32 {vr(TQ+k,2)}, {vr(PR2+k,2)}, {vr(PR2+4+k,2)}")
    for step in (16, 8, 4):
        for k in range(0, step, 2):
            a(f"v_pk_add_f32 {vr(TS+k,2)}, {vr(TS+k,2)}, {vr(TS+k+step,2)}")
    a(f"v_pk_add_f32 {vr(TS+4,2)}, {vr(TS,2)}, {vr(TS+2,2)}")
    a(f"v_pk_add_f32 {vr(TS+6,2)}, {vr(TQ,2)}, {vr(TQ+2,2)}")
    a(f"v_pk_add_f32 {vr(TS+4,2)}, {vr(TS+4,2)}, {vr(TS+6,2)}")
    a(f"v_cmp_u_f32 vcc, {vr(TS+4)}, {vr(TS+5)}")
    a("s_cbranch_vccz L_pollok")
    MASK = [16,18,20,22,24,26,28,30, 84,86,88,90,92,94,96,98,100, 4]
    tt = [PT, PT+1, PT+2, PT+3]
    for s_ in range(18):
        r = reg(s_); t0 = tt[s_ % 4]
        a(f"v_max3_u32 {vr(t0)}, {vr(r)}, {vr(r+1)}, {vr(r+2)}")
        a(f"v_max_u32 {vr(t0)}, {vr(t0)}, {vr(r+3)}")
        a(f"v_cmp_eq_u32 {sr(MASK[s_],2)}, -1, {vr(t0)}")
    a(f"s_mov_b32 {sr(S_T2)}, 0")
    a("s_nop 2")
    for s_ in range(18):
        a(f"s_cmp_lg_u64 {sr(MASK[s_],2)}, 0")
        a(f"s_cbranch_scc1 L_rl{s_}")
        a.label(f"L_rb{s_}")
    a(f"s_cmp_lg_u32 {sr(S_T2)}, 0")
    a("s_cbranch_scc1 L_poll")
    a("s_branch L_pollok")
    for s_ in range(18):
        a.label(f"L_rl{s_}")
        a(f"s_mov_b64 exec, {sr(MASK[s_],2)}")
        if s_ < 16:
            a(f"s_mov_b32 {sr(S_T0)}, {s_*2304}")
            a(f"buffer_load_dwordx4 {vr(PR1+4*s_,4)}, {vr(PVO0 if s_ == 0 else PVO)}, {sr(S_SRD2,4)}, {sr(S_T0)} offen sc1")
        else:
            a(f"buffer_load_dwordx4 {vr(PR2+4*(s_-16),4)}, {vr(PV2A if s_ == 16 else PV2B)}, {sr(S_SRD2,4)}, 0 offen sc1")
        a("s_mov_b64 exec, -1")
        a(f"s_mov_b32 {sr(S_T2)}, 1")
        a(f"s_branch L_rb{s_}")
    a.label("L_pollok")
    stamp(a, cfg, 5)
    if cfg.POLLDBG:
        a(f"s_sub_u32 {sr(S_STAMP+6)}, 200000, {sr(S_CNT)}")
        a(f"s_mov_b32 {sr(S_STAMP+7)}, 0")
    for e in range(4):
        a(f"v_mov_b32 {vr(PR1+e)}, {vr(TS+e)}")
        a(f"v_mov_b32 {vr(PR2+e)}, {vr(TQ+e)}")
    for e in range(4):
        a(f"v_mov_b32 {vr(PR1+8+e)}, {vr(PR1+e)}")
    a("s_nop 1")
    for e in range(4):
        a(f"v_permlane32_swap_b32 {vr(PR1+e)}, {vr(PR1+8+e)}")
    for r_ in (4, 8):
        for e in range(4):
            a(f"v_add_f32_dpp {vr(PR2+e)}, {vr(PR2+e)}, {vr(PR2+e)} row_ror:{r_} row_mask:0xf bank_mask:0xf")
    for e in range(4):
        a(f"v_add_f32 {vr(PR1+e)}, {vr(PR1+e)}, {vr(PR1+8+e)}")
    for e in range(4):
        a(f"v_mov_b32 {vr(PR2+4+e)}, {vr(PR2+e)}")
    a("s_nop 1")
    for e in range(4):
        a(f"v_permlane16_swap_b32 {vr(PR2+e)}, {vr(PR2+4+e)}")
    a("s_nop 1")
    for e in range(4):
        a(f"v_add_f32 {vr(PR2+e)}, {vr(PR2+e)}, {vr(PR2+4+e)}")
    for e in range(4):
        a(f"v_mov_b32 {vr(PR2+4+e)}, {vr(PR2+e)}")
    a("s_nop 1")
    for e in range(4):
        a(f"v_permlane32_swap_b32 {vr(PR2+e)}, {vr(PR2+4+e)}")
    a("s_nop 1")
    for e in range(4):
        a(f"v_add_f32 {vr(PR2+e)}, {vr(PR2+e)}, {vr(PR2+4+e)}")
    a(f"v_cmp_gt_u32 vcc, 32, {vr(V_LANE)}")
    a(f"s_mov_b32 {sr(S_T1)}, 0xffff0000")
    a("s_nop 0")
    for e in range(4):
        a(f"v_cndmask_b32 {vr(PR1+e)}, {vr(PR2+e)}, {vr(PR1+e)}, vcc")
    for e in range(4):
        a(f"v_add_f32 {vr(PR1+e)}, {vr(PR1+e)}, {vr(POWN+e)}")
    a(f"v_cvt_pk_bf16_f32 {vr(PR1)}, {vr(PR1)}, {vr(PR1+1)}")
    a(f"v_cvt_pk_bf16_f32 {vr(PR1+1)}, {vr(PR1+2)}, {vr(PR1+3)}")
    a(f"buffer_store_dwordx2 {vr(PR1,2)}, {vr(POUT)}, {sr(S_SRD3,4)}, 0 offen")

def gen_tail(a, cfg):
    V_LANE=0
    if cfg.POLL:
        gen_poll_tail(a, cfg)
    else:
        gen_count_tail(a, cfg)
    gen_end(a, cfg)

def gen_count_tail(a, cfg):
    V_LANE=0
    a.label("L_tail")
    a("s_barrier")
    stamp(a, cfg, 4)
    a(f"s_cmp_lg_u32 {sr(S_WAVE)}, 0")
    a("s_cbranch_scc1 L_wait_flag")
    a(f"v_lshlrev_b32 v2, 4, {vr(V_LANE)}")
    a(f"v_add_u32 v3, {OUTP}, v2")
    for k in range(3):
        for sw in range(4):
            a(f"ds_read_b128 {vr(8+16*k+4*sw,4)}, v3 offset:{sw*2560 + k*1024}")
    a(f"s_mul_i32 {sr(S_T0)}, {sr(S_WG)}, 2304")
    srd(a, S_SRD2, S_WS, S_T0, 2304)
    for k in range(3):
        a(f"s_waitcnt lgkmcnt({8-4*k})")
        b = 8+16*k
        for e in range(4):
            a(f"v_add_f32 {vr(b+e)}, {vr(b+e)}, {vr(b+4+e)}")
            a(f"v_add_f32 {vr(b+8+e)}, {vr(b+8+e)}, {vr(b+12+e)}")
        for e in range(4):
            a(f"v_add_f32 {vr(b+e)}, {vr(b+e)}, {vr(b+8+e)}")
        a(f"buffer_store_dwordx4 {vr(b,4)}, v2, {sr(S_SRD2,4)}, 0 offen offset:{1024*k} sc1")
    a("s_waitcnt vmcnt(0)")
    a(f"s_lshl_b32 {sr(S_T0)}, {sr(S_B)}, 5")
    a(f"v_mov_b32 v4, {sr(S_T0)}")
    a("v_mov_b32 v5, 1")
    a("s_mov_b64 exec, 1")
    a(f"global_atomic_add v6, v4, v5, {sr(S_DBG,2)} sc0")
    a("s_waitcnt vmcnt(0)")
    a(f"v_mov_b32 v7, {FLAG}")
    a("ds_write_b32 v7, v6")
    a("s_mov_b64 exec, -1")
    a("s_waitcnt lgkmcnt(0)")
    a.label("L_wait_flag")
    a("s_barrier")
    stamp(a, cfg, 5)
    a(f"v_mov_b32 v7, {FLAG}")
    a("ds_read_b32 v6, v7")
    a("s_waitcnt lgkmcnt(0)")
    a("s_nop 0")
    a(f"v_readfirstlane_b32 {sr(S_T0)}, v6")
    a("s_nop 3")
    a(f"s_cmp_lg_u32 {sr(S_T0)}, 31")
    a("s_cbranch_scc1 L_done")
    a(f"s_mul_i32 {sr(S_T0)}, {sr(S_B)}, {32*2304}")
    srd(a, S_SRD2, S_WS, S_T0, 32*2304)
    a(f"v_lshlrev_b32 v2, 4, {vr(V_LANE)}")
    a(f"v_add_u32 v3, 2048, v2")
    a("v_mov_b32 v4, 0x7f000000")
    a(f"v_cmp_gt_u32 vcc, 16, {vr(V_LANE)}")
    a("s_nop 1")
    a("v_cndmask_b32 v3, v4, v3, vcc")
    a(f"s_mul_i32 {sr(S_T1)}, {sr(S_WAVE)}, {4*2304}")
    for u in range(4):
        a(f"buffer_load_dwordx4 {vr(8+12*u,4)}, v2, {sr(S_SRD2,4)}, {sr(S_T1)} offen sc1")
        a(f"buffer_load_dwordx4 {vr(12+12*u,4)}, v2, {sr(S_SRD2,4)}, {sr(S_T1)} offen offset:1024 sc1")
        a(f"buffer_load_dwordx4 {vr(16+12*u,4)}, v3, {sr(S_SRD2,4)}, {sr(S_T1)} offen sc1")
        if u < 3: a(f"s_add_u32 {sr(S_T1)}, {sr(S_T1)}, 2304")
    a(f"s_mul_i32 {sr(S_T0)}, {sr(S_B)}, 1152")
    srd(a, S_SRD3, S_X, S_T0, 1152)
    srd(a, S_SRDK, S_B2, None, 1152)
    a(f"s_lshl_b32 {sr(S_T2)}, {sr(S_WAVE)}, 6")
    a(f"v_add_u32 v5, {sr(S_T2)}, {vr(V_LANE)}")
    a("v_lshlrev_b32 v6, 3, v5")
    a(f"buffer_load_dwordx2 v[60:61], v6, {sr(S_SRD3,4)}, 0 offen")
    a(f"buffer_load_dwordx2 v[62:63], v6, {sr(S_SRDK,4)}, 0 offen")
    a("s_waitcnt vmcnt(2)")
    for e in range(12):
        a(f"v_add_f32 {vr(8+e)}, {vr(8+e)}, {vr(20+e)}")
        a(f"v_add_f32 {vr(32+e)}, {vr(32+e)}, {vr(44+e)}")
    for e in range(12):
        a(f"v_add_f32 {vr(8+e)}, {vr(8+e)}, {vr(32+e)}")
    a(f"s_mul_i32 {sr(S_T0)}, {sr(S_WAVE)}, 3072")
    a(f"v_add_u32 v7, {sr(S_T0)}, v2")
    for k in range(3):
        a(f"ds_write_b128 v7, {vr(8+4*k,4)} offset:{RED + 1024*k}")
    a("s_waitcnt lgkmcnt(0)")
    a("s_barrier")
    a(f"s_cmp_ge_u32 {sr(S_WAVE)}, 3")
    a("s_cbranch_scc1 L_done")
    a("v_lshlrev_b32 v7, 4, v5")
    for w in range(8):
        a(f"ds_read_b128 {vr(8+4*w,4)}, v7 offset:{RED + 3072*w}")
    a("s_waitcnt lgkmcnt(0)")
    for e in range(4):
        a(f"v_add_f32 {vr(8+e)}, {vr(8+e)}, {vr(12+e)}")
        a(f"v_add_f32 {vr(16+e)}, {vr(16+e)}, {vr(20+e)}")
        a(f"v_add_f32 {vr(24+e)}, {vr(24+e)}, {vr(28+e)}")
        a(f"v_add_f32 {vr(32+e)}, {vr(32+e)}, {vr(36+e)}")
    for e in range(4):
        a(f"v_add_f32 {vr(8+e)}, {vr(8+e)}, {vr(16+e)}")
        a(f"v_add_f32 {vr(24+e)}, {vr(24+e)}, {vr(32+e)}")
    for e in range(4):
        a(f"v_add_f32 {vr(8+e)}, {vr(8+e)}, {vr(24+e)}")
    a("s_waitcnt vmcnt(0)")
    a(f"s_mov_b32 {sr(S_T1)}, 0xffff0000")
    for (src) in (60, 62):
        a(f"v_lshlrev_b32 v40, 16, {vr(src)}")
        a(f"v_and_b32 v41, {sr(S_T1)}, {vr(src)}")
        a(f"v_lshlrev_b32 v42, 16, {vr(src+1)}")
        a(f"v_and_b32 v43, {sr(S_T1)}, {vr(src+1)}")
        for e in range(4):
            a(f"v_add_f32 {vr(8+e)}, {vr(8+e)}, {vr(40+e)}")
    a("v_cvt_pk_bf16_f32 v8, v8, v9")
    a("v_cvt_pk_bf16_f32 v9, v10, v11")
    a(f"s_mul_i32 {sr(S_T0)}, {sr(S_B)}, 1152")
    srd(a, S_SRD2, S_OUT, S_T0, 1152)
    a(f"buffer_store_dwordx2 v[8:9], v6, {sr(S_SRD2,4)}, 0 offen")

def gen_end(a, cfg):
    a.label("L_done")
    if cfg.SPINTO or cfg.SPINX >= 0:
        a(f"s_cmp_lg_u32 {sr(S_WAVE)}, 0")
        a("s_cbranch_scc1 L_exit")
        a(f"s_memrealtime {sr(S_STAMP+12,2)}")
        a("s_waitcnt lgkmcnt(0)")
        if cfg.SPINTO:
            a(f"s_add_u32 {sr(S_T2)}, {sr(S_STAMP)}, {cfg.SPINTO}")
        else:
            a(f"s_sub_u32 {sr(S_T2)}, {sr(S_STAMP+2*cfg.SPINX)}, {sr(S_STAMP)}")
            a(f"s_add_u32 {sr(S_T2)}, {sr(S_T2)}, {sr(S_STAMP+12)}")
        a.label("L_spin")
        a(f"s_memrealtime {sr(S_STAMP+12,2)}")
        a("s_waitcnt lgkmcnt(0)")
        a(f"s_sub_u32 {sr(S_T3)}, {sr(S_STAMP+12)}, {sr(S_T2)}")
        a(f"s_cmp_lt_i32 {sr(S_T3)}, 0")
        a("s_cbranch_scc1 L_spin")
    if cfg.DBGT:
        a(f"s_memrealtime {sr(S_STAMP+12,2)}")
        a("s_waitcnt lgkmcnt(0)")
        a(f"s_cmp_lg_u32 {sr(S_WAVE)}, 0")
        a("s_cbranch_scc1 L_exit")
        a("s_mov_b64 exec, 1")
        a("v_mov_b32 v2, 0")
        for (w, idx, inv) in [(1,0,True),(2,2,False),(3,3,False),(4,6,False),(5,3,True),(6,6,True),(7,2,True)]:
            a(f"v_mov_b32 v4, {sr(S_STAMP+2*idx)}")
            if inv: a("v_not_b32 v4, v4")
            a(f"global_atomic_umax v2, v4, {sr(S_DBG,2)} offset:{4*w}")
    if cfg.STAMPS:
        stamp(a, cfg, 6)
        a("s_waitcnt lgkmcnt(0)")
        a(f"s_lshl_b32 {sr(S_T0)}, {sr(S_WG)}, 3")
        a(f"s_add_u32 {sr(S_T0)}, {sr(S_T0)}, {sr(S_WAVE)}")
        a(f"s_lshl_b32 {sr(S_T0)}, {sr(S_T0)}, 6")
        a(f"s_add_u32 {sr(S_T0)}, {sr(S_T0)}, 0x100000")
        a(f"v_mov_b32 v2, {sr(S_T0)}")
        a("s_mov_b64 exec, 1")
        for k in range(7):
            a(f"v_mov_b32 v4, {sr(S_STAMP+2*k)}")
            a(f"v_mov_b32 v5, {sr(S_STAMP+2*k+1)}")
            a(f"global_store_dwordx2 v2, v[4:5], {sr(S_WS,2)} offset:{8*k}")
    a.label("L_exit")
    a("s_endpgm")

def generate(cfg):
    a = Asm()
    stamp(a, cfg, 0)
    a(f"s_cmp_ge_u32 {sr(S_WG)}, 256")
    a("s_cbranch_scc1 L_exit")
    a(f"s_load_dwordx4 {sr(S_K,4)}, s[0:1], 8")
    a(f"s_load_dwordx2 {sr(S_X,2)}, s[0:1], 0")
    a(f"s_load_dwordx4 {sr(S_WQ,4)}, s[0:1], 24")
    a(f"s_load_dwordx4 {sr(S_W1,4)}, s[0:1], 48")
    a(f"s_load_dwordx4 {sr(S_W2,4)}, s[0:1], 64")
    a(f"s_load_dwordx4 {sr(S_OUT,4)}, s[0:1], 80")
    a(f"s_load_dwordx2 {sr(S_WS,2)}, s[0:1], 96")
    a("v_lshrrev_b32 v1, 6, v0")
    a(f"s_lshr_b32 {sr(S_B)}, {sr(S_WG)}, 5")
    a(f"v_readfirstlane_b32 {sr(S_WAVE)}, v1")
    if cfg.HMAP:
        a(f"s_and_b32 {sr(S_H)}, {sr(S_WG)}, 7")
        a(f"s_lshl_b32 {sr(S_H)}, {sr(S_H)}, 2")
        a(f"s_bfe_u32 {sr(S_T0)}, {sr(S_WG)}, 0x20003")
        a(f"s_add_u32 {sr(S_H)}, {sr(S_H)}, {sr(S_T0)}")
    else:
        a(f"s_and_b32 {sr(S_H)}, {sr(S_WG)}, 31")
    a("v_and_b32 v0, 63, v0")
    if cfg.HMAP:
        a(f"s_lshl_b32 {sr(S_WG)}, {sr(S_B)}, 5")
        a(f"s_add_u32 {sr(S_WG)}, {sr(S_WG)}, {sr(S_H)}")
    a("s_nop 1")
    a(f"s_cmp_ge_u32 {sr(S_WAVE)}, 4")
    if not cfg.SR: a("s_waitcnt lgkmcnt(0)")
    a("s_cbranch_scc1 L_side")
    (gen_stream_sr if cfg.SR else gen_stream)(a, cfg)
    gen_side(a, cfg)
    gen_tail(a, cfg)
    body = a.text()
    hdr = f"""; Fused decode block: LN -> (MHA over KV cache -> out proj) + (LN -> MLP) + residual.
; Kernarg layout (104 bytes): A_x, K, V, wq, wo, B_x, w1, b1, w2, b2, out, debug, ws
; @launch grid=(256,1,1) block=(512,1,1) lds={LDS_BYTES}
.amdgcn_target "amdgcn-amd-amdhsa--gfx950"
.text
.globl {KNAME}
.p2align 8
.type {KNAME},@function
{KNAME}:
"""
    ftr = f"""
.section .rodata,"a"
.p2align 6
.amdhsa_kernel {KNAME}
  .amdhsa_next_free_vgpr 256
  .amdhsa_next_free_sgpr 102
  .amdhsa_accum_offset 256
  .amdhsa_group_segment_fixed_size 0
  .amdhsa_kernarg_size 104
  .amdhsa_user_sgpr_count 2
  .amdhsa_user_sgpr_kernarg_segment_ptr 1
  .amdhsa_system_sgpr_workgroup_id_x 1
  .amdhsa_float_denorm_mode_32 3
.end_amdhsa_kernel
"""
    return hdr + body + ftr

if __name__ == "__main__":
    cfg = Cfg()
    out = sys.argv[1]
    for kv in sys.argv[2:]:
        k, v = kv.split("=")
        cur = getattr(cfg, k)
        if isinstance(cur, bool): v = v in ("1","True","true")
        elif isinstance(cur, int): v = int(v)
        setattr(cfg, k, v)
    open(out, "w").write(generate(cfg))
    print("wrote", out, "LDS", LDS_BYTES)
```

```python
import sys, math

KNAME = "parallel_sum__mha_block_cached__mixer_channel_mlp__decode_kernel"

class Cfg:
    N = 5
    RUNAHEAD = 56
    PROUNDS = 4
    XTRA = 0
    RSCORE = 1
    RAMP = ''
    MMAP = 1
    POLLDBG = False
    D2 = 0
    D3 = 3
    SR = 1
    DQ = 4
    ROT2 = 0
    HMAP = 0
    STARTSIG = 'atomic'
    CTLSTOP = 1
    VERS = '5,7'
    WPOL = ''
    CTL = ''
    NT = 7
    KT = 1
    POLL = True
    RED_H = 0
    REDB = 1
    K0 = 1
    B2_ITER = 3
    WFLAGS = ""
    NOSIDE = False
    NOCONS = False
    ITSTAMP = False
    DEPTH = 2
    ROT = True
    DBGT = False
    SPINTO = 0
    SPINX = -1
    PROSTAMP = False
    KFLAGS = "nt"
    VFLAGS = "nt"
    STAMPS = False
    PRIO = 2
    perm = 0

RING = 0
MISC = 131072
QPART = MISC
QBF   = QPART + 2048
HPART = QBF + 1024
OPART = HPART + 4096
ML    = OPART + 2048
OUTP  = ML + 64
XPRIV = OUTP
FLAG  = OUTP + 10240
LDS_END = FLAG + 64
RED   = 0
LDS_BYTES = (LDS_END + 1024 + 255)//256*256

C_SCALE = (128 ** -0.5) * math.log2(math.e)

import struct
def f2u(x): return struct.unpack("<I", struct.pack("<f", x))[0]
def hexf(x): return "0x%08x" % f2u(x)

class Asm:
    def __init__(self): self.L = []
    def __call__(self, s): self.L.append("  " + s)
    def label(self, s): self.L.append(s + ":")
    def c(self, s): self.L.append("  ; " + s)
    def text(self): return "\n".join(self.L)

def vr(b, n=1): return f"v{b}" if n == 1 else f"v[{b}:{b+n-1}]"
def sr(b, n=1): return f"s{b}" if n == 1 else f"s[{b}:{b+n-1}]"

S_WG=2; S_WAVE=3
S_K=4; S_V=6
S_SRDK=8; S_SRDV=12
S_X=16
S_WQ=20; S_WO=22
S_W1=24; S_B1=26
S_W2=28; S_B2=30
S_OUT=32; S_DBG=34
S_WS=36
S_B=38; S_H=39; S_M=63
S_T0=40; S_T1=41; S_T2=42; S_T3=43
S_OFFA=44; S_OFFB=45; S_RING=46; S_CNT=47
S_C=48
S_SRD2=52
S_SRD3=56
S_EX=60
S_SW=62
S_STAMP=64
S_MASKHI=80
S_TS=82

def allreduce_sum(a, v, t):
    for r in (8,4,2,1):
        a("s_nop 1")
        a(f"v_add_f32_dpp {vr(v)}, {vr(v)}, {vr(v)} row_ror:{r} row_mask:0xf bank_mask:0xf")
    a(f"v_mov_b32 {vr(t)}, {vr(v)}")
    a("s_nop 1")
    a(f"v_permlane16_swap_b32 {vr(v)}, {vr(t)}")
    a("s_nop 1")
    a(f"v_add_f32 {vr(v)}, {vr(v)}, {vr(t)}")
    a(f"v_mov_b32 {vr(t)}, {vr(v)}")
    a("s_nop 1")
    a(f"v_permlane32_swap_b32 {vr(v)}, {vr(t)}")
    a("s_nop 1")
    a(f"v_add_f32 {vr(v)}, {vr(v)}, {vr(t)}")

def groups_allreduce(a, v, t, op):
    a(f"v_mov_b32 {vr(t)}, {vr(v)}")
    a("s_nop 1")
    a(f"v_permlane16_swap_b32 {vr(v)}, {vr(t)}")
    a("s_nop 1")
    a(f"{op} {vr(v)}, {vr(v)}, {vr(t)}")
    a(f"v_mov_b32 {vr(t)}, {vr(v)}")
    a("s_nop 1")
    a(f"v_permlane32_swap_b32 {vr(v)}, {vr(t)}")
    a("s_nop 1")
    a(f"{op} {vr(v)}, {vr(v)}, {vr(t)}")

def make_selectors(a, lane, selE, selO, t0, t1, t2, t3):
    a(f"v_and_b32 {vr(t0)}, 15, {vr(lane)}")
    a(f"v_and_b32 {vr(t1)}, 1, {vr(t0)}")
    a(f"v_mov_b32 {vr(t2)}, 0x0c0c0100")
    a(f"v_mov_b32 {vr(t3)}, 0x01000c0c")
    a(f"v_cmp_eq_u32 vcc, 1, {vr(t1)}")
    a("s_nop 1")
    a(f"v_cndmask_b32 {vr(t2)}, {vr(t2)}, {vr(t3)}, vcc")
    a(f"v_mov_b32 {vr(t3)}, 0x0c0c0302")
    a(f"v_mov_b32 {vr(t1)}, 0x03020c0c")
    a(f"v_cndmask_b32 {vr(t3)}, {vr(t3)}, {vr(t1)}, vcc")
    a(f"v_lshrrev_b32 {vr(t0)}, 1, {vr(t0)}")
    a(f"v_mov_b32 {vr(t1)}, 0x0c0c0c0c")
    for k in range(4):
        a(f"v_cmp_eq_u32 vcc, {k}, {vr(t0)}")
        a("s_nop 1")
        a(f"v_cndmask_b32 {vr(selE+k)}, {vr(t1)}, {vr(t2)}, vcc")
        a(f"v_cndmask_b32 {vr(selO+k)}, {vr(t1)}, {vr(t3)}, vcc")

def diag(a, dst, P, parity, selE, selO):
    sel = selO if parity else selE
    for k in range(4):
        a(f"v_perm_b32 {vr(dst+k)}, {vr(P)}, {vr(P)}, {vr(sel+k)}")

def mfma(a, D, A, B, C):
    c = "0" if C is None else vr(C,4)
    a(f"v_mfma_f32_16x16x32_bf16 {vr(D,4)}, {vr(A,4)}, {vr(B,4)}, {c}")

def stamp(a, cfg, idx):
    if cfg.PROSTAMP and idx in (2,4,5): return
    if cfg.STAMPS or ((cfg.DBGT or cfg.SPINTO or cfg.SPINX >= 0) and idx in (0,1,2,3)):
        a(f"s_memrealtime {sr(S_STAMP+2*idx,2)}")

def srd(a, d, base, off_lo_sreg_or_none, size):
    if off_lo_sreg_or_none is None:
        a(f"s_mov_b32 {sr(d)}, {sr(base)}")
        a(f"s_mov_b32 {sr(d+1)}, {sr(base+1)}")
    else:
        a(f"s_add_u32 {sr(d)}, {sr(base)}, {sr(off_lo_sreg_or_none)}")
        a(f"s_addc_u32 {sr(d+1)}, {sr(base+1)}, 0")
    if isinstance(size, int):
        a(f"s_mov_b32 {sr(d+2)}, {size}")
    else:
        a(f"s_mov_b32 {sr(d+2)}, {size}")
    a(f"s_mov_b32 {sr(d+3)}, 0x20000")

def gen_stream(a, cfg):
    N = cfg.N
    LAG = 3 + N
    PR = cfg.PROUNDS
    assert PR in (0, 2, 4)
    V_LANE=0
    VK=2
    VV=6
    VVD=7
    VKR=8
    VVR=12
    VT=13
    VQ=16
    VA=32
    VS=48
    VP=56
    VAO=60
    VO=68
    VM=72; VL=73; VAL=74; VMC=75
    SELE=76; SELO=80
    VX=84
    VD=96

    a.label("L_stream")
    if cfg.PRIO: a(f"s_setprio {cfg.PRIO}")
    a(f"s_lshl_b32 {sr(S_T0)}, {sr(S_WG)}, 20")
    srd(a, S_SRDK, S_K, S_T0, 0x100000)
    srd(a, S_SRDV, S_V, S_T0, 0x100000)
    a(f"s_lshl_b32 {sr(S_OFFA)}, {sr(S_WAVE)}, 13")
    a(f"s_add_u32 {sr(S_OFFB)}, {sr(S_OFFA)}, 4096")
    a(f"s_lshl_b32 {sr(S_RING)}, {sr(S_WAVE)}, 15")

    NP = 16*PR
    def load_desc(i):
        if i < NP:
            r, p = divmod(i, 16)
            half = (p % 8)//4; j = p % 4
            if p < 8: return dict(kind='K', j=j, half=half, slot=2*r+half, last=False, req=None)
            return dict(kind='VD', j=j, half=half, dst=VD+32*r+16*half+4*j, last=(p == 15), req=None)
        ip = i - NP
        g = ip//4; j = ip % 4; pos = (ip % 16)//4
        slot = g % 8
        if ip < 32:
            req = None if slot >= 2*PR else 4*(slot//2) + (slot % 2)
        else:
            req = 4*PR + (ip-32)//4
        return dict(kind='K' if pos < 2 else 'V', j=j, half=pos % 2, slot=slot, last=(ip % 16 == 15), req=req)
    def unit_desc(u):
        if u < 4*PR:
            r, pos = divmod(u, 4)
            if pos < 2: return dict(pos=pos, slot=2*r+pos, need=16*r+4*pos+3, direct=None)
            return dict(pos=pos, slot=None, need=16*r+8+4*(pos-2)+3, direct=VD+32*r+16*(pos-2))
        g = u - 4*PR
        return dict(pos=g % 4, slot=g % 8, need=NP+4*g+3, direct=None)

    state = {"m0": None}
    win = {"n": N}
    def issue(i, wait=True):
        d = load_desc(i)
        so = S_OFFB if d['half'] else S_OFFA
        if d['kind'] != 'VD' and state["m0"] != d['slot']:
            a(f"s_add_u32 m0, {sr(S_RING)}, {d['slot']*4096}")
            state["m0"] = d['slot']
            if not wait: a("s_nop 0")
        if wait: a(f"s_waitcnt vmcnt({win['n']-1})")
        j = d['j']
        if d['kind'] == 'K':
            a(f"buffer_load_dwordx4 {vr(VK+j)}, {sr(S_SRDK,4)}, {sr(so)} offen offset:{j*1024} {cfg.KFLAGS} lds")
        elif d['kind'] == 'V':
            a(f"buffer_load_dwordx4 {vr(VV)}, {sr(S_SRDV,4)}, {sr(so)} offen offset:{j*1024} {cfg.VFLAGS} lds")
        else:
            a(f"buffer_load_dwordx4 {vr(d['dst'],4)}, {vr(VVD)}, {sr(S_SRDV,4)}, {sr(so)} offen offset:{j*256} {cfg.VFLAGS}")
        if d['last']:
            a(f"s_add_u32 {sr(S_OFFA)}, {sr(S_OFFA)}, 32768")
            a(f"s_add_u32 {sr(S_OFFB)}, {sr(S_OFFB)}, 32768")

    def piece(u, p):
        if cfg.NOCONS: return
        d = unit_desc(u)
        pos = d['pos']
        if pos < 2:
            S = VS + 4*pos
            slot = d['slot']*4096
            if p == 0:
                for t in range(4):
                    a(f"ds_read_b128 {vr(VA+4*t,4)}, {vr(VKR+t)} offset:{slot}")
            elif p == 1:
                for t in range(4):
                    a(f"s_waitcnt lgkmcnt({3-t})")
                    mfma(a, S, VA+4*t, VQ+4*t, None if t == 0 else S)
            elif pos == 1 and p == 2:
                softmax_a()
            elif pos == 1 and p == 3:
                softmax_b()
        else:
            half = pos - 2
            if d['direct'] is None:
                if p == 0:
                    for r in range(4):
                        a(f"ds_read_b128 {vr(VA+4*r,4)}, {vr(VVR)} offset:{d['slot']*4096 + r*256}")
                r = p
                ao = VAO + 4*(r&1)
                diag(a, ao, VP + 2*half + (r>>1), r&1, SELE, SELO)
                a(f"s_waitcnt lgkmcnt({3-r})")
                a("s_nop 0")
                mfma(a, VO, ao, VA+4*r, VO)
            else:
                r = p
                ao = VAO + 4*(r&1)
                diag(a, ao, VP + 2*half + (r>>1), r&1, SELE, SELO)
                a("s_nop 1")
                mfma(a, VO, ao, d['direct']+4*r, VO)

    def softmax_a():
        a(f"v_max3_f32 {vr(VX)}, {vr(VS)}, {vr(VS+1)}, {vr(VS+2)}")
        a(f"v_max3_f32 {vr(VX)}, {vr(VX)}, {vr(VS+3)}, {vr(VM)}")
        a("s_nop 5")
        a(f"v_max3_f32 {vr(VX+1)}, {vr(VS+4)}, {vr(VS+5)}, {vr(VS+6)}")
        a(f"v_max3_f32 {vr(VX)}, {vr(VX)}, {vr(VS+7)}, {vr(VX+1)}")
        groups_allreduce(a, VX, VX+1, "v_max_f32")
        a(f"v_sub_f32 {vr(VAL)}, {vr(VM)}, {vr(VX)}")
        a(f"v_mul_f32 {vr(VMC)}, {sr(S_C)}, {vr(VX)}")
        a(f"v_mul_f32 {vr(VAL)}, {sr(S_C)}, {vr(VAL)}")
        a(f"v_mov_b32 {vr(VM)}, {vr(VX)}")
        a(f"v_exp_f32 {vr(VAL)}, {vr(VAL)}")
        for r in range(8):
            a(f"v_fma_f32 {vr(VS+r)}, {vr(VS+r)}, {sr(S_C)}, -{vr(VMC)}")
    def softmax_b():
        for r in range(8):
            a(f"v_exp_f32 {vr(VS+r)}, {vr(VS+r)}")
        for r in range(4):
            a(f"v_mul_f32 {vr(VO+r)}, {vr(VO+r)}, {vr(VAL)}")
        a(f"v_mul_f32 {vr(VL)}, {vr(VL)}, {vr(VAL)}")
        a(f"v_add_f32 {vr(VX)}, {vr(VS)}, {vr(VS+1)}")
        a(f"v_add_f32 {vr(VX+1)}, {vr(VS+2)}, {vr(VS+3)}")
        a(f"v_add_f32 {vr(VX+2)}, {vr(VS+4)}, {vr(VS+5)}")
        a(f"v_add_f32 {vr(VX+3)}, {vr(VS+6)}, {vr(VS+7)}")
        for r in range(4):
            a(f"v_cvt_pk_bf16_f32 {vr(VP+r)}, {vr(VS+2*r)}, {vr(VS+2*r+1)}")
        a(f"v_add_f32 {vr(VX)}, {vr(VX)}, {vr(VX+1)}")
        a(f"v_add_f32 {vr(VX+2)}, {vr(VX+2)}, {vr(VX+3)}")
        a(f"v_add_f32 {vr(VL)}, {vr(VL)}, {vr(VX)}")
        a(f"v_add_f32 {vr(VL)}, {vr(VL)}, {vr(VX+2)}")

    a(f"v_lshrrev_b32 {vr(VT)}, 4, {vr(V_LANE)}")
    a(f"v_and_b32 {vr(VT+1)}, 15, {vr(V_LANE)}")
    for j in range(4):
        a(f"v_add_u32 {vr(VK+j)}, {4*j}, {vr(VT)}")
        a(f"v_xor_b32 {vr(VK+j)}, {vr(VK+j)}, {vr(VT+1)}")
        a(f"v_lshlrev_b32 {vr(VK+j)}, 4, {vr(VK+j)}")
        a(f"v_lshl_add_u32 {vr(VK+j)}, {vr(VT)}, 8, {vr(VK+j)}")
    for i in range(N): issue(i, wait=False)
    a(f"v_lshlrev_b32 {vr(VV)}, 4, {vr(V_LANE)}")
    a(f"v_lshlrev_b32 {vr(VVD)}, 10, {vr(VT)}")
    a(f"v_lshl_add_u32 {vr(VVD)}, {vr(VT+1)}, 4, {vr(VVD)}")
    for t in range(4):
        a(f"v_add_u32 {vr(VKR+t)}, {4*t}, {vr(VT)}")
        a(f"v_xor_b32 {vr(VKR+t)}, {vr(VKR+t)}, {vr(VT+1)}")
        a(f"v_lshlrev_b32 {vr(VKR+t)}, 4, {vr(VKR+t)}")
        a(f"v_lshl_add_u32 {vr(VKR+t)}, {vr(VT+1)}, 8, {vr(VKR+t)}")
        a(f"v_add_u32 {vr(VKR+t)}, {sr(S_RING)}, {vr(VKR+t)}")
    a(f"v_add_u32 {vr(VVR)}, {sr(S_RING)}, {vr(VVD)}")
    make_selectors(a, V_LANE, SELE, SELO, VX, VX+1, VX+2, VX+3)
    a(f"v_mov_b32 {vr(VM)}, 0xff800000")
    a(f"v_mov_b32 {vr(VL)}, 0")
    for r in range(4): a(f"v_mov_b32 {vr(VO+r)}, 0")
    a(f"s_mov_b32 {sr(S_C)}, {hexf(C_SCALE)}")

    RA = cfg.RUNAHEAD
    for i in range(N, RA):
        assert load_desc(i)['req'] is None
        issue(i)
        if cfg.PROSTAMP and i == N: a(f"s_memrealtime {sr(S_STAMP+4,2)}")
        if cfg.PROSTAMP and i == 20: a(f"s_memrealtime {sr(S_STAMP+8,2)}")
        if cfg.PROSTAMP and i == 40: a(f"s_memrealtime {sr(S_STAMP+10,2)}")
    stamp(a, cfg, 1)
    a("s_barrier")
    stamp(a, cfg, 2)
    nxt = RA
    def try_issue(done_units):
        nonlocal nxt
        d = load_desc(nxt)
        if d['req'] is not None and d['req'] >= done_units: return False
        issue(nxt); nxt += 1
        return True
    a(f"v_lshlrev_b32 {vr(VX)}, 4, {vr(V_LANE)}")
    a(f"v_and_b32 {vr(VX)}, 0x1ff, {vr(VX)}")
    a(f"v_add_u32 {vr(VX)}, {QPART}, {vr(VX)}")
    for p in range(4):
        a(f"ds_read_b128 {vr(VA+4*p,4)}, {vr(VX)} offset:{p*512}")
    try_issue(0); try_issue(0)
    a("s_waitcnt lgkmcnt(0)")
    for e in range(4):
        a(f"v_add_f32 {vr(VA+e)}, {vr(VA+e)}, {vr(VA+4+e)}")
        a(f"v_add_f32 {vr(VA+8+e)}, {vr(VA+8+e)}, {vr(VA+12+e)}")
    for e in range(4):
        a(f"v_add_f32 {vr(VA+e)}, {vr(VA+e)}, {vr(VA+8+e)}")
    a(f"v_cvt_pk_bf16_f32 {vr(VA+4)}, {vr(VA)}, {vr(VA+1)}")
    a(f"v_cvt_pk_bf16_f32 {vr(VA+5)}, {vr(VA+2)}, {vr(VA+3)}")
    a(f"v_lshlrev_b32 {vr(VX+1)}, 3, {vr(V_LANE)}")
    a(f"v_and_b32 {vr(VX+1)}, 0xff, {vr(VX+1)}")
    a(f"s_lshl_b32 {sr(S_T0)}, {sr(S_WAVE)}, 8")
    a(f"s_add_u32 {sr(S_T0)}, {sr(S_T0)}, {QBF}")
    a(f"v_add_u32 {vr(VX+1)}, {sr(S_T0)}, {vr(VX+1)}")
    a(f"ds_write_b64 {vr(VX+1)}, {vr(VA+4,2)}")
    a(f"v_lshrrev_b32 {vr(VX+2)}, 4, {vr(V_LANE)}")
    a(f"v_lshlrev_b32 {vr(VX+2)}, 4, {vr(VX+2)}")
    a(f"v_add_u32 {vr(VX+2)}, {sr(S_T0)}, {vr(VX+2)}")
    a("s_waitcnt lgkmcnt(0)")
    for t in range(4):
        a(f"ds_read_b128 {vr(VQ+4*t,4)}, {vr(VX+2)} offset:{t*64}")
    try_issue(0)
    a("s_waitcnt lgkmcnt(0)")
    VERS = [int(x) for x in cfg.VERS.split(',')]
    NMAX = max(VERS + [N])
    U0 = 4*PR + 8*cfg.K0
    target = NP + 32*cfg.K0 + NMAX + 3
    u = 0
    while u < U0 or nxt < target:
        d = unit_desc(u) if u < U0 else None
        if d is not None and nxt - 1 - N >= d['need']:
            ahead = (nxt - 1 - N) - d['need']
            for p in range(4):
                piece(u, p)
                want = (ahead < 2) or (p in (1, 3))
                if want and nxt < target:
                    try_issue(u)
            u += 1
        else:
            if not (nxt < target and try_issue(u)):
                raise RuntimeError(f"schedule deadlock u={u} nxt={nxt}")
    assert nxt == target and u == U0, (nxt, target, u, U0)
    if cfg.POLL:
        poll_setup(a, cfg)
    niter = (128 - U0)//8
    assert (128 - U0) % 8 == 0
    S_POL = S_TS
    VPG = 224
    if cfg.WPOL:
        wp = [int(x) for x in cfg.WPOL.split(',')]
        a(f"s_mov_b32 {sr(S_POL)}, {wp[0]}")
        for w in range(1, 4):
            a(f"s_cmp_eq_u32 {sr(S_WAVE)}, {w}")
            a(f"s_cselect_b32 {sr(S_POL)}, {wp[w]}, {sr(S_POL)}")
    else:
        a(f"s_mov_b32 {sr(S_POL)}, {N}")
    if cfg.CTL:
        a(f"v_mov_b32 {vr(VPG)}, {FLAG+8}")
    a(f"s_mov_b32 {sr(S_CNT)}, 1")
    a.label("L_sloop")
    if cfg.KT:
        a(f"s_cmp_gt_u32 {sr(S_CNT)}, {niter - cfg.KT}")
        a(f"s_cselect_b32 {sr(S_POL)}, {cfg.NT}, {sr(S_POL)}")
        assert cfg.NT in VERS
    if cfg.CTL:
        a(f"v_mov_b32 {vr(VPG+1)}, {sr(S_CNT)}")
        a(f"s_cmp_lg_u32 {sr(S_WAVE)}, 0")
        a("s_cbranch_scc1 L_nopg")
        a(f"ds_write_b32 {vr(VPG)}, {vr(VPG+1)}")
        a.label("L_nopg")
    for vi, n in enumerate(VERS[:-1]):
        a(f"s_cmp_eq_u32 {sr(S_POL)}, {n}")
        a(f"s_cbranch_scc1 L_ver{n}")
    order = [VERS[-1]] + VERS[:-1]
    for vi, n in enumerate(order):
        a.label(f"L_ver{n}")
        win["n"] = n
        state["m0"] = None
        for uu in range(32):
            issue(target + uu)
            if cfg.CTL and uu == 28:
                a(f"ds_read_b32 {vr(VPG+2)}, {vr(VPG)} offset:4")
            piece(U0 + uu//4, uu % 4)
        if vi < len(order) - 1:
            a("s_branch L_snext")
    a.label("L_snext")
    if cfg.CTL:
        a(f"v_readfirstlane_b32 {sr(S_POL)}, {vr(VPG+2)}")
    a(f"s_add_u32 {sr(S_CNT)}, {sr(S_CNT)}, 1")
    a(f"s_cmp_le_u32 {sr(S_CNT)}, {niter}")
    a("s_cbranch_scc1 L_sloop")
    stamp(a, cfg, 3)
    groups_allreduce(a, VL, VX, "v_add_f32")
    a(f"v_and_b32 {vr(VX)}, 15, {vr(V_LANE)}")
    a(f"v_lshrrev_b32 {vr(VX+1)}, 4, {vr(V_LANE)}")
    a(f"v_lshlrev_b32 {vr(VX)}, 5, {vr(VX)}")
    a(f"v_lshl_add_u32 {vr(VX)}, {vr(VX+1)}, 4, {vr(VX)}")
    a(f"s_lshl_b32 {sr(S_T0)}, {sr(S_WAVE)}, 9")
    a(f"s_add_u32 {sr(S_T0)}, {sr(S_T0)}, {OPART}")
    a(f"v_add_u32 {vr(VX)}, {sr(S_T0)}, {vr(VX)}")
    a(f"s_lshl_b32 {sr(S_T0)}, {sr(S_WAVE)}, 2")
    a(f"s_add_u32 {sr(S_T0)}, {sr(S_T0)}, {ML}")
    a(f"v_mov_b32 {vr(VX+2)}, {sr(S_T0)}")
    a("s_mov_b32 exec_hi, 0")
    a(f"ds_write_b128 {vr(VX)}, {vr(VO,4)}")
    a("s_mov_b64 exec, 1")
    a(f"ds_write_b32 {vr(VX+2)}, {vr(VM)}")
    a(f"ds_write_b32 {vr(VX+2)}, {vr(VL)} offset:16")
    a("s_mov_b64 exec, -1")
    a("s_waitcnt lgkmcnt(0)")
    a("s_barrier")
    if cfg.POLL:
        a(f"s_cmp_eq_u32 {sr(S_H)}, {sr(S_B) if cfg.REDB else cfg.RED_H}")
        a("s_cbranch_scc1 L_reducer")
    else:
        a("s_waitcnt vmcnt(0)")
    a("s_branch L_tail")

def gen_stream_sr(a, cfg):
    N = cfg.N
    LAG = 3 + N
    PR = cfg.PROUNDS
    assert PR in (0, 2, 4)
    V_LANE=0
    VK=2
    VV=6
    VVD=7
    VKR=8
    VVR=12
    VT=13
    VQ=16
    VA=32
    VS=48
    VP=80
    VAO=82
    VO=92
    VM=90; VL=91; VAL=96; VMC=97
    SELE=98; SELO=102
    VX=106
    VMX=14
    VD=112
    set_poll_regs(112)
    S_SOF = S_OFFB

    a.label("L_stream")
    if cfg.PRIO: a(f"s_setprio {cfg.PRIO}")
    a(f"s_lshl_b32 {sr(S_OFFA)}, {sr(S_WAVE)}, 13")
    a(f"s_lshl_b32 {sr(S_RING)}, {sr(S_WAVE)}, 15")
    a(f"v_lshrrev_b32 {vr(VT)}, 4, {vr(V_LANE)}")
    a(f"v_and_b32 {vr(VT+1)}, 15, {vr(V_LANE)}")
    for j in range(4):
        a(f"v_add_u32 {vr(VK+j)}, {4*j}, {vr(VT)}")
        a(f"v_xor_b32 {vr(VK+j)}, {vr(VK+j)}, {vr(VT+1)}")
        a(f"v_lshlrev_b32 {vr(VK+j)}, 4, {vr(VK+j)}")
        a(f"v_lshl_add_u32 {vr(VK+j)}, {vr(VT)}, 8, {vr(VK+j)}")
    a(f"s_lshl_b32 {sr(S_T0)}, {sr(S_WG)}, 20")
    a("s_waitcnt lgkmcnt(0)")
    srd(a, S_SRDK, S_K, S_T0, 0x100000)
    srd(a, S_SRDV, S_V, S_T0, 0x100000)

    NP = 64
    def load_desc(i):
        if i < NP:
            p = i % 32; r = p//8; half = (p % 8)//4; j = p % 4
            if i < 32: return dict(kind='K', j=j, r=r, half=half, slot=p//4, last=False, req=None)
            return dict(kind='VD', j=j, r=r, half=half, dst=VD+32*r+16*half+4*j, last=(i == 63), req=None)
        ip = i - NP
        g = ip//4; j = ip % 4; p = ip % 64
        pp = p % 32; r = pp//8; half = (pp % 8)//4
        req = g if ip < 32 else 16 + (ip-32)//4
        return dict(kind='K' if p < 32 else 'V', j=j, r=r, half=half, slot=g % 8, last=(p == 63), req=req)
    def unit_desc(u):
        if u < 16:
            if u < 8: return dict(k=True, r=u//2, half=u % 2, slot=u, need=4*u+3, direct=None)
            q = u - 8
            return dict(k=False, r=q//2, half=q % 2, slot=None, need=32+4*q+3, direct=VD+32*(q//2)+16*(q % 2))
        g = u - 16; q = g % 16
        qq = q % 8
        return dict(k=(q < 8), r=qq//2, half=qq % 2, slot=g % 8, need=NP+4*g+3, direct=None)

    state = {"m0": None, "sof": None}
    win = {"n": N}
    def issue(i, wait=True):
        d = load_desc(i)
        key = (d['r'], d['half'])
        if state["sof"] != key or d['j'] == 0:
            a(f"s_add_u32 {sr(S_SOF)}, {sr(S_OFFA)}, {d['r']*32768 + d['half']*4096}")
            state["sof"] = key
        if d['kind'] != 'VD' and state["m0"] != d['slot']:
            a(f"s_add_u32 m0, {sr(S_RING)}, {d['slot']*4096}")
            state["m0"] = d['slot']
            if not wait: a("s_nop 0")
        if wait: a(f"s_waitcnt vmcnt({win['n']-1})")
        j = d['j']
        if d['kind'] == 'K':
            a(f"buffer_load_dwordx4 {vr(VK+j)}, {sr(S_SRDK,4)}, {sr(S_SOF)} offen offset:{j*1024} {cfg.KFLAGS} lds")
        elif d['kind'] == 'V':
            a(f"buffer_load_dwordx4 {vr(VV)}, {sr(S_SRDV,4)}, {sr(S_SOF)} offen offset:{j*1024} {cfg.VFLAGS} lds")
        else:
            a(f"buffer_load_dwordx4 {vr(d['dst'],4)}, {vr(VVD)}, {sr(S_SRDV,4)}, {sr(S_SOF)} offen offset:{j*256} {cfg.VFLAGS}")
        if d['last']:
            a(f"s_add_u32 {sr(S_OFFA)}, {sr(S_OFFA)}, 131072")
            state["sof"] = None

    def piece(u, p):
        if cfg.NOCONS: return
        d = unit_desc(u)
        S = VS + 8*d['r'] + 4*d['half']
        if d['k']:
            slot = d['slot']*4096
            first = (d['r'] == 0 and d['half'] == 0)
            lastk = (d['r'] == 3 and d['half'] == 1)
            if p == 0:
                for t in range(4):
                    a(f"ds_read_b128 {vr(VA+4*t,4)}, {vr(VKR+t)} offset:{slot}")
            elif p == 1:
                for t in range(4):
                    a(f"s_waitcnt lgkmcnt({3-t})")
                    mfma(a, S, VA+4*t, VQ+4*t, None if t == 0 else S)
            elif p == 2:
                a("s_nop 7")
                if cfg.RSCORE:
                    for rnd in range(2):
                        a(f"v_cvt_pk_bf16_f32 {vr(VX)}, {vr(S)}, {vr(S+1)}")
                        a(f"v_cvt_pk_bf16_f32 {vr(VX+1)}, {vr(S+2)}, {vr(S+3)}")
                        a(f"v_lshlrev_b32 {vr(S)}, 16, {vr(VX)}")
                        a(f"v_and_b32 {vr(S+1)}, {sr(S_MASKHI)}, {vr(VX)}")
                        a(f"v_lshlrev_b32 {vr(S+2)}, 16, {vr(VX+1)}")
                        a(f"v_and_b32 {vr(S+3)}, {sr(S_MASKHI)}, {vr(VX+1)}")
                        if rnd == 0:
                            for e in range(4):
                                a(f"v_mul_f32 {vr(S+e)}, {sr(S_MASKHI+1)}, {vr(S+e)}")
                a(f"v_max3_f32 {vr(VMX)}, {vr(VM if first else VMX)}, {vr(S)}, {vr(S+1)}")
                a(f"v_max3_f32 {vr(VMX)}, {vr(VMX)}, {vr(S+2)}, {vr(S+3)}")
            elif p == 3 and lastk:
                groups_allreduce(a, VMX, VX, "v_max_f32")
                a(f"v_sub_f32 {vr(VAL)}, {vr(VM)}, {vr(VMX)}")
                a(f"v_mul_f32 {vr(VMC)}, {sr(S_C)}, {vr(VMX)}")
                a(f"v_mul_f32 {vr(VAL)}, {sr(S_C)}, {vr(VAL)}")
                a(f"v_mov_b32 {vr(VM)}, {vr(VMX)}")
                a(f"v_exp_f32 {vr(VAL)}, {vr(VAL)}")
                a("s_nop 0")
                for r in range(4):
                    a(f"v_mul_f32 {vr(VO+r)}, {vr(VO+r)}, {vr(VAL)}")
                a(f"v_mul_f32 {vr(VL)}, {vr(VL)}, {vr(VAL)}")
        else:
            direct = d['direct']
            if p == 0:
                if direct is None:
                    for r in range(4):
                        a(f"ds_read_b128 {vr(VA+4*r,4)}, {vr(VVR)} offset:{d['slot']*4096 + r*256}")
                for r in range(4):
                    a(f"v_fma_f32 {vr(S+r)}, {vr(S+r)}, {sr(S_C)}, -{vr(VMC)}")
                for r in range(4):
                    a(f"v_exp_f32 {vr(S+r)}, {vr(S+r)}")
                a("s_nop 0")
                a(f"v_cvt_pk_bf16_f32 {vr(VP)}, {vr(S)}, {vr(S+1)}")
                a(f"v_cvt_pk_bf16_f32 {vr(VP+1)}, {vr(S+2)}, {vr(S+3)}")
                a(f"v_add_f32 {vr(VX)}, {vr(S)}, {vr(S+1)}")
                a(f"v_add_f32 {vr(VX+1)}, {vr(S+2)}, {vr(S+3)}")
                a(f"v_add_f32 {vr(VL)}, {vr(VL)}, {vr(VX)}")
                a(f"v_add_f32 {vr(VL)}, {vr(VL)}, {vr(VX+1)}")
            r = p
            ao = VAO + 4*(r&1)
            diag(a, ao, VP + (r>>1), r&1, SELE, SELO)
            if direct is None:
                a(f"s_waitcnt lgkmcnt({3-r})")
                a("s_nop 0")
                mfma(a, VO, ao, VA+4*r, VO)
            else:
                a("s_nop 1")
                mfma(a, VO, ao, direct+4*r, VO)

    for i in range(N): issue(i, wait=False)
    a(f"v_lshlrev_b32 {vr(VV)}, 4, {vr(V_LANE)}")
    a(f"v_lshlrev_b32 {vr(VVD)}, 10, {vr(VT)}")
    a(f"v_lshl_add_u32 {vr(VVD)}, {vr(VT+1)}, 4, {vr(VVD)}")
    for t in range(4):
        a(f"v_add_u32 {vr(VKR+t)}, {4*t}, {vr(VT)}")
        a(f"v_xor_b32 {vr(VKR+t)}, {vr(VKR+t)}, {vr(VT+1)}")
        a(f"v_lshlrev_b32 {vr(VKR+t)}, 4, {vr(VKR+t)}")
        a(f"v_lshl_add_u32 {vr(VKR+t)}, {vr(VT+1)}, 8, {vr(VKR+t)}")
        a(f"v_add_u32 {vr(VKR+t)}, {sr(S_RING)}, {vr(VKR+t)}")
    a(f"v_add_u32 {vr(VVR)}, {sr(S_RING)}, {vr(VVD)}")
    make_selectors(a, V_LANE, SELE, SELO, VX, VX+1, VX+2, VX+3)
    a(f"v_mov_b32 {vr(VM)}, 0xff800000")
    a(f"v_mov_b32 {vr(VL)}, 0")
    for r in range(4): a(f"v_mov_b32 {vr(VO+r)}, 0")
    a(f"s_mov_b32 {sr(S_C)}, {hexf(math.log2(math.e) if cfg.RSCORE else C_SCALE)}")
    a(f"s_mov_b32 {sr(S_MASKHI)}, 0xffff0000")
    a(f"s_mov_b32 {sr(S_MASKHI+1)}, {hexf(128 ** -0.5)}")

    RA = cfg.RUNAHEAD
    for i in range(N, RA):
        assert load_desc(i)['req'] is None
        issue(i)
        if cfg.PROSTAMP and i == N: a(f"s_memrealtime {sr(S_STAMP+4,2)}")
        if cfg.PROSTAMP and i == 20: a(f"s_memrealtime {sr(S_STAMP+8,2)}")
        if cfg.PROSTAMP and i == 40: a(f"s_memrealtime {sr(S_STAMP+10,2)}")
    stamp(a, cfg, 1)
    a("s_barrier")
    stamp(a, cfg, 2)
    nxt = RA
    def try_issue(done_units):
        nonlocal nxt
        d = load_desc(nxt)
        if d['req'] is not None and d['req'] >= done_units: return False
        issue(nxt); nxt += 1
        return True
    a(f"v_lshlrev_b32 {vr(VX)}, 4, {vr(V_LANE)}")
    a(f"v_and_b32 {vr(VX)}, 0x1ff, {vr(VX)}")
    a(f"v_add_u32 {vr(VX)}, {QPART}, {vr(VX)}")
    for p in range(4):
        a(f"ds_read_b128 {vr(VA+4*p,4)}, {vr(VX)} offset:{p*512}")
    try_issue(0); try_issue(0)
    a("s_waitcnt lgkmcnt(0)")
    for e in range(4):
        a(f"v_add_f32 {vr(VA+e)}, {vr(VA+e)}, {vr(VA+4+e)}")
        a(f"v_add_f32 {vr(VA+8+e)}, {vr(VA+8+e)}, {vr(VA+12+e)}")
    for e in range(4):
        a(f"v_add_f32 {vr(VA+e)}, {vr(VA+e)}, {vr(VA+8+e)}")
    a(f"v_cvt_pk_bf16_f32 {vr(VA+4)}, {vr(VA)}, {vr(VA+1)}")
    a(f"v_cvt_pk_bf16_f32 {vr(VA+5)}, {vr(VA+2)}, {vr(VA+3)}")
    a(f"v_lshlrev_b32 {vr(VX+1)}, 3, {vr(V_LANE)}")
    a(f"v_and_b32 {vr(VX+1)}, 0xff, {vr(VX+1)}")
    a(f"s_lshl_b32 {sr(S_T0)}, {sr(S_WAVE)}, 8")
    a(f"s_add_u32 {sr(S_T0)}, {sr(S_T0)}, {QBF}")
    a(f"v_add_u32 {vr(VX+1)}, {sr(S_T0)}, {vr(VX+1)}")
    a(f"ds_write_b64 {vr(VX+1)}, {vr(VA+4,2)}")
    a(f"v_lshrrev_b32 {vr(VX+2)}, 4, {vr(V_LANE)}")
    a(f"v_lshlrev_b32 {vr(VX+2)}, 4, {vr(VX+2)}")
    a(f"v_add_u32 {vr(VX+2)}, {sr(S_T0)}, {vr(VX+2)}")
    a("s_waitcnt lgkmcnt(0)")
    for t in range(4):
        a(f"ds_read_b128 {vr(VQ+4*t,4)}, {vr(VX+2)} offset:{t*64}")
    try_issue(0)
    a("s_waitcnt lgkmcnt(0)")
    VERS = [int(x) for x in cfg.VERS.split(',')]
    ramp = [tuple(int(y) for y in x.split(':')) for x in cfg.RAMP.split(',')] if cfg.RAMP else []
    NMAX = max([v for v in VERS if v != 99] + [N] + [r[0] for r in ramp])
    U0 = 32
    target = NP + 64 + NMAX + 3
    u = 0
    while u < U0 or nxt < target:
        d = unit_desc(u) if u < U0 else None
        if d is not None and nxt - 1 - N >= d['need']:
            ahead = (nxt - 1 - N) - d['need']
            for p in range(4):
                piece(u, p)
                want = (ahead < 2) or (p in (1, 3))
                if want and nxt < target:
                    try_issue(u)
            u += 1
        else:
            if not (nxt < target and try_issue(u)):
                raise RuntimeError(f"schedule deadlock u={u} nxt={nxt}")
    assert nxt == target and u == U0, (nxt, target, u, U0)
    if cfg.POLL:
        poll_setup(a, cfg)
    niter = (128 - U0)//16
    S_POL = S_TS
    VPG = 224
    if cfg.WPOL:
        wp = [int(x) for x in cfg.WPOL.split(',')]
        a(f"s_mov_b32 {sr(S_POL)}, {wp[0]}")
        for w in range(1, 4):
            a(f"s_cmp_eq_u32 {sr(S_WAVE)}, {w}")
            a(f"s_cselect_b32 {sr(S_POL)}, {wp[w]}, {sr(S_POL)}")
    else:
        a(f"s_mov_b32 {sr(S_POL)}, {N}")
    if cfg.CTL:
        a(f"v_mov_b32 {vr(VPG)}, {FLAG+8}")
    a(f"s_mov_b32 {sr(S_CNT)}, 1")
    a.label("L_sloop")
    if cfg.KT:
        a(f"s_cmp_gt_u32 {sr(S_CNT)}, {niter - cfg.KT}")
        a(f"s_cselect_b32 {sr(S_POL)}, {cfg.NT}, {sr(S_POL)}")
        assert cfg.NT in VERS
    if cfg.CTL:
        a(f"v_mov_b32 {vr(VPG+1)}, {sr(S_CNT)}")
        a(f"s_cmp_lg_u32 {sr(S_WAVE)}, 0")
        a("s_cbranch_scc1 L_nopg")
        a(f"ds_write_b32 {vr(VPG)}, {vr(VPG+1)}")
        a.label("L_nopg")
    for vi, n in enumerate(VERS[:-1]):
        a(f"s_cmp_eq_u32 {sr(S_POL)}, {n}")
        a(f"s_cbranch_scc1 L_ver{n}")
    order = [VERS[-1]] + VERS[:-1]
    for vi, n in enumerate(order):
        a.label(f"L_ver{n}")
        win["n"] = n
        state["m0"] = None; state["sof"] = None
        final = (cfg.KT == 1 and n == cfg.NT and cfg.NT != N and not cfg.CTL)
        for uu in range(64):
            if n == 99:
                win["n"] = [w for (w, f) in ramp if f <= uu][-1]
            actual = target + uu + 64*(niter-1)
            if final and actual >= 512:
                if uu % 4 == 0:
                    need = unit_desc(U0 + uu//4)['need'] + 64*(niter-1)
                    assert need <= 511
                    a(f"s_waitcnt vmcnt({511 - need})")
            else:
                issue(target + uu)
            piece(U0 + uu//4, uu % 4)
        if vi < len(order) - 1:
            a("s_branch L_snext")
    a.label("L_snext")
    if cfg.CTL:
        a(f"v_readfirstlane_b32 {sr(S_POL)}, {vr(VPG+2)}")
    a(f"s_add_u32 {sr(S_CNT)}, {sr(S_CNT)}, 1")
    a(f"s_cmp_le_u32 {sr(S_CNT)}, {niter}")
    a("s_cbranch_scc1 L_sloop")
    stamp(a, cfg, 3)
    groups_allreduce(a, VL, VX, "v_add_f32")
    a(f"v_and_b32 {vr(VX)}, 15, {vr(V_LANE)}")
    a(f"v_lshrrev_b32 {vr(VX+1)}, 4, {vr(V_LANE)}")
    a(f"v_lshlrev_b32 {vr(VX)}, 5, {vr(VX)}")
    a(f"v_lshl_add_u32 {vr(VX)}, {vr(VX+1)}, 4, {vr(VX)}")
    a(f"s_lshl_b32 {sr(S_T0)}, {sr(S_WAVE)}, 9")
    a(f"s_add_u32 {sr(S_T0)}, {sr(S_T0)}, {OPART}")
    a(f"v_add_u32 {vr(VX)}, {sr(S_T0)}, {vr(VX)}")
    a(f"s_lshl_b32 {sr(S_T0)}, {sr(S_WAVE)}, 2")
    a(f"s_add_u32 {sr(S_T0)}, {sr(S_T0)}, {ML}")
    a(f"v_mov_b32 {vr(VX+2)}, {sr(S_T0)}")
    a("s_mov_b32 exec_hi, 0")
    a(f"ds_write_b128 {vr(VX)}, {vr(VO,4)}")
    a("s_mov_b64 exec, 1")
    a(f"ds_write_b32 {vr(VX+2)}, {vr(VM)}")
    a(f"ds_write_b32 {vr(VX+2)}, {vr(VL)} offset:16")
    a("s_mov_b64 exec, -1")
    a("s_waitcnt lgkmcnt(0)")
    a("s_barrier")
    if cfg.POLL:
        a(f"s_cmp_eq_u32 {sr(S_H)}, {sr(S_B) if cfg.REDB else cfg.RED_H}")
        a("s_cbranch_scc1 L_reducer")
    else:
        a("s_waitcnt vmcnt(0)")
    a("s_branch L_tail")

def gen_side(a, cfg):
    V_LANE=0
    VF=2
    VXR=12
    VT=17
    SELE=28; SELO=32
    VAO=36
    VACC=44
    VH0=64; VH1=68
    VXA=72
    VOF=90
    VW=96
    VWA=VACC
    WF = cfg.WFLAGS
    D = cfg.DEPTH
    S_ROT = S_CNT
    S_SO = S_OFFA

    a.label("L_side")
    a(f"s_sub_u32 {sr(S_SW)}, {sr(S_WAVE)}, 4")
    a("s_waitcnt lgkmcnt(0)")
    a(f"s_mul_i32 {sr(S_T0)}, {sr(S_B)}, 1152")
    srd(a, S_SRDK, S_X, S_T0, 1152)
    a(f"v_lshlrev_b32 {vr(VT)}, 2, {vr(V_LANE)}")
    for k in range(5):
        a(f"buffer_load_dword {vr(VXR+k)}, {vr(VT)}, {sr(S_SRDK,4)}, 0 offen offset:{256*k}")
    a(f"s_lshl_b32 {sr(S_T0)}, {sr(S_H)}, 8")
    a(f"s_sub_u32 {sr(S_T1)}, {576*8192}, {sr(S_T0)}")
    srd(a, S_SRDV, S_WQ, S_T0, sr(S_T1))
    if cfg.ROT:
        a(f"s_mul_i32 {sr(S_ROT)}, {sr(S_B)}, 18")
        a(f"s_lshr_b32 {sr(S_ROT)}, {sr(S_ROT)}, 3")
        a(f"s_lshl_b32 {sr(S_ROT)}, {sr(S_ROT)}, 1")
    else:
        a(f"s_mov_b32 {sr(S_ROT)}, 0")
    a(f"v_lshrrev_b32 {vr(VT+1)}, 4, {vr(V_LANE)}")
    a(f"v_and_b32 {vr(VT+2)}, 15, {vr(V_LANE)}")
    a(f"v_mul_u32_u24 {vr(VT+3)}, 36, {vr(VT+1)}")
    a(f"s_mul_i32 {sr(S_T2)}, {sr(S_SW)}, 144")
    a(f"v_add_u32 {vr(VT+3)}, {sr(S_T2)}, {vr(VT+3)}")
    a(f"v_lshlrev_b32 {vr(VOF)}, 13, {vr(VT+3)}")
    a(f"v_lshl_add_u32 {vr(VOF)}, {vr(VT+2)}, 4, {vr(VOF)}")
    def adv(step, n):
        a(f"s_add_u32 {sr(S_SO)}, {sr(S_SO)}, {step}")
        a(f"s_cmp_ge_u32 {sr(S_SO)}, {step*n}")
        a(f"s_cselect_b32 {sr(S_SO)}, 0, {sr(S_SO)}")
    a(f"s_lshl_b32 {sr(S_SO)}, {sr(S_ROT)}, 13")
    DQ = cfg.DQ
    def wq_load(t):
        a(f"buffer_load_dwordx4 {vr(VW+4*t,4)}, {vr(VOF)}, {sr(S_SRDV,4)}, {sr(S_SO)} offen {WF}")
        if t < 35: adv(8192, 36)
    for t in range(DQ): wq_load(t)
    a(f"s_mov_b32 {sr(S_T3)}, 9216")
    a(f"v_mul_lo_u32 {vr(VOF+1)}, {vr(VT+3)}, {sr(S_T3)}")
    a(f"v_lshl_add_u32 {vr(VOF+1)}, {vr(VT+2)}, 4, {vr(VOF+1)}")
    a(f"v_add_u32 {vr(VOF+2)}, 256, {vr(VOF+1)}")
    a(f"v_mov_b32 {vr(VT+4)}, 0x7f000000")
    a(f"v_cmp_gt_u32 vcc, 2, {vr(VT+2)}")
    a("s_nop 1")
    a(f"v_cndmask_b32 {vr(VOF+2)}, {vr(VT+4)}, {vr(VOF+2)}, vcc")
    make_selectors(a, V_LANE, SELE, SELO, VT+4, VT+5, VT+6, VT+7)
    a(f"s_mov_b32 {sr(S_MASKHI)}, 0xffff0000")
    a(f"s_mul_i32 {sr(S_T0)}, {sr(S_SW)}, 2560")
    a(f"s_add_u32 {sr(S_T0)}, {sr(S_T0)}, {XPRIV}")
    a(f"s_movk_i32 {sr(S_T1)}, 3641")
    for k in range(5):
        a(f"v_add_u32 {vr(VT+4)}, {64*k}, {vr(V_LANE)}")
        a(f"v_mul_u32_u24 {vr(VT+5)}, {sr(S_T1)}, {vr(VT+4)}")
        a(f"v_lshrrev_b32 {vr(VT+5)}, 16, {vr(VT+5)}")
        a(f"v_mul_u32_u24 {vr(VT+5)}, 72, {vr(VT+5)}")
        a(f"v_lshl_add_u32 {vr(VWA+k)}, {vr(VT+4)}, 2, {vr(VT+5)}")
        a(f"v_add_u32 {vr(VWA+k)}, {sr(S_T0)}, {vr(VWA+k)}")
    a(f"s_mul_i32 {sr(S_T1)}, {sr(S_SW)}, 576")
    a(f"s_add_u32 {sr(S_T0)}, {sr(S_T0)}, {sr(S_T1)}")
    a(f"s_lshl_b32 {sr(S_T1)}, {sr(S_ROT)}, 1")
    a(f"s_add_u32 {sr(S_T0)}, {sr(S_T0)}, {sr(S_T1)}")
    a(f"v_mul_u32_u24 {vr(VOF+4)}, 144, {vr(VT+1)}")
    a(f"v_add_u32 {vr(VOF+4)}, {sr(S_T0)}, {vr(VOF+4)}")
    a(f"s_mov_b32 {sr(S_EX)}, -1")
    a(f"s_mov_b32 {sr(S_EX+1)}, 0")
    a(f"v_mov_b32 {vr(VT+4)}, {FLAG+4}")
    a(f"v_mov_b32 {vr(VT+5)}, 0")
    a(f"ds_write_b32 {vr(VT+4)}, {vr(VT+5)}")
    a(f"ds_write_b32 {vr(VT+4)}, {vr(VT+5)} offset:4")
    a(f"v_mov_b32 {vr(VT+5)}, {cfg.N}")
    a(f"ds_write_b32 {vr(VT+4)}, {vr(VT+5)} offset:8")

    def layernorm():
        s = VT+8; t = VT+9; u = VT+10
        a(f"v_add_f32 {vr(s)}, {vr(VF)}, {vr(VF+1)}")
        for k in range(2,10): a(f"v_add_f32 {vr(s)}, {vr(s)}, {vr(VF+k)}")
        allreduce_sum(a, s, t)
        a(f"v_mul_f32 {vr(s)}, {hexf(1.0/576)}, {vr(s)}")
        a(f"v_sub_f32 {vr(t)}, {vr(VF)}, {vr(s)}")
        a(f"v_mul_f32 {vr(u)}, {vr(t)}, {vr(t)}")
        for k in range(1,10):
            a(f"v_sub_f32 {vr(t)}, {vr(VF+k)}, {vr(s)}")
            if k >= 8:
                a(f"v_cndmask_b32 {vr(t)}, 0, {vr(t)}, {sr(S_EX,2)}")
            a(f"v_fmac_f32 {vr(u)}, {vr(t)}, {vr(t)}")
        allreduce_sum(a, u, t)
        a(f"v_mul_f32 {vr(u)}, {hexf(1.0/576)}, {vr(u)}")
        a(f"v_cvt_pk_bf16_f32 {vr(t)}, {vr(s)}, {vr(u)}")
        a(f"v_lshlrev_b32 {vr(s)}, 16, {vr(t)}")
        a(f"v_and_b32 {vr(u)}, {sr(S_MASKHI)}, {vr(t)}")
        a(f"v_add_f32 {vr(u)}, {hexf(1e-5)}, {vr(u)}")
        a(f"v_cvt_pk_bf16_f32 {vr(u)}, {vr(u)}, {vr(u)}")
        a(f"v_and_b32 {vr(u)}, {sr(S_MASKHI)}, {vr(u)}")
        a(f"v_sqrt_f32 {vr(u)}, {vr(u)}")
        a("s_nop 0")
        a(f"v_cvt_pk_bf16_f32 {vr(u)}, {vr(u)}, {vr(u)}")
        a(f"v_and_b32 {vr(u)}, {sr(S_MASKHI)}, {vr(u)}")
        a(f"v_rcp_f32 {vr(u)}, {vr(u)}")
        for k in range(5):
            A0 = VF+2*k; A1 = A0+1
            a(f"v_sub_f32 {vr(A0)}, {vr(A0)}, {vr(s)}")
            a(f"v_sub_f32 {vr(A1)}, {vr(A1)}, {vr(s)}")
            a(f"v_cvt_pk_bf16_f32 {vr(t)}, {vr(A0)}, {vr(A1)}")
            a(f"v_lshlrev_b32 {vr(A0)}, 16, {vr(t)}")
            a(f"v_and_b32 {vr(A1)}, {sr(S_MASKHI)}, {vr(t)}")
            a(f"v_mul_f32 {vr(A0)}, {vr(A0)}, {vr(u)}")
            a(f"v_mul_f32 {vr(A1)}, {vr(A1)}, {vr(u)}")
            a(f"v_cvt_pk_bf16_f32 {vr(VXR+k)}, {vr(A0)}, {vr(A1)}")
            a(f"v_lshlrev_b32 {vr(A0)}, 16, {vr(VXR+k)}")
            a(f"v_and_b32 {vr(A1)}, {sr(S_MASKHI)}, {vr(VXR+k)}")
            if k == 4: a("s_mov_b32 exec_hi, 0")
            a(f"ds_write_b32 {vr(VWA+k)}, {vr(VXR+k)}")
            a(f"ds_write_b32 {vr(VWA+k)}, {vr(VXR+k)} offset:72")
            if k == 4: a("s_mov_b64 exec, -1")
        a(f"v_cndmask_b32 {vr(VF+8)}, 0, {vr(VF+8)}, {sr(S_EX,2)}")
        a(f"v_cndmask_b32 {vr(VF+9)}, 0, {vr(VF+9)}, {sr(S_EX,2)}")
        a("s_waitcnt lgkmcnt(0)")
        for k in range(9):
            a(f"ds_read2_b32 {vr(VXA+2*k,2)}, {vr(VOF+4)} offset0:{2*k} offset1:{2*k+1}")

    a(f"s_waitcnt vmcnt({DQ})")
    for k in range(5):
        a(f"v_lshlrev_b32 {vr(VF+2*k)}, 16, {vr(VXR+k)}")
        a(f"v_and_b32 {vr(VF+2*k+1)}, {sr(S_MASKHI)}, {vr(VXR+k)}")
    layernorm()
    a("s_waitcnt lgkmcnt(0)")
    for t in range(36):
        ao = VAO + 4*(t&1)
        diag(a, ao, VXA + (t>>1), t&1, SELE, SELO)
        a(f"s_waitcnt vmcnt({min(DQ, 36-t)-1})")
        a("s_nop 0")
        mfma(a, VH0, ao, VW+4*t, None if t == 0 else VH0)
        if t + DQ < 36: wq_load(t + DQ)
    a(f"v_and_b32 {vr(VT)}, 15, {vr(V_LANE)}")
    a(f"v_lshrrev_b32 {vr(VT+1)}, 4, {vr(V_LANE)}")
    a(f"v_lshlrev_b32 {vr(VT)}, 5, {vr(VT)}")
    a(f"v_lshl_add_u32 {vr(VOF+5)}, {vr(VT+1)}, 4, {vr(VT)}")
    a(f"s_lshl_b32 {sr(S_T0)}, {sr(S_SW)}, 9")
    a(f"s_add_u32 {sr(S_T0)}, {sr(S_T0)}, {QPART}")
    a(f"v_add_u32 {vr(VT)}, {sr(S_T0)}, {vr(VOF+5)}")
    a("s_nop 4")
    a("s_mov_b32 exec_hi, 0")
    a(f"ds_write_b128 {vr(VT)}, {vr(VH0,4)}")
    a("s_mov_b64 exec, -1")
    a("s_waitcnt lgkmcnt(0)")
    stamp(a, cfg, 1)
    a("s_barrier")
    if cfg.NOSIDE:
        a("s_barrier")
        a("s_branch L_tail")

    if cfg.POLL:
        a(f"s_cmp_lg_u32 {sr(S_SW)}, 0")
        a("s_cbranch_scc1 L_noreset")
        a(f"s_mul_i32 {sr(S_T0)}, {sr(S_WG)}, 2304")
        srd(a, S_SRD2, S_WS, S_T0, 2304)
        a(f"v_lshlrev_b32 {vr(VT)}, 4, {vr(V_LANE)}")
        if cfg.REDB:
            a(f"s_cmp_eq_u32 {sr(S_H)}, {sr(S_B)}")
            a(f"s_cselect_b32 {sr(S_T1)}, 0, -1")
            for e in range(4): a(f"v_mov_b32 {vr(VW+e)}, {sr(S_T1)}")
        else:
            for e in range(4): a(f"v_mov_b32 {vr(VW+e)}, -1")
        for k in range(3):
            a(f"buffer_store_dwordx4 {vr(VW,4)}, {vr(VT)}, {sr(S_SRD2,4)}, 0 offen offset:{1024*k} sc1")
        a("s_waitcnt vmcnt(0)")
        if cfg.STARTSIG == 'atomic':
            a(f"s_lshl_b32 {sr(S_T0)}, {sr(S_B)}, 5")
            a(f"v_mov_b32 {vr(VT)}, {sr(S_T0)}")
            a(f"v_mov_b32 {vr(VT+1)}, 1")
            a("s_mov_b64 exec, 1")
            a(f"global_atomic_add {vr(VT)}, {vr(VT+1)}, {sr(S_DBG,2)} offset:4")
            a("s_mov_b64 exec, -1")
            a("s_waitcnt vmcnt(0)")
        elif cfg.STARTSIG == 'byte':
            a(f"v_mov_b32 {vr(VT)}, {sr(S_WG)}")
            a(f"v_mov_b32 {vr(VT+1)}, 1")
            a("s_mov_b64 exec, 1")
            a(f"global_store_byte {vr(VT)}, {vr(VT+1)}, {sr(S_DBG,2)} sc1")
            a("s_mov_b64 exec, -1")
            a("s_waitcnt vmcnt(0)")
        a.label("L_noreset")

    def paced(units, compute, D=D):
        flat = [(u, f) for u, fs in enumerate(units) for f in fs]
        last = {}
        for idx, (u, f) in enumerate(flat): last[u] = idx
        done = 0
        nu = len(units)
        for idx, (u, f) in enumerate(flat):
            if idx >= D: a(f"s_waitcnt vmcnt({D-1})")
            f()
            landed = idx - D if idx >= D else -1
            while done < nu and last[done] <= landed:
                compute(done); done += 1
        n = len(flat)
        while done < nu:
            a(f"s_waitcnt vmcnt({n-1-last[done]})")
            compute(done); done += 1

    if cfg.MMAP:
        a(f"s_and_b32 {sr(S_M)}, {sr(S_H)}, 7")
        a(f"s_lshl_b32 {sr(S_M)}, {sr(S_M)}, 2")
        a(f"s_lshr_b32 {sr(S_T0)}, {sr(S_H)}, 3")
        a(f"s_add_u32 {sr(S_M)}, {sr(S_M)}, {sr(S_T0)}")
    else:
        a(f"s_mov_b32 {sr(S_M)}, {sr(S_H)}")
    a(f"s_mul_i32 {sr(S_T0)}, {sr(S_M)}, 288")
    a(f"s_sub_u32 {sr(S_T1)}, {576*9216}, {sr(S_T0)}")
    srd(a, S_SRDV, S_W1, S_T0, sr(S_T1))
    layernorm()
    a(f"s_mul_i32 {sr(S_SO)}, {sr(S_ROT)}, 9216")
    a("s_waitcnt lgkmcnt(0)")
    NB = D + 2
    if not cfg.XTRA:
        def w1_unit(t):
            b = VW + 8*(t % NB)
            def f0(): a(f"buffer_load_dwordx4 {vr(b,4)}, {vr(VOF+1)}, {sr(S_SRDV,4)}, {sr(S_SO)} offen {WF}")
            def f1():
                a(f"buffer_load_dwordx4 {vr(b+4,4)}, {vr(VOF+2)}, {sr(S_SRDV,4)}, {sr(S_SO)} offen {WF}")
                if t < 35: adv(9216, 36)
            return [f0, f1]
        def w1_comp(t):
            b = VW + 8*(t % NB)
            ao = VAO + 4*(t&1)
            diag(a, ao, VXA + (t>>1), t&1, SELE, SELO)
            a("s_nop 1")
            mfma(a, VH0, ao, b, None if t == 0 else VH0)
            mfma(a, VH1, ao, b+4, None if t == 0 else VH1)
        paced([w1_unit(t) for t in range(36)], w1_comp)
    else:
        XW = 160; XY = 180; XA = 185; XT = 193; XE = 201; XE4 = 202
        a(f"v_lshrrev_b32 {vr(XT)}, 1, {vr(V_LANE)}")
        a(f"s_mul_i32 {sr(S_T2)}, {sr(S_SW)}, 144")
        a(f"v_add_u32 {vr(XT+1)}, {sr(S_T2)}, {vr(XT)}")
        a(f"s_movk_i32 {sr(S_T3)}, 9216")
        a(f"v_mul_lo_u32 {vr(XE)}, {vr(XT+1)}, {sr(S_T3)}")
        a(f"v_and_b32 {vr(XT+1)}, 1, {vr(V_LANE)}")
        a(f"v_lshl_add_u32 {vr(XE)}, {vr(XT+1)}, 4, {vr(XE)}")
        a(f"v_add_u32 {vr(XE)}, 256, {vr(XE)}")
        a(f"v_mov_b32 {vr(XT+1)}, 0x7f000000")
        a(f"v_cndmask_b32 {vr(XE4)}, {vr(XT+1)}, {vr(XE)}, {sr(S_EX,2)}")
        a(f"s_mul_i32 {sr(S_T0)}, {sr(S_SW)}, {2560+576}")
        a(f"s_add_u32 {sr(S_T0)}, {sr(S_T0)}, {XPRIV}")
        a(f"s_movk_i32 {sr(S_T1)}, 3641")
        a(f"v_and_b32 {vr(XT+2)}, 1, {vr(XT)}")
        a(f"v_lshlrev_b32 {vr(XT+2)}, 1, {vr(XT+2)}")
        a(f"v_add_u32 {vr(XT+2)}, {sr(S_T0)}, {vr(XT+2)}")
        a(f"v_lshrrev_b32 {vr(XT+3)}, 2, {vr(V_LANE)}")
        for m in range(5):
            a(f"v_add_u32 {vr(XT+4)}, {16*m}, {vr(XT+3)}")
            a(f"v_mul_u32_u24 {vr(XT+5)}, {sr(S_T1)}, {vr(XT+4)}")
            a(f"v_lshrrev_b32 {vr(XT+5)}, 16, {vr(XT+5)}")
            a(f"v_mul_u32_u24 {vr(XT+5)}, 72, {vr(XT+5)}")
            a(f"v_lshl_add_u32 {vr(XT+5)}, {vr(XT+4)}, 2, {vr(XT+5)}")
            a(f"v_add_u32 {vr(XT+5)}, {vr(XT+5)}, {vr(XT+2)}")
            a(f"ds_read_u16 {vr(XY+m)}, {vr(XT+5)}")
        a("s_waitcnt lgkmcnt(0)")
        for m in range(5):
            a(f"v_lshlrev_b32 {vr(XY+m)}, 16, {vr(XY+m)}")
        a(f"v_cndmask_b32 {vr(XY+4)}, 0, {vr(XY+4)}, {sr(S_EX,2)}")
        def x_unit(m):
            def f():
                a(f"s_mov_b32 {sr(S_T3)}, {32*m*9216}")
                a(f"buffer_load_dwordx4 {vr(XW+4*m,4)}, {vr(XE4 if m == 4 else XE)}, {sr(S_SRDV,4)}, {sr(S_T3)} offen {WF}")
            return [f]
        def x_comp(m):
            for k in range(4):
                a(f"v_lshlrev_b32 {vr(XT)}, 16, {vr(XW+4*m+k)}")
                a(f"v_and_b32 {vr(XT+1)}, {sr(S_MASKHI)}, {vr(XW+4*m+k)}")
                if m == 0:
                    a(f"v_mul_f32 {vr(XA+2*k)}, {vr(XY+m)}, {vr(XT)}")
                    a(f"v_mul_f32 {vr(XA+2*k+1)}, {vr(XY+m)}, {vr(XT+1)}")
                else:
                    a(f"v_fmac_f32 {vr(XA+2*k)}, {vr(XY+m)}, {vr(XT)}")
                    a(f"v_fmac_f32 {vr(XA+2*k+1)}, {vr(XY+m)}, {vr(XT+1)}")
        def w1_unit(t):
            b = VW + 4*(t % NB)
            def f0():
                a(f"buffer_load_dwordx4 {vr(b,4)}, {vr(VOF+1)}, {sr(S_SRDV,4)}, {sr(S_SO)} offen {WF}")
                if t < 35: adv(9216, 36)
            return [f0]
        def w1_comp(t):
            b = VW + 4*(t % NB)
            ao = VAO + 4*(t&1)
            diag(a, ao, VXA + (t>>1), t&1, SELE, SELO)
            a("s_nop 1")
            mfma(a, VH0, ao, b, None if t == 0 else VH0)
        paced([x_unit(m) for m in range(5)] + [w1_unit(t) for t in range(36)],
              lambda u: x_comp(u) if u < 5 else w1_comp(u-5))
        for r_ in (2, 4, 8):
            a("s_nop 1")
            for e in range(8):
                a(f"v_add_f32_dpp {vr(XA+e)}, {vr(XA+e)}, {vr(XA+e)} row_ror:{r_} row_mask:0xf bank_mask:0xf")
        for op in ("v_permlane16_swap_b32", "v_permlane32_swap_b32"):
            for e in range(8):
                a(f"v_mov_b32 {vr(XW+e)}, {vr(XA+e)}")
            a("s_nop 1")
            for e in range(8):
                a(f"{op} {vr(XA+e)}, {vr(XW+e)}")
            a("s_nop 1")
            for e in range(8):
                a(f"v_add_f32 {vr(XA+e)}, {vr(XA+e)}, {vr(XW+e)}")
        for e in range(8):
            a(f"v_mov_b32 {vr(XW+e)}, {vr(XA+e)}")
    a(f"s_mul_i32 {sr(S_T0)}, {sr(S_M)}, 288")
    srd(a, S_SRDK, S_B1, S_T0, 288)
    a(f"v_lshrrev_b32 {vr(VT+1)}, 4, {vr(V_LANE)}")
    a(f"v_mul_u32_u24 {vr(VT+2)}, 9, {vr(VT+1)}")
    a(f"s_mul_i32 {sr(S_T2)}, {sr(S_SW)}, 36")
    a(f"v_add_u32 {vr(VT+2)}, {sr(S_T2)}, {vr(VT+2)}")
    a(f"v_lshlrev_b32 {vr(VT+3)}, 1, {vr(VT+2)}")
    for t in range(9):
        a(f"buffer_load_ushort {vr(VF+t)}, {vr(VT+3)}, {sr(S_SRDK,4)}, 0 offen offset:{2*t}")
    a(f"s_lshl_b32 {sr(S_T0)}, {sr(S_SW)}, 10")
    a(f"s_add_u32 {sr(S_T0)}, {sr(S_T0)}, {HPART}")
    a(f"v_add_u32 {vr(VT)}, {sr(S_T0)}, {vr(VOF+5)}")
    a("s_mov_b32 exec_hi, 0")
    a(f"ds_write_b128 {vr(VT)}, {vr(VH0,4)}")
    if not cfg.XTRA:
        a(f"ds_write_b128 {vr(VT)}, {vr(VH1,4)} offset:512")
    else:
        a(f"v_lshlrev_b32 {vr(VT+4)}, 5, {vr(V_LANE)}")
        a(f"v_add_u32 {vr(VT+4)}, {sr(S_T0)}, {vr(VT+4)}")
        a("s_mov_b64 exec, 3")
        a(f"ds_write_b128 {vr(VT+4)}, {vr(160,4)} offset:512")
        a(f"ds_write_b128 {vr(VT+4)}, {vr(164,4)} offset:528")
    a("s_mov_b64 exec, -1")
    a(f"s_mul_i32 {sr(S_T0)}, {sr(S_M)}, {144*1152}")
    srd(a, S_SRDV, S_W2, S_T0, 144*1152)
    a(f"v_and_b32 {vr(VT+4)}, 15, {vr(V_LANE)}")
    a(f"s_movk_i32 {sr(S_T3)}, 1152")
    a(f"v_mul_lo_u32 {vr(VOF)}, {vr(VT+2)}, {sr(S_T3)}")
    a(f"v_lshl_add_u32 {vr(VOF)}, {vr(VT+4)}, 4, {vr(VOF)}")
    a(f"v_add_u32 {vr(VOF+1)}, 1024, {vr(VOF)}")
    a(f"v_mov_b32 {vr(VT+5)}, 0x7f000000")
    a(f"v_cmp_gt_u32 vcc, 8, {vr(VT+4)}")
    a("s_nop 1")
    a(f"v_cndmask_b32 {vr(VOF+1)}, {vr(VT+5)}, {vr(VOF+1)}, vcc")
    a(f"v_lshlrev_b32 {vr(VOF+2)}, 2, {vr(VT+2)}")
    a(f"v_add_u32 {vr(VOF+2)}, {HPART}, {vr(VOF+2)}")
    a(f"v_mov_b32 {vr(VT)}, {FLAG+4}")
    a(f"v_mov_b32 {vr(VT+1)}, 1")
    a("s_waitcnt lgkmcnt(0)")
    a("s_mov_b64 exec, 1")
    a(f"ds_add_u32 {vr(VT)}, {vr(VT+1)}")
    a("s_mov_b64 exec, -1")
    a.label("L_hsync")
    a(f"ds_read_b32 {vr(VT+1)}, {vr(VT)}")
    a("s_waitcnt lgkmcnt(0)")
    a(f"v_readfirstlane_b32 {sr(S_T0)}, {vr(VT+1)}")
    a("s_nop 3")
    a(f"s_cmp_ge_u32 {sr(S_T0)}, 4")
    a("s_cbranch_scc1 L_hsync_done")
    a("s_sleep 4")
    a("s_branch L_hsync")
    a.label("L_hsync_done")
    HS = VXA
    for t in range(9):
        a(f"ds_read_b32 {vr(HS+t)}, {vr(VOF+2)} offset:{4*t}")
        a(f"ds_read_b32 {vr(VT)}, {vr(VOF+2)} offset:{1024+4*t}")
        a(f"ds_read_b32 {vr(VT+1)}, {vr(VOF+2)} offset:{2048+4*t}")
        a(f"ds_read_b32 {vr(VT+2)}, {vr(VOF+2)} offset:{3072+4*t}")
        a("s_waitcnt lgkmcnt(0)")
        a(f"v_add_f32 {vr(HS+t)}, {vr(HS+t)}, {vr(VT)}")
        a(f"v_add_f32 {vr(VT+1)}, {vr(VT+1)}, {vr(VT+2)}")
        a(f"v_add_f32 {vr(HS+t)}, {vr(HS+t)}, {vr(VT+1)}")
    a("s_waitcnt vmcnt(0)")
    K1 = -2.0*math.log2(math.e)*math.sqrt(2.0/math.pi)
    a(f"s_mov_b32 {sr(S_T0)}, {hexf(0.044715)}")
    a(f"s_mov_b32 {sr(S_T1)}, {hexf(K1)}")
    for t in range(9):
        x = HS+t
        a(f"v_cvt_pk_bf16_f32 {vr(x)}, {vr(x)}, {vr(x)}")
        a(f"v_and_b32 {vr(x)}, {sr(S_MASKHI)}, {vr(x)}")
        a(f"v_lshlrev_b32 {vr(VF+t)}, 16, {vr(VF+t)}")
        a(f"v_add_f32 {vr(x)}, {vr(x)}, {vr(VF+t)}")
        a(f"v_cvt_pk_bf16_f32 {vr(x)}, {vr(x)}, {vr(x)}")
        a(f"v_and_b32 {vr(x)}, {sr(S_MASKHI)}, {vr(x)}")
        a(f"v_mul_f32 {vr(VT)}, {vr(x)}, {vr(x)}")
        a(f"v_mul_f32 {vr(VT)}, {vr(VT)}, {vr(x)}")
        a(f"v_fma_f32 {vr(VT)}, {vr(VT)}, {sr(S_T0)}, {vr(x)}")
        a(f"v_mul_f32 {vr(VT)}, {sr(S_T1)}, {vr(VT)}")
        a(f"v_exp_f32 {vr(VT)}, {vr(VT)}")
        a("s_nop 0")
        a(f"v_add_f32 {vr(VT)}, 1.0, {vr(VT)}")
        a(f"v_rcp_f32 {vr(VT)}, {vr(VT)}")
        a("s_nop 0")
        a(f"v_mul_f32 {vr(x)}, {vr(x)}, {vr(VT)}")
    HP = VF
    for k in range(4):
        a(f"v_cvt_pk_bf16_f32 {vr(HP+k)}, {vr(HS+2*k)}, {vr(HS+2*k+1)}")
    a(f"v_cvt_pk_bf16_f32 {vr(HP+4)}, {vr(HS+8)}, {vr(HS+8)}")

    def out_unit(t, base):
        fs = []
        for cg in range(4):
            def f(cg=cg):
                if cg == 0:
                    if cfg.ROT2 and t < 8:
                        a(f"s_and_b32 {sr(S_T3)}, {sr(S_B)}, {cfg.ROT2}")
                        a(f"s_xor_b32 {sr(S_T3)}, {sr(S_T3)}, {t}")
                        a(f"s_mul_i32 {sr(S_T3)}, {sr(S_T3)}, 1152")
                    else:
                        a(f"s_movk_i32 {sr(S_T3)}, {t*1152}")
                a(f"buffer_load_dwordx4 {vr(base+4*cg,4)}, {vr(VOF)}, {sr(S_SRDV,4)}, {sr(S_T3)} offen offset:{256*cg} {WF}")
            fs.append(f)
        fs.append(lambda: a(f"buffer_load_dwordx4 {vr(base+16,4)}, {vr(VOF+1)}, {sr(S_SRDV,4)}, {sr(S_T3)} offen {WF}"))
        return fs
    def out_comp(t, base, src, first):
        ao = VAO + 4*(t&1)
        diag(a, ao, src + (t>>1), t&1, SELE, SELO)
        a("s_nop 1")
        for cg in range(5):
            mfma(a, VACC+4*cg, ao, base+4*cg, None if first else VACC+4*cg)
    NB2 = 3
    paced([out_unit(t, VW + 20*(t % NB2)) for t in range(9)],
          lambda t: out_comp(t, VW + 20*(t % NB2), HP, t == 0), D=cfg.D2 or D)
    a(f"s_mul_i32 {sr(S_T0)}, {sr(S_H)}, {128*1152}")
    srd(a, S_SRDV, S_WO, S_T0, 128*1152)
    a(f"v_lshrrev_b32 {vr(VT+1)}, 4, {vr(V_LANE)}")
    a(f"v_and_b32 {vr(VT+4)}, 15, {vr(V_LANE)}")
    a(f"v_lshlrev_b32 {vr(VT+2)}, 3, {vr(VT+1)}")
    a(f"s_lshl_b32 {sr(S_T2)}, {sr(S_SW)}, 5")
    a(f"v_add_u32 {vr(VT+2)}, {sr(S_T2)}, {vr(VT+2)}")
    a(f"s_movk_i32 {sr(S_T3)}, 1152")
    a(f"v_mul_lo_u32 {vr(VOF)}, {vr(VT+2)}, {sr(S_T3)}")
    a(f"v_lshl_add_u32 {vr(VOF)}, {vr(VT+4)}, 4, {vr(VOF)}")
    a(f"v_add_u32 {vr(VOF+1)}, 1024, {vr(VOF)}")
    a(f"v_mov_b32 {vr(VT+5)}, 0x7f000000")
    a(f"v_cmp_gt_u32 vcc, 8, {vr(VT+4)}")
    a("s_nop 1")
    a(f"v_cndmask_b32 {vr(VOF+1)}, {vr(VT+5)}, {vr(VOF+1)}, vcc")
    paced([out_unit(t, VW + 20*t) for t in range(8)], lambda t: None, D=cfg.D3 or D)
    a(f"v_lshlrev_b32 {vr(VOF+2)}, 2, {vr(VT+2)}")
    a(f"v_add_u32 {vr(VOF+2)}, {OPART}, {vr(VOF+2)}")
    a(f"s_mul_i32 {sr(S_T0)}, {sr(S_SW)}, 2560")
    a(f"s_add_u32 {sr(S_T0)}, {sr(S_T0)}, {OUTP}")
    a(f"v_add_u32 {vr(VOF+3)}, {sr(S_T0)}, {vr(VOF+5)}")
    a(f"v_mov_b32 {vr(VOF+4)}, {ML}")
    a(f"s_mov_b32 {sr(S_C)}, {hexf(math.log2(math.e) if (cfg.RSCORE and cfg.SR) else C_SCALE)}")
    a("s_waitcnt vmcnt(0)")
    if cfg.POLL:
        a(f"s_cmp_lg_u32 {sr(S_H)}, {sr(S_B) if cfg.REDB else cfg.RED_H}")
        a("s_cbranch_scc1 L_started")
        a(f"s_cmp_lg_u32 {sr(S_SW)}, 0")
        a("s_cbranch_scc1 L_started")
        if cfg.STARTSIG == 'atomic':
            a(f"s_lshl_b32 {sr(S_T0)}, {sr(S_B)}, 5")
            a(f"v_mov_b32 {vr(VT)}, {sr(S_T0)}")
            a(f"s_mov_b32 {sr(S_T1)}, 200000")
            a.label("L_startchk")
            a(f"s_sub_u32 {sr(S_T1)}, {sr(S_T1)}, 1")
            a("s_cbranch_scc1 L_started")
            a(f"global_load_dword {vr(VT+1)}, {vr(VT)}, {sr(S_DBG,2)} offset:4 sc1")
            a("s_waitcnt vmcnt(0)")
            a(f"v_readfirstlane_b32 {sr(S_T0)}, {vr(VT+1)}")
            a("s_nop 3")
            a(f"s_cmp_ge_u32 {sr(S_T0)}, 32")
            a("s_cbranch_scc1 L_started")
            a("s_sleep 8")
            a("s_branch L_startchk")
        elif cfg.STARTSIG == 'byte':
            a(f"s_lshl_b32 {sr(S_T0)}, {sr(S_B)}, 5")
            a(f"v_and_b32 {vr(VT)}, 7, {vr(V_LANE)}")
            a(f"v_lshlrev_b32 {vr(VT)}, 2, {vr(VT)}")
            a(f"v_add_u32 {vr(VT)}, {sr(S_T0)}, {vr(VT)}")
            a(f"s_mov_b32 {sr(S_T1)}, 200000")
            a(f"s_mov_b32 {sr(S_T2)}, 0x01010101")
            a.label("L_startchk")
            a(f"s_sub_u32 {sr(S_T1)}, {sr(S_T1)}, 1")
            a("s_cbranch_scc1 L_started")
            a(f"global_load_dword {vr(VT+1)}, {vr(VT)}, {sr(S_DBG,2)} sc1")
            a("s_waitcnt vmcnt(0)")
            a(f"v_cmp_ne_u32 vcc, {sr(S_T2)}, {vr(VT+1)}")
            a("s_cbranch_vccz L_started")
            a("s_sleep 8")
            a("s_branch L_startchk")
        a.label("L_started")
    if cfg.CTL:
        T1, T2, nA, nB, nC = [int(x) for x in cfg.CTL.split(',')]
        niter = (128 - (4*cfg.PROUNDS + 8*cfg.K0))//8
        a(f"s_cmp_lg_u32 {sr(S_SW)}, 0")
        a("s_cbranch_scc1 L_ctl_done")
        a(f"v_mov_b32 {vr(VT)}, {FLAG+8}")
        a(f"ds_read_b32 {vr(VT+1)}, {vr(VT)}")
        a("s_waitcnt lgkmcnt(0)")
        a(f"v_readfirstlane_b32 {sr(S_T3)}, {vr(VT+1)}")
        a.label("L_ctl")
        a(f"s_cmp_ge_u32 {sr(S_T3)}, {niter - cfg.CTLSTOP}")
        a("s_cbranch_scc1 L_ctl_done")
        a("s_sleep 2")
        a(f"ds_read_b32 {vr(VT+1)}, {vr(VT)}")
        a("s_waitcnt lgkmcnt(0)")
        a(f"v_readfirstlane_b32 {sr(S_T2)}, {vr(VT+1)}")
        a("s_nop 3")
        a(f"s_cmp_eq_u32 {sr(S_T2)}, {sr(S_T3)}")
        a("s_cbranch_scc1 L_ctl")
        a(f"s_mov_b32 {sr(S_T3)}, {sr(S_T2)}")
        a(f"s_and_b32 {sr(S_T0)}, {sr(S_T3)}, 7")
        a(f"s_lshl_b32 {sr(S_T0)}, {sr(S_T0)}, 5")
        a(f"s_lshr_b32 {sr(S_T1)}, {sr(S_T3)}, 3")
        a(f"s_lshl_b32 {sr(S_T1)}, {sr(S_T1)}, 2")
        a(f"s_add_u32 {sr(S_T0)}, {sr(S_T0)}, {sr(S_T1)}")
        a(f"v_mov_b32 {vr(VT+2)}, {sr(S_T0)}")
        a(f"v_mov_b32 {vr(VT+3)}, 1")
        a("s_mov_b64 exec, 1")
        a(f"global_atomic_add {vr(VT+4)}, {vr(VT+2)}, {vr(VT+3)}, {sr(S_DBG,2)} offset:8 sc0")
        a("s_mov_b64 exec, -1")
        a("s_waitcnt vmcnt(0)")
        a(f"v_readfirstlane_b32 {sr(S_T0)}, {vr(VT+4)}")
        a("s_nop 3")
        a(f"s_mov_b32 {sr(S_T1)}, {nC}")
        a(f"s_cmp_lt_u32 {sr(S_T0)}, {T2}")
        a(f"s_cselect_b32 {sr(S_T1)}, {nB}, {sr(S_T1)}")
        a(f"s_cmp_lt_u32 {sr(S_T0)}, {T1}")
        a(f"s_cselect_b32 {sr(S_T1)}, {nA}, {sr(S_T1)}")
        a(f"v_mov_b32 {vr(VT+2)}, {sr(S_T1)}")
        a(f"ds_write_b32 {vr(VT)}, {vr(VT+2)} offset:4")
        a("s_branch L_ctl")
        a.label("L_ctl_done")
        a("s_waitcnt lgkmcnt(0)")
    stamp(a, cfg, 2)
    a("s_barrier")
    stamp(a, cfg, 3)
    MM = VXA; LL = VXA+4
    a(f"ds_read_b128 {vr(MM,4)}, {vr(VOF+4)}")
    a(f"ds_read_b128 {vr(LL,4)}, {vr(VOF+4)} offset:16")
    OR = [2, 10, 18, 80]
    for w in range(4):
        a(f"ds_read_b128 {vr(OR[w],4)}, {vr(VOF+2)} offset:{w*512}")
        a(f"ds_read_b128 {vr(OR[w]+4,4)}, {vr(VOF+2)} offset:{w*512+16}")
    a("s_waitcnt lgkmcnt(8)")
    mx = 26; tt = 27
    a(f"v_max3_f32 {vr(mx)}, {vr(MM)}, {vr(MM+1)}, {vr(MM+2)}")
    a(f"v_max_f32 {vr(mx)}, {vr(mx)}, {vr(MM+3)}")
    for w in range(4):
        a(f"v_sub_f32 {vr(MM+w)}, {vr(MM+w)}, {vr(mx)}")
    for w in range(4):
        a(f"v_mul_f32 {vr(MM+w)}, {sr(S_C)}, {vr(MM+w)}")
    for w in range(4):
        a(f"v_exp_f32 {vr(MM+w)}, {vr(MM+w)}")
    a("s_nop 0")
    a(f"v_mul_f32 {vr(tt)}, {vr(MM)}, {vr(LL)}")
    for w in range(1,4):
        a(f"v_fmac_f32 {vr(tt)}, {vr(MM+w)}, {vr(LL+w)}")
    a(f"v_rcp_f32 {vr(tt)}, {vr(tt)}")
    a("s_nop 0")
    for w in range(4):
        a(f"v_mul_f32 {vr(MM+w)}, {vr(MM+w)}, {vr(tt)}")
    a("s_waitcnt lgkmcnt(0)")
    for e in range(8):
        a(f"v_mul_f32 {vr(OR[0]+e)}, {vr(OR[0]+e)}, {vr(MM)}")
    for w in range(1,4):
        for e in range(8):
            a(f"v_fmac_f32 {vr(OR[0]+e)}, {vr(OR[w]+e)}, {vr(MM+w)}")
    OPK = 10
    for k in range(4):
        a(f"v_cvt_pk_bf16_f32 {vr(OPK+k)}, {vr(OR[0]+2*k)}, {vr(OR[0]+2*k+1)}")
    diag(a, VAO, OPK, 0, SELE, SELO)
    diag(a, VAO+4, OPK, 1, SELE, SELO)
    for t in range(8):
        ao = VAO + 4*(t&1)
        for cg in range(5):
            mfma(a, VACC+4*cg, ao, VW + 20*t + 4*cg, VACC+4*cg)
        if t + 2 < 8:
            diag(a, ao, OPK + ((t+2)>>1), (t+2)&1, SELE, SELO)
    a("s_mov_b32 exec_hi, 0")
    a("s_nop 2")
    for cg in range(5):
        a(f"ds_write_b128 {vr(VOF+3)}, {vr(VACC+4*cg,4)} offset:{512*cg}")
    a("s_mov_b64 exec, -1")
    a("s_waitcnt lgkmcnt(0)")


PR1=96; PR2=160; POWN=168; PXB=184; PVO=188; PVO0=189; PV2A=190; PV2B=191; PLA=192; POUT=193; PT=194
def set_poll_regs(base):
    global PR1, PR2, POWN, PXB, PVO, PVO0, PV2A, PV2B, PLA, POUT, PT
    PR1=base; PR2=base+64; POWN=base+72; PXB=base+88; PVO=base+92; PVO0=base+93; PV2A=base+94; PV2B=base+95; PLA=base+96; POUT=base+97; PT=base+98

def poll_setup(a, cfg):
    assert cfg.REDB or cfg.RED_H == 0
    L = 0
    a(f"s_mul_i32 {sr(S_T0)}, {sr(S_B)}, {32*2304}")
    srd(a, S_SRD2, S_WS, S_T0, 32*2304)
    a(f"s_mul_i32 {sr(S_T2)}, {sr(S_WAVE)}, 36")
    a(f"v_and_b32 {vr(PT)}, 31, {vr(L)}")
    a(f"v_add_u32 {vr(PT)}, {sr(S_T2)}, {vr(PT)}")
    a(f"v_lshlrev_b32 {vr(PVO)}, 4, {vr(PT)}")
    a(f"v_lshrrev_b32 {vr(PT+1)}, 5, {vr(L)}")
    a(f"s_mov_b32 {sr(S_T3)}, {16*2304}")
    a(f"v_mul_lo_u32 {vr(PT+1)}, {vr(PT+1)}, {sr(S_T3)}")
    a(f"v_add_u32 {vr(PVO)}, {vr(PVO)}, {vr(PT+1)}")
    a(f"v_mov_b32 {vr(PT+2)}, 0x7f000000")
    a(f"v_cmp_gt_u32 vcc, 32, {vr(L)}")
    a("s_nop 1")
    if cfg.REDB: a(f"v_mov_b32 {vr(PVO0)}, {vr(PVO)}")
    else: a(f"v_cndmask_b32 {vr(PVO0)}, {vr(PVO)}, {vr(PT+2)}, vcc")
    a(f"v_and_b32 {vr(PT)}, 3, {vr(L)}")
    a(f"v_add_u32 {vr(PT)}, {sr(S_T2)}, {vr(PT)}")
    a(f"v_add_u32 {vr(PT)}, 32, {vr(PT)}")
    a(f"v_lshlrev_b32 {vr(PV2A)}, 4, {vr(PT)}")
    a(f"v_lshrrev_b32 {vr(PT+1)}, 2, {vr(L)}")
    a(f"s_movk_i32 {sr(S_T3)}, {2*2304}")
    a(f"v_mul_lo_u32 {vr(PT+1)}, {vr(PT+1)}, {sr(S_T3)}")
    a(f"v_add_u32 {vr(PV2A)}, {vr(PV2A)}, {vr(PT+1)}")
    a(f"v_add_u32 {vr(PV2B)}, 2304, {vr(PV2A)}")
    a(f"v_cmp_gt_u32 vcc, 4, {vr(L)}")
    a("s_nop 1")
    if not cfg.REDB: a(f"v_cndmask_b32 {vr(PV2A)}, {vr(PV2A)}, {vr(PT+2)}, vcc")
    a(f"v_add_u32 {vr(PT)}, {sr(S_T2)}, {vr(L)}")
    a(f"v_lshlrev_b32 {vr(PLA)}, 4, {vr(PT)}")
    a(f"v_add_u32 {vr(PLA)}, {OUTP}, {vr(PLA)}")
    a(f"v_lshlrev_b32 {vr(POUT)}, 3, {vr(PT)}")
    a(f"v_cmp_gt_u32 vcc, 36, {vr(L)}")
    a("s_nop 1")
    a(f"v_cndmask_b32 {vr(POUT)}, {vr(PT+2)}, {vr(POUT)}, vcc")
    a(f"s_mul_i32 {sr(S_T0)}, {sr(S_B)}, 1152")
    srd(a, S_SRD3, S_X, S_T0, 1152)
    a(f"buffer_load_dwordx2 {vr(PXB,2)}, {vr(POUT)}, {sr(S_SRD3,4)}, 0 offen")
    srd(a, S_SRD3, S_B2, None, 1152)
    a(f"buffer_load_dwordx2 {vr(PXB+2,2)}, {vr(POUT)}, {sr(S_SRD3,4)}, 0 offen")

def gen_poll_tail(a, cfg):
    V_LANE = 0
    a("s_barrier")
    stamp(a, cfg, 4)
    a("s_branch L_done")
    a.label("L_tail")
    a(f"s_lshl_b32 {sr(S_T0)}, {sr(S_WAVE)}, 10")
    a(f"v_lshl_add_u32 v2, {vr(V_LANE)}, 4, {sr(S_T0)}")
    a(f"v_add_u32 v3, {OUTP}, v2")
    a(f"s_mul_i32 {sr(S_T0)}, {sr(S_WG)}, 2304")
    srd(a, S_SRD3, S_WS, S_T0, 2304)
    a("s_barrier")
    stamp(a, cfg, 4)
    a(f"s_cmp_ge_u32 {sr(S_WAVE)}, 3")
    a("s_cbranch_scc1 L_done")
    for sw in range(4):
        a(f"ds_read_b128 {vr(8+4*sw,4)}, v3 offset:{sw*2560}")
    a("s_waitcnt lgkmcnt(2)")
    a("v_pk_add_f32 v[8:9], v[8:9], v[12:13]")
    a("v_pk_add_f32 v[10:11], v[10:11], v[14:15]")
    a("s_waitcnt lgkmcnt(0)")
    a("v_pk_add_f32 v[16:17], v[16:17], v[20:21]")
    a("v_pk_add_f32 v[18:19], v[18:19], v[22:23]")
    a("v_pk_add_f32 v[8:9], v[8:9], v[16:17]")
    a("v_pk_add_f32 v[10:11], v[10:11], v[18:19]")
    a(f"buffer_store_dwordx4 v[8:11], v2, {sr(S_SRD3,4)}, 0 offen sc1")
    a("s_branch L_done")

    def pload(s):
        if s < 16:
            a(f"s_mov_b32 {sr(S_T0)}, {s*2304}")
            a(f"buffer_load_dwordx4 {vr(PR1+4*s,4)}, {vr(PVO0 if s == 0 else PVO)}, {sr(S_SRD2,4)}, {sr(S_T0)} offen sc1")
        else:
            a(f"buffer_load_dwordx4 {vr(PR2+4*(s-16),4)}, {vr(PV2A if s == 16 else PV2B)}, {sr(S_SRD2,4)}, 0 offen sc1")
    def reg(s): return PR1+4*s if s < 16 else PR2+4*(s-16)
    a.label("L_reducer")
    for s_ in range(18): pload(s_)
    a("s_barrier")
    stamp(a, cfg, 4)
    for sw in range(4):
        a(f"ds_read_b128 {vr(POWN+4*sw,4)}, {vr(PLA)} offset:{sw*2560}")
    a("s_waitcnt lgkmcnt(0)")
    for e in range(4):
        a(f"v_add_f32 {vr(POWN+e)}, {vr(POWN+e)}, {vr(POWN+4+e)}")
        a(f"v_add_f32 {vr(POWN+8+e)}, {vr(POWN+8+e)}, {vr(POWN+12+e)}")
    for e in range(4):
        a(f"v_add_f32 {vr(POWN+e)}, {vr(POWN+e)}, {vr(POWN+8+e)}")
    a(f"s_mov_b32 {sr(S_T1)}, 0xffff0000")
    for src in (PXB, PXB+2):
        a(f"v_lshlrev_b32 {vr(PT)}, 16, {vr(src)}")
        a(f"v_and_b32 {vr(PT+1)}, {sr(S_T1)}, {vr(src)}")
        a(f"v_lshlrev_b32 {vr(PT+2)}, 16, {vr(src+1)}")
        a(f"v_and_b32 {vr(PT+3)}, {sr(S_T1)}, {vr(src+1)}")
        for e in range(4):
            a(f"v_add_f32 {vr(POWN+e)}, {vr(POWN+e)}, {vr(PT+e)}")
    a(f"s_mul_i32 {sr(S_T0)}, {sr(S_B)}, 1152")
    srd(a, S_SRD3, S_OUT, S_T0, 1152)
    a(f"s_mov_b32 {sr(S_CNT)}, 200000")
    TS = PT + 4
    TQ = TS + 32
    a.label("L_poll")
    a(f"s_sub_u32 {sr(S_CNT)}, {sr(S_CNT)}, 1")
    a("s_cbranch_scc1 L_pollok")
    if cfg.POLLDBG:
        a(f"s_mov_b32 {sr(S_STAMP+2)}, {sr(S_STAMP+8)}")
        a(f"s_mov_b32 {sr(S_STAMP+3)}, {sr(S_STAMP+9)}")
        a(f"s_memrealtime {sr(S_STAMP+4,2)}")
    a("s_waitcnt vmcnt(0)")
    if cfg.POLLDBG:
        a(f"s_memrealtime {sr(S_STAMP+8,2)}")
        a("s_waitcnt lgkmcnt(0)")
    for k in range(0, 32, 2):
        a(f"v_pk_add_f32 {vr(TS+k,2)}, {vr(PR1+k,2)}, {vr(PR1+k+32,2)}")
    for k in (0, 2):
        a(f"v_pk_add_f32 {vr(TQ+k,2)}, {vr(PR2+k,2)}, {vr(PR2+4+k,2)}")
    for step in (16, 8, 4):
        for k in range(0, step, 2):
            a(f"v_pk_add_f32 {vr(TS+k,2)}, {vr(TS+k,2)}, {vr(TS+k+step,2)}")
    a(f"v_pk_add_f32 {vr(TS+4,2)}, {vr(TS,2)}, {vr(TS+2,2)}")
    a(f"v_pk_add_f32 {vr(TS+6,2)}, {vr(TQ,2)}, {vr(TQ+2,2)}")
    a(f"v_pk_add_f32 {vr(TS+4,2)}, {vr(TS+4,2)}, {vr(TS+6,2)}")
    a(f"v_cmp_u_f32 vcc, {vr(TS+4)}, {vr(TS+5)}")
    a("s_cbranch_vccz L_pollok")
    MASK = [16,18,20,22,24,26,28,30, 84,86,88,90,92,94,96,98,100, 4]
    tt = [PT, PT+1, PT+2, PT+3]
    for s_ in range(18):
        r = reg(s_); t0 = tt[s_ % 4]
        a(f"v_max3_u32 {vr(t0)}, {vr(r)}, {vr(r+1)}, {vr(r+2)}")
        a(f"v_max_u32 {vr(t0)}, {vr(t0)}, {vr(r+3)}")
        a(f"v_cmp_eq_u32 {sr(MASK[s_],2)}, -1, {vr(t0)}")
    a(f"s_mov_b32 {sr(S_T2)}, 0")
    a("s_nop 2")
    for s_ in range(18):
        a(f"s_cmp_lg_u64 {sr(MASK[s_],2)}, 0")
        a(f"s_cbranch_scc1 L_rl{s_}")
        a.label(f"L_rb{s_}")
    a(f"s_cmp_lg_u32 {sr(S_T2)}, 0")
    a("s_cbranch_scc1 L_poll")
    a("s_branch L_pollok")
    for s_ in range(18):
        a.label(f"L_rl{s_}")
        a(f"s_mov_b64 exec, {sr(MASK[s_],2)}")
        if s_ < 16:
            a(f"s_mov_b32 {sr(S_T0)}, {s_*2304}")
            a(f"buffer_load_dwordx4 {vr(PR1+4*s_,4)}, {vr(PVO0 if s_ == 0 else PVO)}, {sr(S_SRD2,4)}, {sr(S_T0)} offen sc1")
        else:
            a(f"buffer_load_dwordx4 {vr(PR2+4*(s_-16),4)}, {vr(PV2A if s_ == 16 else PV2B)}, {sr(S_SRD2,4)}, 0 offen sc1")
        a("s_mov_b64 exec, -1")
        a(f"s_mov_b32 {sr(S_T2)}, 1")
        a(f"s_branch L_rb{s_}")
    a.label("L_pollok")
    stamp(a, cfg, 5)
    if cfg.POLLDBG:
        a(f"s_sub_u32 {sr(S_STAMP+6)}, 200000, {sr(S_CNT)}")
        a(f"s_mov_b32 {sr(S_STAMP+7)}, 0")
    for e in range(4):
        a(f"v_mov_b32 {vr(PR1+e)}, {vr(TS+e)}")
        a(f"v_mov_b32 {vr(PR2+e)}, {vr(TQ+e)}")
    for e in range(4):
        a(f"v_mov_b32 {vr(PR1+8+e)}, {vr(PR1+e)}")
    a("s_nop 1")
    for e in range(4):
        a(f"v_permlane32_swap_b32 {vr(PR1+e)}, {vr(PR1+8+e)}")
    for r_ in (4, 8):
        for e in range(4):
            a(f"v_add_f32_dpp {vr(PR2+e)}, {vr(PR2+e)}, {vr(PR2+e)} row_ror:{r_} row_mask:0xf bank_mask:0xf")
    for e in range(4):
        a(f"v_add_f32 {vr(PR1+e)}, {vr(PR1+e)}, {vr(PR1+8+e)}")
    for e in range(4):
        a(f"v_mov_b32 {vr(PR2+4+e)}, {vr(PR2+e)}")
    a("s_nop 1")
    for e in range(4):
        a(f"v_permlane16_swap_b32 {vr(PR2+e)}, {vr(PR2+4+e)}")
    a("s_nop 1")
    for e in range(4):
        a(f"v_add_f32 {vr(PR2+e)}, {vr(PR2+e)}, {vr(PR2+4+e)}")
    for e in range(4):
        a(f"v_mov_b32 {vr(PR2+4+e)}, {vr(PR2+e)}")
    a("s_nop 1")
    for e in range(4):
        a(f"v_permlane32_swap_b32 {vr(PR2+e)}, {vr(PR2+4+e)}")
    a("s_nop 1")
    for e in range(4):
        a(f"v_add_f32 {vr(PR2+e)}, {vr(PR2+e)}, {vr(PR2+4+e)}")
    a(f"v_cmp_gt_u32 vcc, 32, {vr(V_LANE)}")
    a(f"s_mov_b32 {sr(S_T1)}, 0xffff0000")
    a("s_nop 0")
    for e in range(4):
        a(f"v_cndmask_b32 {vr(PR1+e)}, {vr(PR2+e)}, {vr(PR1+e)}, vcc")
    for e in range(4):
        a(f"v_add_f32 {vr(PR1+e)}, {vr(PR1+e)}, {vr(POWN+e)}")
    a(f"v_cvt_pk_bf16_f32 {vr(PR1)}, {vr(PR1)}, {vr(PR1+1)}")
    a(f"v_cvt_pk_bf16_f32 {vr(PR1+1)}, {vr(PR1+2)}, {vr(PR1+3)}")
    a(f"buffer_store_dwordx2 {vr(PR1,2)}, {vr(POUT)}, {sr(S_SRD3,4)}, 0 offen")

def gen_tail(a, cfg):
    V_LANE=0
    if cfg.POLL:
        gen_poll_tail(a, cfg)
    else:
        gen_count_tail(a, cfg)
    gen_end(a, cfg)

def gen_count_tail(a, cfg):
    V_LANE=0
    a.label("L_tail")
    a("s_barrier")
    stamp(a, cfg, 4)
    a(f"s_cmp_lg_u32 {sr(S_WAVE)}, 0")
    a("s_cbranch_scc1 L_wait_flag")
    a(f"v_lshlrev_b32 v2, 4, {vr(V_LANE)}")
    a(f"v_add_u32 v3, {OUTP}, v2")
    for k in range(3):
        for sw in range(4):
            a(f"ds_read_b128 {vr(8+16*k+4*sw,4)}, v3 offset:{sw*2560 + k*1024}")
    a(f"s_mul_i32 {sr(S_T0)}, {sr(S_WG)}, 2304")
    srd(a, S_SRD2, S_WS, S_T0, 2304)
    for k in range(3):
        a(f"s_waitcnt lgkmcnt({8-4*k})")
        b = 8+16*k
        for e in range(4):
            a(f"v_add_f32 {vr(b+e)}, {vr(b+e)}, {vr(b+4+e)}")
            a(f"v_add_f32 {vr(b+8+e)}, {vr(b+8+e)}, {vr(b+12+e)}")
        for e in range(4):
            a(f"v_add_f32 {vr(b+e)}, {vr(b+e)}, {vr(b+8+e)}")
        a(f"buffer_store_dwordx4 {vr(b,4)}, v2, {sr(S_SRD2,4)}, 0 offen offset:{1024*k} sc1")
    a("s_waitcnt vmcnt(0)")
    a(f"s_lshl_b32 {sr(S_T0)}, {sr(S_B)}, 5")
    a(f"v_mov_b32 v4, {sr(S_T0)}")
    a("v_mov_b32 v5, 1")
    a("s_mov_b64 exec, 1")
    a(f"global_atomic_add v6, v4, v5, {sr(S_DBG,2)} sc0")
    a("s_waitcnt vmcnt(0)")
    a(f"v_mov_b32 v7, {FLAG}")
    a("ds_write_b32 v7, v6")
    a("s_mov_b64 exec, -1")
    a("s_waitcnt lgkmcnt(0)")
    a.label("L_wait_flag")
    a("s_barrier")
    stamp(a, cfg, 5)
    a(f"v_mov_b32 v7, {FLAG}")
    a("ds_read_b32 v6, v7")
    a("s_waitcnt lgkmcnt(0)")
    a("s_nop 0")
    a(f"v_readfirstlane_b32 {sr(S_T0)}, v6")
    a("s_nop 3")
    a(f"s_cmp_lg_u32 {sr(S_T0)}, 31")
    a("s_cbranch_scc1 L_done")
    a(f"s_mul_i32 {sr(S_T0)}, {sr(S_B)}, {32*2304}")
    srd(a, S_SRD2, S_WS, S_T0, 32*2304)
    a(f"v_lshlrev_b32 v2, 4, {vr(V_LANE)}")
    a(f"v_add_u32 v3, 2048, v2")
    a("v_mov_b32 v4, 0x7f000000")
    a(f"v_cmp_gt_u32 vcc, 16, {vr(V_LANE)}")
    a("s_nop 1")
    a("v_cndmask_b32 v3, v4, v3, vcc")
    a(f"s_mul_i32 {sr(S_T1)}, {sr(S_WAVE)}, {4*2304}")
    for u in range(4):
        a(f"buffer_load_dwordx4 {vr(8+12*u,4)}, v2, {sr(S_SRD2,4)}, {sr(S_T1)} offen sc1")
        a(f"buffer_load_dwordx4 {vr(12+12*u,4)}, v2, {sr(S_SRD2,4)}, {sr(S_T1)} offen offset:1024 sc1")
        a(f"buffer_load_dwordx4 {vr(16+12*u,4)}, v3, {sr(S_SRD2,4)}, {sr(S_T1)} offen sc1")
        if u < 3: a(f"s_add_u32 {sr(S_T1)}, {sr(S_T1)}, 2304")
    a(f"s_mul_i32 {sr(S_T0)}, {sr(S_B)}, 1152")
    srd(a, S_SRD3, S_X, S_T0, 1152)
    srd(a, S_SRDK, S_B2, None, 1152)
    a(f"s_lshl_b32 {sr(S_T2)}, {sr(S_WAVE)}, 6")
    a(f"v_add_u32 v5, {sr(S_T2)}, {vr(V_LANE)}")
    a("v_lshlrev_b32 v6, 3, v5")
    a(f"buffer_load_dwordx2 v[60:61], v6, {sr(S_SRD3,4)}, 0 offen")
    a(f"buffer_load_dwordx2 v[62:63], v6, {sr(S_SRDK,4)}, 0 offen")
    a("s_waitcnt vmcnt(2)")
    for e in range(12):
        a(f"v_add_f32 {vr(8+e)}, {vr(8+e)}, {vr(20+e)}")
        a(f"v_add_f32 {vr(32+e)}, {vr(32+e)}, {vr(44+e)}")
    for e in range(12):
        a(f"v_add_f32 {vr(8+e)}, {vr(8+e)}, {vr(32+e)}")
    a(f"s_mul_i32 {sr(S_T0)}, {sr(S_WAVE)}, 3072")
    a(f"v_add_u32 v7, {sr(S_T0)}, v2")
    for k in range(3):
        a(f"ds_write_b128 v7, {vr(8+4*k,4)} offset:{RED + 1024*k}")
    a("s_waitcnt lgkmcnt(0)")
    a("s_barrier")
    a(f"s_cmp_ge_u32 {sr(S_WAVE)}, 3")
    a("s_cbranch_scc1 L_done")
    a("v_lshlrev_b32 v7, 4, v5")
    for w in range(8):
        a(f"ds_read_b128 {vr(8+4*w,4)}, v7 offset:{RED + 3072*w}")
    a("s_waitcnt lgkmcnt(0)")
    for e in range(4):
        a(f"v_add_f32 {vr(8+e)}, {vr(8+e)}, {vr(12+e)}")
        a(f"v_add_f32 {vr(16+e)}, {vr(16+e)}, {vr(20+e)}")
        a(f"v_add_f32 {vr(24+e)}, {vr(24+e)}, {vr(28+e)}")
        a(f"v_add_f32 {vr(32+e)}, {vr(32+e)}, {vr(36+e)}")
    for e in range(4):
        a(f"v_add_f32 {vr(8+e)}, {vr(8+e)}, {vr(16+e)}")
        a(f"v_add_f32 {vr(24+e)}, {vr(24+e)}, {vr(32+e)}")
    for e in range(4):
        a(f"v_add_f32 {vr(8+e)}, {vr(8+e)}, {vr(24+e)}")
    a("s_waitcnt vmcnt(0)")
    a(f"s_mov_b32 {sr(S_T1)}, 0xffff0000")
    for (src) in (60, 62):
        a(f"v_lshlrev_b32 v40, 16, {vr(src)}")
        a(f"v_and_b32 v41, {sr(S_T1)}, {vr(src)}")
        a(f"v_lshlrev_b32 v42, 16, {vr(src+1)}")
        a(f"v_and_b32 v43, {sr(S_T1)}, {vr(src+1)}")
        for e in range(4):
            a(f"v_add_f32 {vr(8+e)}, {vr(8+e)}, {vr(40+e)}")
    a("v_cvt_pk_bf16_f32 v8, v8, v9")
    a("v_cvt_pk_bf16_f32 v9, v10, v11")
    a(f"s_mul_i32 {sr(S_T0)}, {sr(S_B)}, 1152")
    srd(a, S_SRD2, S_OUT, S_T0, 1152)
    a(f"buffer_store_dwordx2 v[8:9], v6, {sr(S_SRD2,4)}, 0 offen")

def gen_end(a, cfg):
    a.label("L_done")
    if cfg.SPINTO or cfg.SPINX >= 0:
        a(f"s_cmp_lg_u32 {sr(S_WAVE)}, 0")
        a("s_cbranch_scc1 L_exit")
        a(f"s_memrealtime {sr(S_STAMP+12,2)}")
        a("s_waitcnt lgkmcnt(0)")
        if cfg.SPINTO:
            a(f"s_add_u32 {sr(S_T2)}, {sr(S_STAMP)}, {cfg.SPINTO}")
        else:
            a(f"s_sub_u32 {sr(S_T2)}, {sr(S_STAMP+2*cfg.SPINX)}, {sr(S_STAMP)}")
            a(f"s_add_u32 {sr(S_T2)}, {sr(S_T2)}, {sr(S_STAMP+12)}")
        a.label("L_spin")
        a(f"s_memrealtime {sr(S_STAMP+12,2)}")
        a("s_waitcnt lgkmcnt(0)")
        a(f"s_sub_u32 {sr(S_T3)}, {sr(S_STAMP+12)}, {sr(S_T2)}")
        a(f"s_cmp_lt_i32 {sr(S_T3)}, 0")
        a("s_cbranch_scc1 L_spin")
    if cfg.DBGT:
        a(f"s_memrealtime {sr(S_STAMP+12,2)}")
        a("s_waitcnt lgkmcnt(0)")
        a(f"s_cmp_lg_u32 {sr(S_WAVE)}, 0")
        a("s_cbranch_scc1 L_exit")
        a("s_mov_b64 exec, 1")
        a("v_mov_b32 v2, 0")
        for (w, idx, inv) in [(1,0,True),(2,2,False),(3,3,False),(4,6,False),(5,3,True),(6,6,True),(7,2,True)]:
            a(f"v_mov_b32 v4, {sr(S_STAMP+2*idx)}")
            if inv: a("v_not_b32 v4, v4")
            a(f"global_atomic_umax v2, v4, {sr(S_DBG,2)} offset:{4*w}")
    if cfg.STAMPS:
        stamp(a, cfg, 6)
        a("s_waitcnt lgkmcnt(0)")
        a(f"s_lshl_b32 {sr(S_T0)}, {sr(S_WG)}, 3")
        a(f"s_add_u32 {sr(S_T0)}, {sr(S_T0)}, {sr(S_WAVE)}")
        a(f"s_lshl_b32 {sr(S_T0)}, {sr(S_T0)}, 6")
        a(f"s_add_u32 {sr(S_T0)}, {sr(S_T0)}, 0x100000")
        a(f"v_mov_b32 v2, {sr(S_T0)}")
        a("s_mov_b64 exec, 1")
        for k in range(7):
            a(f"v_mov_b32 v4, {sr(S_STAMP+2*k)}")
            a(f"v_mov_b32 v5, {sr(S_STAMP+2*k+1)}")
            a(f"global_store_dwordx2 v2, v[4:5], {sr(S_WS,2)} offset:{8*k}")
    a.label("L_exit")
    a("s_endpgm")

def generate(cfg):
    a = Asm()
    stamp(a, cfg, 0)
    a(f"s_cmp_ge_u32 {sr(S_WG)}, 256")
    a("s_cbranch_scc1 L_exit")
    a(f"s_load_dwordx4 {sr(S_K,4)}, s[0:1], 8")
    a(f"s_load_dwordx2 {sr(S_X,2)}, s[0:1], 0")
    a(f"s_load_dwordx4 {sr(S_WQ,4)}, s[0:1], 24")
    a(f"s_load_dwordx4 {sr(S_W1,4)}, s[0:1], 48")
    a(f"s_load_dwordx4 {sr(S_W2,4)}, s[0:1], 64")
    a(f"s_load_dwordx4 {sr(S_OUT,4)}, s[0:1], 80")
    a(f"s_load_dwordx2 {sr(S_WS,2)}, s[0:1], 96")
    a("v_lshrrev_b32 v1, 6, v0")
    a(f"s_lshr_b32 {sr(S_B)}, {sr(S_WG)}, 5")
    a(f"v_readfirstlane_b32 {sr(S_WAVE)}, v1")
    if cfg.HMAP:
        a(f"s_and_b32 {sr(S_H)}, {sr(S_WG)}, 7")
        a(f"s_lshl_b32 {sr(S_H)}, {sr(S_H)}, 2")
        a(f"s_bfe_u32 {sr(S_T0)}, {sr(S_WG)}, 0x20003")
        a(f"s_add_u32 {sr(S_H)}, {sr(S_H)}, {sr(S_T0)}")
    else:
        a(f"s_and_b32 {sr(S_H)}, {sr(S_WG)}, 31")
    a("v_and_b32 v0, 63, v0")
    if cfg.HMAP:
        a(f"s_lshl_b32 {sr(S_WG)}, {sr(S_B)}, 5")
        a(f"s_add_u32 {sr(S_WG)}, {sr(S_WG)}, {sr(S_H)}")
    a("s_nop 1")
    a(f"s_cmp_ge_u32 {sr(S_WAVE)}, 4")
    if not cfg.SR: a("s_waitcnt lgkmcnt(0)")
    a("s_cbranch_scc1 L_side")
    (gen_stream_sr if cfg.SR else gen_stream)(a, cfg)
    gen_side(a, cfg)
    gen_tail(a, cfg)
    body = a.text()
    hdr = f"""; Fused decode block: LN -> (MHA over KV cache -> out proj) + (LN -> MLP) + residual.
; Kernarg layout (104 bytes): A_x, K, V, wq, wo, B_x, w1, b1, w2, b2, out, debug, ws
; @launch grid=(256,1,1) block=(512,1,1) lds={LDS_BYTES}
.amdgcn_target "amdgcn-amd-amdhsa--gfx950"
.text
.globl {KNAME}
.p2align 8
.type {KNAME},@function
{KNAME}:
"""
    ftr = f"""
.section .rodata,"a"
.p2align 6
.amdhsa_kernel {KNAME}
  .amdhsa_next_free_vgpr 256
  .amdhsa_next_free_sgpr 102
  .amdhsa_accum_offset 256
  .amdhsa_group_segment_fixed_size 0
  .amdhsa_kernarg_size 104
  .amdhsa_user_sgpr_count 2
  .amdhsa_user_sgpr_kernarg_segment_ptr 1
  .amdhsa_system_sgpr_workgroup_id_x 1
  .amdhsa_float_denorm_mode_32 3
.end_amdhsa_kernel
"""
    return hdr + body + ftr

if __name__ == "__main__":
    cfg = Cfg()
    out = sys.argv[1]
    for kv in sys.argv[2:]:
        k, v = kv.split("=")
        cur = getattr(cfg, k)
        if isinstance(cur, bool): v = v in ("1","True","true")
        elif isinstance(cur, int): v = int(v)
        setattr(cfg, k, v)
    open(out, "w").write(generate(cfg))
    print("wrote", out, "LDS", LDS_BYTES)
```

```python
import sys, math

KNAME = "parallel_sum__mha_block_cached__mixer_channel_mlp__decode_kernel"

class Cfg:
    N = 5
    RUNAHEAD = 56
    PROUNDS = 4
    XTRA = 0
    RSCORE = 1
    RAMP = ''
    MMAP = 1
    POLLDBG = False
    D2 = 0
    D3 = 3
    SR = 1
    DQ = 4
    ROT2 = 0
    HMAP = 0
    STARTSIG = 'atomic'
    CTLSTOP = 1
    VERS = '5,7'
    WPOL = ''
    CTL = ''
    NT = 7
    KT = 1
    POLL = True
    RED_H = 0
    LOOPSTAMP = 0
    ALIGN = 0
    PUBF = 'sc1'
    POLF = 'sc1'
    REDB = 1
    K0 = 1
    B2_ITER = 3
    WFLAGS = ""
    NOSIDE = False
    NOCONS = False
    ITSTAMP = False
    DEPTH = 2
    ROT = True
    DBGT = False
    SPINTO = 0
    SPINX = -1
    PROSTAMP = False
    KFLAGS = "nt"
    VFLAGS = "nt"
    STAMPS = False
    PRIO = 2
    perm = 0

RING = 0
MISC = 131072
QPART = MISC
QBF   = QPART + 2048
HPART = QBF + 1024
OPART = HPART + 4096
ML    = OPART + 2048
OUTP  = ML + 64
XPRIV = OUTP
FLAG  = OUTP + 10240
LDS_END = FLAG + 64
RED   = 0
LDS_BYTES = (LDS_END + 1024 + 255)//256*256

C_SCALE = (128 ** -0.5) * math.log2(math.e)

import struct
def f2u(x): return struct.unpack("<I", struct.pack("<f", x))[0]
def hexf(x): return "0x%08x" % f2u(x)

class Asm:
    def __init__(self): self.L = []
    def __call__(self, s): self.L.append("  " + s)
    def label(self, s): self.L.append(s + ":")
    def c(self, s): self.L.append("  ; " + s)
    def text(self): return "\n".join(self.L)

def vr(b, n=1): return f"v{b}" if n == 1 else f"v[{b}:{b+n-1}]"
def sr(b, n=1): return f"s{b}" if n == 1 else f"s[{b}:{b+n-1}]"

S_WG=2; S_WAVE=3
S_K=4; S_V=6
S_SRDK=8; S_SRDV=12
S_X=16
S_WQ=20; S_WO=22
S_W1=24; S_B1=26
S_W2=28; S_B2=30
S_OUT=32; S_DBG=34
S_WS=36
S_B=38; S_H=39; S_M=63
S_T0=40; S_T1=41; S_T2=42; S_T3=43
S_OFFA=44; S_OFFB=45; S_RING=46; S_CNT=47
S_C=48
S_SRD2=52
S_SRD3=56
S_EX=60
S_SW=62
S_STAMP=64
S_MASKHI=80
S_TS=82

def allreduce_sum(a, v, t):
    for r in (8,4,2,1):
        a("s_nop 1")
        a(f"v_add_f32_dpp {vr(v)}, {vr(v)}, {vr(v)} row_ror:{r} row_mask:0xf bank_mask:0xf")
    a(f"v_mov_b32 {vr(t)}, {vr(v)}")
    a("s_nop 1")
    a(f"v_permlane16_swap_b32 {vr(v)}, {vr(t)}")
    a("s_nop 1")
    a(f"v_add_f32 {vr(v)}, {vr(v)}, {vr(t)}")
    a(f"v_mov_b32 {vr(t)}, {vr(v)}")
    a("s_nop 1")
    a(f"v_permlane32_swap_b32 {vr(v)}, {vr(t)}")
    a("s_nop 1")
    a(f"v_add_f32 {vr(v)}, {vr(v)}, {vr(t)}")

def groups_allreduce(a, v, t, op):
    a(f"v_mov_b32 {vr(t)}, {vr(v)}")
    a("s_nop 1")
    a(f"v_permlane16_swap_b32 {vr(v)}, {vr(t)}")
    a("s_nop 1")
    a(f"{op} {vr(v)}, {vr(v)}, {vr(t)}")
    a(f"v_mov_b32 {vr(t)}, {vr(v)}")
    a("s_nop 1")
    a(f"v_permlane32_swap_b32 {vr(v)}, {vr(t)}")
    a("s_nop 1")
    a(f"{op} {vr(v)}, {vr(v)}, {vr(t)}")

def make_selectors(a, lane, selE, selO, t0, t1, t2, t3):
    a(f"v_and_b32 {vr(t0)}, 15, {vr(lane)}")
    a(f"v_and_b32 {vr(t1)}, 1, {vr(t0)}")
    a(f"v_mov_b32 {vr(t2)}, 0x0c0c0100")
    a(f"v_mov_b32 {vr(t3)}, 0x01000c0c")
    a(f"v_cmp_eq_u32 vcc, 1, {vr(t1)}")
    a("s_nop 1")
    a(f"v_cndmask_b32 {vr(t2)}, {vr(t2)}, {vr(t3)}, vcc")
    a(f"v_mov_b32 {vr(t3)}, 0x0c0c0302")
    a(f"v_mov_b32 {vr(t1)}, 0x03020c0c")
    a(f"v_cndmask_b32 {vr(t3)}, {vr(t3)}, {vr(t1)}, vcc")
    a(f"v_lshrrev_b32 {vr(t0)}, 1, {vr(t0)}")
    a(f"v_mov_b32 {vr(t1)}, 0x0c0c0c0c")
    for k in range(4):
        a(f"v_cmp_eq_u32 vcc, {k}, {vr(t0)}")
        a("s_nop 1")
        a(f"v_cndmask_b32 {vr(selE+k)}, {vr(t1)}, {vr(t2)}, vcc")
        a(f"v_cndmask_b32 {vr(selO+k)}, {vr(t1)}, {vr(t3)}, vcc")

def diag(a, dst, P, parity, selE, selO):
    sel = selO if parity else selE
    for k in range(4):
        a(f"v_perm_b32 {vr(dst+k)}, {vr(P)}, {vr(P)}, {vr(sel+k)}")

def mfma(a, D, A, B, C):
    c = "0" if C is None else vr(C,4)
    a(f"v_mfma_f32_16x16x32_bf16 {vr(D,4)}, {vr(A,4)}, {vr(B,4)}, {c}")

def stamp(a, cfg, idx):
    if cfg.PROSTAMP and idx in (2,4,5): return
    if cfg.STAMPS or ((cfg.DBGT or cfg.SPINTO or cfg.SPINX >= 0) and idx in (0,1,2,3)):
        a(f"s_memrealtime {sr(S_STAMP+2*idx,2)}")

def srd(a, d, base, off_lo_sreg_or_none, size):
    if off_lo_sreg_or_none is None:
        a(f"s_mov_b32 {sr(d)}, {sr(base)}")
        a(f"s_mov_b32 {sr(d+1)}, {sr(base+1)}")
    else:
        a(f"s_add_u32 {sr(d)}, {sr(base)}, {sr(off_lo_sreg_or_none)}")
        a(f"s_addc_u32 {sr(d+1)}, {sr(base+1)}, 0")
    if isinstance(size, int):
        a(f"s_mov_b32 {sr(d+2)}, {size}")
    else:
        a(f"s_mov_b32 {sr(d+2)}, {size}")
    a(f"s_mov_b32 {sr(d+3)}, 0x20000")

def gen_stream(a, cfg):
    N = cfg.N
    LAG = 3 + N
    PR = cfg.PROUNDS
    assert PR in (0, 2, 4)
    V_LANE=0
    VK=2
    VV=6
    VVD=7
    VKR=8
    VVR=12
    VT=13
    VQ=16
    VA=32
    VS=48
    VP=56
    VAO=60
    VO=68
    VM=72; VL=73; VAL=74; VMC=75
    SELE=76; SELO=80
    VX=84
    VD=96

    a.label("L_stream")
    if cfg.PRIO: a(f"s_setprio {cfg.PRIO}")
    a(f"s_lshl_b32 {sr(S_T0)}, {sr(S_WG)}, 20")
    srd(a, S_SRDK, S_K, S_T0, 0x100000)
    srd(a, S_SRDV, S_V, S_T0, 0x100000)
    a(f"s_lshl_b32 {sr(S_OFFA)}, {sr(S_WAVE)}, 13")
    a(f"s_add_u32 {sr(S_OFFB)}, {sr(S_OFFA)}, 4096")
    a(f"s_lshl_b32 {sr(S_RING)}, {sr(S_WAVE)}, 15")

    NP = 16*PR
    def load_desc(i):
        if i < NP:
            r, p = divmod(i, 16)
            half = (p % 8)//4; j = p % 4
            if p < 8: return dict(kind='K', j=j, half=half, slot=2*r+half, last=False, req=None)
            return dict(kind='VD', j=j, half=half, dst=VD+32*r+16*half+4*j, last=(p == 15), req=None)
        ip = i - NP
        g = ip//4; j = ip % 4; pos = (ip % 16)//4
        slot = g % 8
        if ip < 32:
            req = None if slot >= 2*PR else 4*(slot//2) + (slot % 2)
        else:
            req = 4*PR + (ip-32)//4
        return dict(kind='K' if pos < 2 else 'V', j=j, half=pos % 2, slot=slot, last=(ip % 16 == 15), req=req)
    def unit_desc(u):
        if u < 4*PR:
            r, pos = divmod(u, 4)
            if pos < 2: return dict(pos=pos, slot=2*r+pos, need=16*r+4*pos+3, direct=None)
            return dict(pos=pos, slot=None, need=16*r+8+4*(pos-2)+3, direct=VD+32*r+16*(pos-2))
        g = u - 4*PR
        return dict(pos=g % 4, slot=g % 8, need=NP+4*g+3, direct=None)

    state = {"m0": None}
    win = {"n": N}
    def issue(i, wait=True):
        d = load_desc(i)
        so = S_OFFB if d['half'] else S_OFFA
        if d['kind'] != 'VD' and state["m0"] != d['slot']:
            a(f"s_add_u32 m0, {sr(S_RING)}, {d['slot']*4096}")
            state["m0"] = d['slot']
            if not wait: a("s_nop 0")
        if wait: a(f"s_waitcnt vmcnt({win['n']-1})")
        j = d['j']
        if d['kind'] == 'K':
            a(f"buffer_load_dwordx4 {vr(VK+j)}, {sr(S_SRDK,4)}, {sr(so)} offen offset:{j*1024} {cfg.KFLAGS} lds")
        elif d['kind'] == 'V':
            a(f"buffer_load_dwordx4 {vr(VV)}, {sr(S_SRDV,4)}, {sr(so)} offen offset:{j*1024} {cfg.VFLAGS} lds")
        else:
            a(f"buffer_load_dwordx4 {vr(d['dst'],4)}, {vr(VVD)}, {sr(S_SRDV,4)}, {sr(so)} offen offset:{j*256} {cfg.VFLAGS}")
        if d['last']:
            a(f"s_add_u32 {sr(S_OFFA)}, {sr(S_OFFA)}, 32768")
            a(f"s_add_u32 {sr(S_OFFB)}, {sr(S_OFFB)}, 32768")

    def piece(u, p):
        if cfg.NOCONS: return
        d = unit_desc(u)
        pos = d['pos']
        if pos < 2:
            S = VS + 4*pos
            slot = d['slot']*4096
            if p == 0:
                for t in range(4):
                    a(f"ds_read_b128 {vr(VA+4*t,4)}, {vr(VKR+t)} offset:{slot}")
            elif p == 1:
                for t in range(4):
                    a(f"s_waitcnt lgkmcnt({3-t})")
                    mfma(a, S, VA+4*t, VQ+4*t, None if t == 0 else S)
            elif pos == 1 and p == 2:
                softmax_a()
            elif pos == 1 and p == 3:
                softmax_b()
        else:
            half = pos - 2
            if d['direct'] is None:
                if p == 0:
                    for r in range(4):
                        a(f"ds_read_b128 {vr(VA+4*r,4)}, {vr(VVR)} offset:{d['slot']*4096 + r*256}")
                r = p
                ao = VAO + 4*(r&1)
                diag(a, ao, VP + 2*half + (r>>1), r&1, SELE, SELO)
                a(f"s_waitcnt lgkmcnt({3-r})")
                a("s_nop 0")
                mfma(a, VO, ao, VA+4*r, VO)
            else:
                r = p
                ao = VAO + 4*(r&1)
                diag(a, ao, VP + 2*half + (r>>1), r&1, SELE, SELO)
                a("s_nop 1")
                mfma(a, VO, ao, d['direct']+4*r, VO)

    def softmax_a():
        a(f"v_max3_f32 {vr(VX)}, {vr(VS)}, {vr(VS+1)}, {vr(VS+2)}")
        a(f"v_max3_f32 {vr(VX)}, {vr(VX)}, {vr(VS+3)}, {vr(VM)}")
        a("s_nop 5")
        a(f"v_max3_f32 {vr(VX+1)}, {vr(VS+4)}, {vr(VS+5)}, {vr(VS+6)}")
        a(f"v_max3_f32 {vr(VX)}, {vr(VX)}, {vr(VS+7)}, {vr(VX+1)}")
        groups_allreduce(a, VX, VX+1, "v_max_f32")
        a(f"v_sub_f32 {vr(VAL)}, {vr(VM)}, {vr(VX)}")
        a(f"v_mul_f32 {vr(VMC)}, {sr(S_C)}, {vr(VX)}")
        a(f"v_mul_f32 {vr(VAL)}, {sr(S_C)}, {vr(VAL)}")
        a(f"v_mov_b32 {vr(VM)}, {vr(VX)}")
        a(f"v_exp_f32 {vr(VAL)}, {vr(VAL)}")
        for r in range(8):
            a(f"v_fma_f32 {vr(VS+r)}, {vr(VS+r)}, {sr(S_C)}, -{vr(VMC)}")
    def softmax_b():
        for r in range(8):
            a(f"v_exp_f32 {vr(VS+r)}, {vr(VS+r)}")
        for r in range(4):
            a(f"v_mul_f32 {vr(VO+r)}, {vr(VO+r)}, {vr(VAL)}")
        a(f"v_mul_f32 {vr(VL)}, {vr(VL)}, {vr(VAL)}")
        a(f"v_add_f32 {vr(VX)}, {vr(VS)}, {vr(VS+1)}")
        a(f"v_add_f32 {vr(VX+1)}, {vr(VS+2)}, {vr(VS+3)}")
        a(f"v_add_f32 {vr(VX+2)}, {vr(VS+4)}, {vr(VS+5)}")
        a(f"v_add_f32 {vr(VX+3)}, {vr(VS+6)}, {vr(VS+7)}")
        for r in range(4):
            a(f"v_cvt_pk_bf16_f32 {vr(VP+r)}, {vr(VS+2*r)}, {vr(VS+2*r+1)}")
        a(f"v_add_f32 {vr(VX)}, {vr(VX)}, {vr(VX+1)}")
        a(f"v_add_f32 {vr(VX+2)}, {vr(VX+2)}, {vr(VX+3)}")
        a(f"v_add_f32 {vr(VL)}, {vr(VL)}, {vr(VX)}")
        a(f"v_add_f32 {vr(VL)}, {vr(VL)}, {vr(VX+2)}")

    a(f"v_lshrrev_b32 {vr(VT)}, 4, {vr(V_LANE)}")
    a(f"v_and_b32 {vr(VT+1)}, 15, {vr(V_LANE)}")
    for j in range(4):
        a(f"v_add_u32 {vr(VK+j)}, {4*j}, {vr(VT)}")
        a(f"v_xor_b32 {vr(VK+j)}, {vr(VK+j)}, {vr(VT+1)}")
        a(f"v_lshlrev_b32 {vr(VK+j)}, 4, {vr(VK+j)}")
        a(f"v_lshl_add_u32 {vr(VK+j)}, {vr(VT)}, 8, {vr(VK+j)}")
    for i in range(N): issue(i, wait=False)
    a(f"v_lshlrev_b32 {vr(VV)}, 4, {vr(V_LANE)}")
    a(f"v_lshlrev_b32 {vr(VVD)}, 10, {vr(VT)}")
    a(f"v_lshl_add_u32 {vr(VVD)}, {vr(VT+1)}, 4, {vr(VVD)}")
    for t in range(4):
        a(f"v_add_u32 {vr(VKR+t)}, {4*t}, {vr(VT)}")
        a(f"v_xor_b32 {vr(VKR+t)}, {vr(VKR+t)}, {vr(VT+1)}")
        a(f"v_lshlrev_b32 {vr(VKR+t)}, 4, {vr(VKR+t)}")
        a(f"v_lshl_add_u32 {vr(VKR+t)}, {vr(VT+1)}, 8, {vr(VKR+t)}")
        a(f"v_add_u32 {vr(VKR+t)}, {sr(S_RING)}, {vr(VKR+t)}")
    a(f"v_add_u32 {vr(VVR)}, {sr(S_RING)}, {vr(VVD)}")
    make_selectors(a, V_LANE, SELE, SELO, VX, VX+1, VX+2, VX+3)
    a(f"v_mov_b32 {vr(VM)}, 0xff800000")
    a(f"v_mov_b32 {vr(VL)}, 0")
    for r in range(4): a(f"v_mov_b32 {vr(VO+r)}, 0")
    a(f"s_mov_b32 {sr(S_C)}, {hexf(C_SCALE)}")

    RA = cfg.RUNAHEAD
    for i in range(N, RA):
        assert load_desc(i)['req'] is None
        issue(i)
        if cfg.PROSTAMP and i == N: a(f"s_memrealtime {sr(S_STAMP+4,2)}")
        if cfg.PROSTAMP and i == 20: a(f"s_memrealtime {sr(S_STAMP+8,2)}")
        if cfg.PROSTAMP and i == 40: a(f"s_memrealtime {sr(S_STAMP+10,2)}")
    stamp(a, cfg, 1)
    a("s_barrier")
    stamp(a, cfg, 2)
    nxt = RA
    def try_issue(done_units):
        nonlocal nxt
        d = load_desc(nxt)
        if d['req'] is not None and d['req'] >= done_units: return False
        issue(nxt); nxt += 1
        return True
    a(f"v_lshlrev_b32 {vr(VX)}, 4, {vr(V_LANE)}")
    a(f"v_and_b32 {vr(VX)}, 0x1ff, {vr(VX)}")
    a(f"v_add_u32 {vr(VX)}, {QPART}, {vr(VX)}")
    for p in range(4):
        a(f"ds_read_b128 {vr(VA+4*p,4)}, {vr(VX)} offset:{p*512}")
    try_issue(0); try_issue(0)
    a("s_waitcnt lgkmcnt(0)")
    for e in range(4):
        a(f"v_add_f32 {vr(VA+e)}, {vr(VA+e)}, {vr(VA+4+e)}")
        a(f"v_add_f32 {vr(VA+8+e)}, {vr(VA+8+e)}, {vr(VA+12+e)}")
    for e in range(4):
        a(f"v_add_f32 {vr(VA+e)}, {vr(VA+e)}, {vr(VA+8+e)}")
    a(f"v_cvt_pk_bf16_f32 {vr(VA+4)}, {vr(VA)}, {vr(VA+1)}")
    a(f"v_cvt_pk_bf16_f32 {vr(VA+5)}, {vr(VA+2)}, {vr(VA+3)}")
    a(f"v_lshlrev_b32 {vr(VX+1)}, 3, {vr(V_LANE)}")
    a(f"v_and_b32 {vr(VX+1)}, 0xff, {vr(VX+1)}")
    a(f"s_lshl_b32 {sr(S_T0)}, {sr(S_WAVE)}, 8")
    a(f"s_add_u32 {sr(S_T0)}, {sr(S_T0)}, {QBF}")
    a(f"v_add_u32 {vr(VX+1)}, {sr(S_T0)}, {vr(VX+1)}")
    a(f"ds_write_b64 {vr(VX+1)}, {vr(VA+4,2)}")
    a(f"v_lshrrev_b32 {vr(VX+2)}, 4, {vr(V_LANE)}")
    a(f"v_lshlrev_b32 {vr(VX+2)}, 4, {vr(VX+2)}")
    a(f"v_add_u32 {vr(VX+2)}, {sr(S_T0)}, {vr(VX+2)}")
    a("s_waitcnt lgkmcnt(0)")
    for t in range(4):
        a(f"ds_read_b128 {vr(VQ+4*t,4)}, {vr(VX+2)} offset:{t*64}")
    try_issue(0)
    a("s_waitcnt lgkmcnt(0)")
    VERS = [int(x) for x in cfg.VERS.split(',')]
    NMAX = max(VERS + [N])
    U0 = 4*PR + 8*cfg.K0
    target = NP + 32*cfg.K0 + NMAX + 3
    u = 0
    while u < U0 or nxt < target:
        d = unit_desc(u) if u < U0 else None
        if d is not None and nxt - 1 - N >= d['need']:
            ahead = (nxt - 1 - N) - d['need']
            for p in range(4):
                piece(u, p)
                want = (ahead < 2) or (p in (1, 3))
                if want and nxt < target:
                    try_issue(u)
            u += 1
        else:
            if not (nxt < target and try_issue(u)):
                raise RuntimeError(f"schedule deadlock u={u} nxt={nxt}")
    assert nxt == target and u == U0, (nxt, target, u, U0)
    if cfg.POLL:
        poll_setup(a, cfg)
    niter = (128 - U0)//8
    assert (128 - U0) % 8 == 0
    S_POL = S_TS
    VPG = 224
    if cfg.WPOL:
        wp = [int(x) for x in cfg.WPOL.split(',')]
        a(f"s_mov_b32 {sr(S_POL)}, {wp[0]}")
        for w in range(1, 4):
            a(f"s_cmp_eq_u32 {sr(S_WAVE)}, {w}")
            a(f"s_cselect_b32 {sr(S_POL)}, {wp[w]}, {sr(S_POL)}")
    else:
        a(f"s_mov_b32 {sr(S_POL)}, {N}")
    if cfg.CTL:
        a(f"v_mov_b32 {vr(VPG)}, {FLAG+8}")
    a(f"s_mov_b32 {sr(S_CNT)}, 1")
    a.label("L_sloop")
    if cfg.KT:
        a(f"s_cmp_gt_u32 {sr(S_CNT)}, {niter - cfg.KT}")
        a(f"s_cselect_b32 {sr(S_POL)}, {cfg.NT}, {sr(S_POL)}")
        assert cfg.NT in VERS
    if cfg.CTL:
        a(f"v_mov_b32 {vr(VPG+1)}, {sr(S_CNT)}")
        a(f"s_cmp_lg_u32 {sr(S_WAVE)}, 0")
        a("s_cbranch_scc1 L_nopg")
        a(f"ds_write_b32 {vr(VPG)}, {vr(VPG+1)}")
        a.label("L_nopg")
    for vi, n in enumerate(VERS[:-1]):
        a(f"s_cmp_eq_u32 {sr(S_POL)}, {n}")
        a(f"s_cbranch_scc1 L_ver{n}")
    order = [VERS[-1]] + VERS[:-1]
    for vi, n in enumerate(order):
        a.label(f"L_ver{n}")
        win["n"] = n
        state["m0"] = None
        for uu in range(32):
            issue(target + uu)
            if cfg.CTL and uu == 28:
                a(f"ds_read_b32 {vr(VPG+2)}, {vr(VPG)} offset:4")
            piece(U0 + uu//4, uu % 4)
        if vi < len(order) - 1:
            a("s_branch L_snext")
    a.label("L_snext")
    if cfg.CTL:
        a(f"v_readfirstlane_b32 {sr(S_POL)}, {vr(VPG+2)}")
    a(f"s_add_u32 {sr(S_CNT)}, {sr(S_CNT)}, 1")
    a(f"s_cmp_le_u32 {sr(S_CNT)}, {niter}")
    a("s_cbranch_scc1 L_sloop")
    stamp(a, cfg, 3)
    groups_allreduce(a, VL, VX, "v_add_f32")
    a(f"v_and_b32 {vr(VX)}, 15, {vr(V_LANE)}")
    a(f"v_lshrrev_b32 {vr(VX+1)}, 4, {vr(V_LANE)}")
    a(f"v_lshlrev_b32 {vr(VX)}, 5, {vr(VX)}")
    a(f"v_lshl_add_u32 {vr(VX)}, {vr(VX+1)}, 4, {vr(VX)}")
    a(f"s_lshl_b32 {sr(S_T0)}, {sr(S_WAVE)}, 9")
    a(f"s_add_u32 {sr(S_T0)}, {sr(S_T0)}, {OPART}")
    a(f"v_add_u32 {vr(VX)}, {sr(S_T0)}, {vr(VX)}")
    a(f"s_lshl_b32 {sr(S_T0)}, {sr(S_WAVE)}, 2")
    a(f"s_add_u32 {sr(S_T0)}, {sr(S_T0)}, {ML}")
    a(f"v_mov_b32 {vr(VX+2)}, {sr(S_T0)}")
    a("s_mov_b32 exec_hi, 0")
    a(f"ds_write_b128 {vr(VX)}, {vr(VO,4)}")
    a("s_mov_b64 exec, 1")
    a(f"ds_write_b32 {vr(VX+2)}, {vr(VM)}")
    a(f"ds_write_b32 {vr(VX+2)}, {vr(VL)} offset:16")
    a("s_mov_b64 exec, -1")
    a("s_waitcnt lgkmcnt(0)")
    a("s_barrier")
    if cfg.POLL:
        a(f"s_cmp_eq_u32 {sr(S_H)}, {sr(S_B) if cfg.REDB else cfg.RED_H}")
        a("s_cbranch_scc1 L_reducer")
    else:
        a("s_waitcnt vmcnt(0)")
    a("s_branch L_tail")

def gen_stream_sr(a, cfg):
    N = cfg.N
    LAG = 3 + N
    PR = cfg.PROUNDS
    assert PR in (0, 2, 4)
    V_LANE=0
    VK=2
    VV=6
    VVD=7
    VKR=8
    VVR=12
    VT=13
    VQ=16
    VA=32
    VS=48
    VP=80
    VAO=82
    VO=92
    VM=90; VL=91; VAL=96; VMC=97
    SELE=98; SELO=102
    VX=106
    VMX=14
    VD=112
    set_poll_regs(112)
    S_SOF = S_OFFB

    a.label("L_stream")
    if cfg.PRIO: a(f"s_setprio {cfg.PRIO}")
    a(f"s_lshl_b32 {sr(S_OFFA)}, {sr(S_WAVE)}, 13")
    a(f"s_lshl_b32 {sr(S_RING)}, {sr(S_WAVE)}, 15")
    a(f"v_lshrrev_b32 {vr(VT)}, 4, {vr(V_LANE)}")
    a(f"v_and_b32 {vr(VT+1)}, 15, {vr(V_LANE)}")
    for j in range(4):
        a(f"v_add_u32 {vr(VK+j)}, {4*j}, {vr(VT)}")
        a(f"v_xor_b32 {vr(VK+j)}, {vr(VK+j)}, {vr(VT+1)}")
        a(f"v_lshlrev_b32 {vr(VK+j)}, 4, {vr(VK+j)}")
        a(f"v_lshl_add_u32 {vr(VK+j)}, {vr(VT)}, 8, {vr(VK+j)}")
    a(f"s_lshl_b32 {sr(S_T0)}, {sr(S_WG)}, 20")
    a("s_waitcnt lgkmcnt(0)")
    srd(a, S_SRDK, S_K, S_T0, 0x100000)
    srd(a, S_SRDV, S_V, S_T0, 0x100000)

    NP = 64
    def load_desc(i):
        if i < NP:
            p = i % 32; r = p//8; half = (p % 8)//4; j = p % 4
            if i < 32: return dict(kind='K', j=j, r=r, half=half, slot=p//4, last=False, req=None)
            return dict(kind='VD', j=j, r=r, half=half, dst=VD+32*r+16*half+4*j, last=(i == 63), req=None)
        ip = i - NP
        g = ip//4; j = ip % 4; p = ip % 64
        pp = p % 32; r = pp//8; half = (pp % 8)//4
        req = g if ip < 32 else 16 + (ip-32)//4
        return dict(kind='K' if p < 32 else 'V', j=j, r=r, half=half, slot=g % 8, last=(p == 63), req=req)
    def unit_desc(u):
        if u < 16:
            if u < 8: return dict(k=True, r=u//2, half=u % 2, slot=u, need=4*u+3, direct=None)
            q = u - 8
            return dict(k=False, r=q//2, half=q % 2, slot=None, need=32+4*q+3, direct=VD+32*(q//2)+16*(q % 2))
        g = u - 16; q = g % 16
        qq = q % 8
        return dict(k=(q < 8), r=qq//2, half=qq % 2, slot=g % 8, need=NP+4*g+3, direct=None)

    state = {"m0": None, "sof": None}
    win = {"n": N}
    def issue(i, wait=True):
        d = load_desc(i)
        key = (d['r'], d['half'])
        if state["sof"] != key or d['j'] == 0:
            a(f"s_add_u32 {sr(S_SOF)}, {sr(S_OFFA)}, {d['r']*32768 + d['half']*4096}")
            state["sof"] = key
        if d['kind'] != 'VD' and state["m0"] != d['slot']:
            a(f"s_add_u32 m0, {sr(S_RING)}, {d['slot']*4096}")
            state["m0"] = d['slot']
            if not wait: a("s_nop 0")
        if wait: a(f"s_waitcnt vmcnt({win['n']-1})")
        j = d['j']
        if d['kind'] == 'K':
            a(f"buffer_load_dwordx4 {vr(VK+j)}, {sr(S_SRDK,4)}, {sr(S_SOF)} offen offset:{j*1024} {cfg.KFLAGS} lds")
        elif d['kind'] == 'V':
            a(f"buffer_load_dwordx4 {vr(VV)}, {sr(S_SRDV,4)}, {sr(S_SOF)} offen offset:{j*1024} {cfg.VFLAGS} lds")
        else:
            a(f"buffer_load_dwordx4 {vr(d['dst'],4)}, {vr(VVD)}, {sr(S_SRDV,4)}, {sr(S_SOF)} offen offset:{j*256} {cfg.VFLAGS}")
        if d['last']:
            a(f"s_add_u32 {sr(S_OFFA)}, {sr(S_OFFA)}, 131072")
            state["sof"] = None

    def piece(u, p):
        if cfg.NOCONS: return
        d = unit_desc(u)
        S = VS + 8*d['r'] + 4*d['half']
        if d['k']:
            slot = d['slot']*4096
            first = (d['r'] == 0 and d['half'] == 0)
            lastk = (d['r'] == 3 and d['half'] == 1)
            if p == 0:
                for t in range(4):
                    a(f"ds_read_b128 {vr(VA+4*t,4)}, {vr(VKR+t)} offset:{slot}")
            elif p == 1:
                for t in range(4):
                    a(f"s_waitcnt lgkmcnt({3-t})")
                    mfma(a, S, VA+4*t, VQ+4*t, None if t == 0 else S)
            elif p == 2:
                a("s_nop 7")
                if cfg.RSCORE:
                    for rnd in range(2):
                        a(f"v_cvt_pk_bf16_f32 {vr(VX)}, {vr(S)}, {vr(S+1)}")
                        a(f"v_cvt_pk_bf16_f32 {vr(VX+1)}, {vr(S+2)}, {vr(S+3)}")
                        a(f"v_lshlrev_b32 {vr(S)}, 16, {vr(VX)}")
                        a(f"v_and_b32 {vr(S+1)}, {sr(S_MASKHI)}, {vr(VX)}")
                        a(f"v_lshlrev_b32 {vr(S+2)}, 16, {vr(VX+1)}")
                        a(f"v_and_b32 {vr(S+3)}, {sr(S_MASKHI)}, {vr(VX+1)}")
                        if rnd == 0:
                            for e in range(4):
                                a(f"v_mul_f32 {vr(S+e)}, {sr(S_MASKHI+1)}, {vr(S+e)}")
                a(f"v_max3_f32 {vr(VMX)}, {vr(VM if first else VMX)}, {vr(S)}, {vr(S+1)}")
                a(f"v_max3_f32 {vr(VMX)}, {vr(VMX)}, {vr(S+2)}, {vr(S+3)}")
            elif p == 3 and lastk:
                groups_allreduce(a, VMX, VX, "v_max_f32")
                a(f"v_sub_f32 {vr(VAL)}, {vr(VM)}, {vr(VMX)}")
                a(f"v_mul_f32 {vr(VMC)}, {sr(S_C)}, {vr(VMX)}")
                a(f"v_mul_f32 {vr(VAL)}, {sr(S_C)}, {vr(VAL)}")
                a(f"v_mov_b32 {vr(VM)}, {vr(VMX)}")
                a(f"v_exp_f32 {vr(VAL)}, {vr(VAL)}")
                a("s_nop 0")
                for r in range(4):
                    a(f"v_mul_f32 {vr(VO+r)}, {vr(VO+r)}, {vr(VAL)}")
                a(f"v_mul_f32 {vr(VL)}, {vr(VL)}, {vr(VAL)}")
        else:
            direct = d['direct']
            if p == 0:
                if direct is None:
                    for r in range(4):
                        a(f"ds_read_b128 {vr(VA+4*r,4)}, {vr(VVR)} offset:{d['slot']*4096 + r*256}")
                for r in range(4):
                    a(f"v_fma_f32 {vr(S+r)}, {vr(S+r)}, {sr(S_C)}, -{vr(VMC)}")
                for r in range(4):
                    a(f"v_exp_f32 {vr(S+r)}, {vr(S+r)}")
                a("s_nop 0")
                a(f"v_cvt_pk_bf16_f32 {vr(VP)}, {vr(S)}, {vr(S+1)}")
                a(f"v_cvt_pk_bf16_f32 {vr(VP+1)}, {vr(S+2)}, {vr(S+3)}")
                a(f"v_add_f32 {vr(VX)}, {vr(S)}, {vr(S+1)}")
                a(f"v_add_f32 {vr(VX+1)}, {vr(S+2)}, {vr(S+3)}")
                a(f"v_add_f32 {vr(VL)}, {vr(VL)}, {vr(VX)}")
                a(f"v_add_f32 {vr(VL)}, {vr(VL)}, {vr(VX+1)}")
            r = p
            ao = VAO + 4*(r&1)
            diag(a, ao, VP + (r>>1), r&1, SELE, SELO)
            if direct is None:
                a(f"s_waitcnt lgkmcnt({3-r})")
                a("s_nop 0")
                mfma(a, VO, ao, VA+4*r, VO)
            else:
                a("s_nop 1")
                mfma(a, VO, ao, direct+4*r, VO)

    for i in range(N): issue(i, wait=False)
    a(f"v_lshlrev_b32 {vr(VV)}, 4, {vr(V_LANE)}")
    a(f"v_lshlrev_b32 {vr(VVD)}, 10, {vr(VT)}")
    a(f"v_lshl_add_u32 {vr(VVD)}, {vr(VT+1)}, 4, {vr(VVD)}")
    for t in range(4):
        a(f"v_add_u32 {vr(VKR+t)}, {4*t}, {vr(VT)}")
        a(f"v_xor_b32 {vr(VKR+t)}, {vr(VKR+t)}, {vr(VT+1)}")
        a(f"v_lshlrev_b32 {vr(VKR+t)}, 4, {vr(VKR+t)}")
        a(f"v_lshl_add_u32 {vr(VKR+t)}, {vr(VT+1)}, 8, {vr(VKR+t)}")
        a(f"v_add_u32 {vr(VKR+t)}, {sr(S_RING)}, {vr(VKR+t)}")
    a(f"v_add_u32 {vr(VVR)}, {sr(S_RING)}, {vr(VVD)}")
    make_selectors(a, V_LANE, SELE, SELO, VX, VX+1, VX+2, VX+3)
    a(f"v_mov_b32 {vr(VM)}, 0xff800000")
    a(f"v_mov_b32 {vr(VL)}, 0")
    for r in range(4): a(f"v_mov_b32 {vr(VO+r)}, 0")
    a(f"s_mov_b32 {sr(S_C)}, {hexf(math.log2(math.e) if cfg.RSCORE else C_SCALE)}")
    a(f"s_mov_b32 {sr(S_MASKHI)}, 0xffff0000")
    a(f"s_mov_b32 {sr(S_MASKHI+1)}, {hexf(128 ** -0.5)}")

    RA = cfg.RUNAHEAD
    for i in range(N, RA):
        assert load_desc(i)['req'] is None
        issue(i)
        if cfg.PROSTAMP and i == N: a(f"s_memrealtime {sr(S_STAMP+4,2)}")
        if cfg.PROSTAMP and i == 20: a(f"s_memrealtime {sr(S_STAMP+8,2)}")
        if cfg.PROSTAMP and i == 40: a(f"s_memrealtime {sr(S_STAMP+10,2)}")
    stamp(a, cfg, 1)
    a("s_barrier")
    stamp(a, cfg, 2)
    nxt = RA
    def try_issue(done_units):
        nonlocal nxt
        d = load_desc(nxt)
        if d['req'] is not None and d['req'] >= done_units: return False
        issue(nxt); nxt += 1
        return True
    a(f"v_lshlrev_b32 {vr(VX)}, 4, {vr(V_LANE)}")
    a(f"v_and_b32 {vr(VX)}, 0x1ff, {vr(VX)}")
    a(f"v_add_u32 {vr(VX)}, {QPART}, {vr(VX)}")
    for p in range(4):
        a(f"ds_read_b128 {vr(VA+4*p,4)}, {vr(VX)} offset:{p*512}")
    try_issue(0); try_issue(0)
    a("s_waitcnt lgkmcnt(0)")
    for e in range(4):
        a(f"v_add_f32 {vr(VA+e)}, {vr(VA+e)}, {vr(VA+4+e)}")
        a(f"v_add_f32 {vr(VA+8+e)}, {vr(VA+8+e)}, {vr(VA+12+e)}")
    for e in range(4):
        a(f"v_add_f32 {vr(VA+e)}, {vr(VA+e)}, {vr(VA+8+e)}")
    a(f"v_cvt_pk_bf16_f32 {vr(VA+4)}, {vr(VA)}, {vr(VA+1)}")
    a(f"v_cvt_pk_bf16_f32 {vr(VA+5)}, {vr(VA+2)}, {vr(VA+3)}")
    a(f"v_lshlrev_b32 {vr(VX+1)}, 3, {vr(V_LANE)}")
    a(f"v_and_b32 {vr(VX+1)}, 0xff, {vr(VX+1)}")
    a(f"s_lshl_b32 {sr(S_T0)}, {sr(S_WAVE)}, 8")
    a(f"s_add_u32 {sr(S_T0)}, {sr(S_T0)}, {QBF}")
    a(f"v_add_u32 {vr(VX+1)}, {sr(S_T0)}, {vr(VX+1)}")
    a(f"ds_write_b64 {vr(VX+1)}, {vr(VA+4,2)}")
    a(f"v_lshrrev_b32 {vr(VX+2)}, 4, {vr(V_LANE)}")
    a(f"v_lshlrev_b32 {vr(VX+2)}, 4, {vr(VX+2)}")
    a(f"v_add_u32 {vr(VX+2)}, {sr(S_T0)}, {vr(VX+2)}")
    a("s_waitcnt lgkmcnt(0)")
    for t in range(4):
        a(f"ds_read_b128 {vr(VQ+4*t,4)}, {vr(VX+2)} offset:{t*64}")
    try_issue(0)
    a("s_waitcnt lgkmcnt(0)")
    VERS = [int(x) for x in cfg.VERS.split(',')]
    ramp = [tuple(int(y) for y in x.split(':')) for x in cfg.RAMP.split(',')] if cfg.RAMP else []
    NMAX = max([v for v in VERS if v != 99] + [N] + [r[0] for r in ramp])
    U0 = 32
    target = NP + 64 + NMAX + 3
    u = 0
    while u < U0 or nxt < target:
        d = unit_desc(u) if u < U0 else None
        if d is not None and nxt - 1 - N >= d['need']:
            ahead = (nxt - 1 - N) - d['need']
            for p in range(4):
                piece(u, p)
                want = (ahead < 2) or (p in (1, 3))
                if want and nxt < target:
                    try_issue(u)
            u += 1
        else:
            if not (nxt < target and try_issue(u)):
                raise RuntimeError(f"schedule deadlock u={u} nxt={nxt}")
    assert nxt == target and u == U0, (nxt, target, u, U0)
    if cfg.POLL:
        poll_setup(a, cfg)
    niter = (128 - U0)//16
    S_POL = S_TS
    VPG = 224
    if cfg.WPOL:
        wp = [int(x) for x in cfg.WPOL.split(',')]
        a(f"s_mov_b32 {sr(S_POL)}, {wp[0]}")
        for w in range(1, 4):
            a(f"s_cmp_eq_u32 {sr(S_WAVE)}, {w}")
            a(f"s_cselect_b32 {sr(S_POL)}, {wp[w]}, {sr(S_POL)}")
    else:
        a(f"s_mov_b32 {sr(S_POL)}, {N}")
    if cfg.CTL:
        a(f"v_mov_b32 {vr(VPG)}, {FLAG+8}")
    if cfg.LOOPSTAMP:
        a(f"s_memrealtime {sr(S_STAMP+4,2)}")
        a("s_waitcnt lgkmcnt(0)")
    a(f"s_mov_b32 {sr(S_CNT)}, 1")
    if cfg.ALIGN: a(f".p2align {cfg.ALIGN}")
    a.label("L_sloop")
    if cfg.KT:
        a(f"s_cmp_gt_u32 {sr(S_CNT)}, {niter - cfg.KT}")
        a(f"s_cselect_b32 {sr(S_POL)}, {cfg.NT}, {sr(S_POL)}")
        assert cfg.NT in VERS
    if cfg.CTL:
        a(f"v_mov_b32 {vr(VPG+1)}, {sr(S_CNT)}")
        a(f"s_cmp_lg_u32 {sr(S_WAVE)}, 0")
        a("s_cbranch_scc1 L_nopg")
        a(f"ds_write_b32 {vr(VPG)}, {vr(VPG+1)}")
        a.label("L_nopg")
    for vi, n in enumerate(VERS[:-1]):
        a(f"s_cmp_eq_u32 {sr(S_POL)}, {n}")
        a(f"s_cbranch_scc1 L_ver{n}")
    order = [VERS[-1]] + VERS[:-1]
    for vi, n in enumerate(order):
        if cfg.ALIGN and vi > 0: a(f".p2align {cfg.ALIGN}")
        a.label(f"L_ver{n}")
        win["n"] = n
        state["m0"] = None; state["sof"] = None
        final = (cfg.KT == 1 and n == cfg.NT and cfg.NT != N and not cfg.CTL)
        for uu in range(64):
            if n == 99:
                win["n"] = [w for (w, f) in ramp if f <= uu][-1]
            actual = target + uu + 64*(niter-1)
            if final and actual >= 512:
                if uu % 4 == 0:
                    need = unit_desc(U0 + uu//4)['need'] + 64*(niter-1)
                    assert need <= 511
                    a(f"s_waitcnt vmcnt({511 - need})")
            else:
                issue(target + uu)
            piece(U0 + uu//4, uu % 4)
        if vi < len(order) - 1:
            a("s_branch L_snext")
    a.label("L_snext")
    if cfg.LOOPSTAMP:
        a(f"s_cmp_eq_u32 {sr(S_CNT)}, {cfg.LOOPSTAMP}")
        a("s_cbranch_scc0 L_nols")
        a(f"s_memrealtime {sr(S_STAMP+2,2)}")
        a("s_waitcnt lgkmcnt(0)")
        a.label("L_nols")
    if cfg.CTL:
        a(f"v_readfirstlane_b32 {sr(S_POL)}, {vr(VPG+2)}")
    a(f"s_add_u32 {sr(S_CNT)}, {sr(S_CNT)}, 1")
    a(f"s_cmp_le_u32 {sr(S_CNT)}, {niter}")
    a("s_cbranch_scc1 L_sloop")
    stamp(a, cfg, 3)
    groups_allreduce(a, VL, VX, "v_add_f32")
    a(f"v_and_b32 {vr(VX)}, 15, {vr(V_LANE)}")
    a(f"v_lshrrev_b32 {vr(VX+1)}, 4, {vr(V_LANE)}")
    a(f"v_lshlrev_b32 {vr(VX)}, 5, {vr(VX)}")
    a(f"v_lshl_add_u32 {vr(VX)}, {vr(VX+1)}, 4, {vr(VX)}")
    a(f"s_lshl_b32 {sr(S_T0)}, {sr(S_WAVE)}, 9")
    a(f"s_add_u32 {sr(S_T0)}, {sr(S_T0)}, {OPART}")
    a(f"v_add_u32 {vr(VX)}, {sr(S_T0)}, {vr(VX)}")
    a(f"s_lshl_b32 {sr(S_T0)}, {sr(S_WAVE)}, 2")
    a(f"s_add_u32 {sr(S_T0)}, {sr(S_T0)}, {ML}")
    a(f"v_mov_b32 {vr(VX+2)}, {sr(S_T0)}")
    a("s_mov_b32 exec_hi, 0")
    a(f"ds_write_b128 {vr(VX)}, {vr(VO,4)}")
    a("s_mov_b64 exec, 1")
    a(f"ds_write_b32 {vr(VX+2)}, {vr(VM)}")
    a(f"ds_write_b32 {vr(VX+2)}, {vr(VL)} offset:16")
    a("s_mov_b64 exec, -1")
    a("s_waitcnt lgkmcnt(0)")
    a("s_barrier")
    if cfg.POLL:
        a(f"s_cmp_eq_u32 {sr(S_H)}, {sr(S_B) if cfg.REDB else cfg.RED_H}")
        a("s_cbranch_scc1 L_reducer")
    else:
        a("s_waitcnt vmcnt(0)")
    a("s_branch L_tail")

def gen_side(a, cfg):
    V_LANE=0
    VF=2
    VXR=12
    VT=17
    SELE=28; SELO=32
    VAO=36
    VACC=44
    VH0=64; VH1=68
    VXA=72
    VOF=90
    VW=96
    VWA=VACC
    WF = cfg.WFLAGS
    D = cfg.DEPTH
    S_ROT = S_CNT
    S_SO = S_OFFA

    a.label("L_side")
    a(f"s_sub_u32 {sr(S_SW)}, {sr(S_WAVE)}, 4")
    a("s_waitcnt lgkmcnt(0)")
    a(f"s_mul_i32 {sr(S_T0)}, {sr(S_B)}, 1152")
    srd(a, S_SRDK, S_X, S_T0, 1152)
    a(f"v_lshlrev_b32 {vr(VT)}, 2, {vr(V_LANE)}")
    for k in range(5):
        a(f"buffer_load_dword {vr(VXR+k)}, {vr(VT)}, {sr(S_SRDK,4)}, 0 offen offset:{256*k}")
    a(f"s_lshl_b32 {sr(S_T0)}, {sr(S_H)}, 8")
    a(f"s_sub_u32 {sr(S_T1)}, {576*8192}, {sr(S_T0)}")
    srd(a, S_SRDV, S_WQ, S_T0, sr(S_T1))
    if cfg.ROT:
        a(f"s_mul_i32 {sr(S_ROT)}, {sr(S_B)}, 18")
        a(f"s_lshr_b32 {sr(S_ROT)}, {sr(S_ROT)}, 3")
        a(f"s_lshl_b32 {sr(S_ROT)}, {sr(S_ROT)}, 1")
    else:
        a(f"s_mov_b32 {sr(S_ROT)}, 0")
    a(f"v_lshrrev_b32 {vr(VT+1)}, 4, {vr(V_LANE)}")
    a(f"v_and_b32 {vr(VT+2)}, 15, {vr(V_LANE)}")
    a(f"v_mul_u32_u24 {vr(VT+3)}, 36, {vr(VT+1)}")
    a(f"s_mul_i32 {sr(S_T2)}, {sr(S_SW)}, 144")
    a(f"v_add_u32 {vr(VT+3)}, {sr(S_T2)}, {vr(VT+3)}")
    a(f"v_lshlrev_b32 {vr(VOF)}, 13, {vr(VT+3)}")
    a(f"v_lshl_add_u32 {vr(VOF)}, {vr(VT+2)}, 4, {vr(VOF)}")
    def adv(step, n):
        a(f"s_add_u32 {sr(S_SO)}, {sr(S_SO)}, {step}")
        a(f"s_cmp_ge_u32 {sr(S_SO)}, {step*n}")
        a(f"s_cselect_b32 {sr(S_SO)}, 0, {sr(S_SO)}")
    a(f"s_lshl_b32 {sr(S_SO)}, {sr(S_ROT)}, 13")
    DQ = cfg.DQ
    def wq_load(t):
        a(f"buffer_load_dwordx4 {vr(VW+4*t,4)}, {vr(VOF)}, {sr(S_SRDV,4)}, {sr(S_SO)} offen {WF}")
        if t < 35: adv(8192, 36)
    for t in range(DQ): wq_load(t)
    a(f"s_mov_b32 {sr(S_T3)}, 9216")
    a(f"v_mul_lo_u32 {vr(VOF+1)}, {vr(VT+3)}, {sr(S_T3)}")
    a(f"v_lshl_add_u32 {vr(VOF+1)}, {vr(VT+2)}, 4, {vr(VOF+1)}")
    a(f"v_add_u32 {vr(VOF+2)}, 256, {vr(VOF+1)}")
    a(f"v_mov_b32 {vr(VT+4)}, 0x7f000000")
    a(f"v_cmp_gt_u32 vcc, 2, {vr(VT+2)}")
    a("s_nop 1")
    a(f"v_cndmask_b32 {vr(VOF+2)}, {vr(VT+4)}, {vr(VOF+2)}, vcc")
    make_selectors(a, V_LANE, SELE, SELO, VT+4, VT+5, VT+6, VT+7)
    a(f"s_mov_b32 {sr(S_MASKHI)}, 0xffff0000")
    a(f"s_mul_i32 {sr(S_T0)}, {sr(S_SW)}, 2560")
    a(f"s_add_u32 {sr(S_T0)}, {sr(S_T0)}, {XPRIV}")
    a(f"s_movk_i32 {sr(S_T1)}, 3641")
    for k in range(5):
        a(f"v_add_u32 {vr(VT+4)}, {64*k}, {vr(V_LANE)}")
        a(f"v_mul_u32_u24 {vr(VT+5)}, {sr(S_T1)}, {vr(VT+4)}")
        a(f"v_lshrrev_b32 {vr(VT+5)}, 16, {vr(VT+5)}")
        a(f"v_mul_u32_u24 {vr(VT+5)}, 72, {vr(VT+5)}")
        a(f"v_lshl_add_u32 {vr(VWA+k)}, {vr(VT+4)}, 2, {vr(VT+5)}")
        a(f"v_add_u32 {vr(VWA+k)}, {sr(S_T0)}, {vr(VWA+k)}")
    a(f"s_mul_i32 {sr(S_T1)}, {sr(S_SW)}, 576")
    a(f"s_add_u32 {sr(S_T0)}, {sr(S_T0)}, {sr(S_T1)}")
    a(f"s_lshl_b32 {sr(S_T1)}, {sr(S_ROT)}, 1")
    a(f"s_add_u32 {sr(S_T0)}, {sr(S_T0)}, {sr(S_T1)}")
    a(f"v_mul_u32_u24 {vr(VOF+4)}, 144, {vr(VT+1)}")
    a(f"v_add_u32 {vr(VOF+4)}, {sr(S_T0)}, {vr(VOF+4)}")
    a(f"s_mov_b32 {sr(S_EX)}, -1")
    a(f"s_mov_b32 {sr(S_EX+1)}, 0")
    a(f"v_mov_b32 {vr(VT+4)}, {FLAG+4}")
    a(f"v_mov_b32 {vr(VT+5)}, 0")
    a(f"ds_write_b32 {vr(VT+4)}, {vr(VT+5)}")
    a(f"ds_write_b32 {vr(VT+4)}, {vr(VT+5)} offset:4")
    a(f"v_mov_b32 {vr(VT+5)}, {cfg.N}")
    a(f"ds_write_b32 {vr(VT+4)}, {vr(VT+5)} offset:8")

    def layernorm():
        s = VT+8; t = VT+9; u = VT+10
        a(f"v_add_f32 {vr(s)}, {vr(VF)}, {vr(VF+1)}")
        for k in range(2,10): a(f"v_add_f32 {vr(s)}, {vr(s)}, {vr(VF+k)}")
        allreduce_sum(a, s, t)
        a(f"v_mul_f32 {vr(s)}, {hexf(1.0/576)}, {vr(s)}")
        a(f"v_sub_f32 {vr(t)}, {vr(VF)}, {vr(s)}")
        a(f"v_mul_f32 {vr(u)}, {vr(t)}, {vr(t)}")
        for k in range(1,10):
            a(f"v_sub_f32 {vr(t)}, {vr(VF+k)}, {vr(s)}")
            if k >= 8:
                a(f"v_cndmask_b32 {vr(t)}, 0, {vr(t)}, {sr(S_EX,2)}")
            a(f"v_fmac_f32 {vr(u)}, {vr(t)}, {vr(t)}")
        allreduce_sum(a, u, t)
        a(f"v_mul_f32 {vr(u)}, {hexf(1.0/576)}, {vr(u)}")
        a(f"v_cvt_pk_bf16_f32 {vr(t)}, {vr(s)}, {vr(u)}")
        a(f"v_lshlrev_b32 {vr(s)}, 16, {vr(t)}")
        a(f"v_and_b32 {vr(u)}, {sr(S_MASKHI)}, {vr(t)}")
        a(f"v_add_f32 {vr(u)}, {hexf(1e-5)}, {vr(u)}")
        a(f"v_cvt_pk_bf16_f32 {vr(u)}, {vr(u)}, {vr(u)}")
        a(f"v_and_b32 {vr(u)}, {sr(S_MASKHI)}, {vr(u)}")
        a(f"v_sqrt_f32 {vr(u)}, {vr(u)}")
        a("s_nop 0")
        a(f"v_cvt_pk_bf16_f32 {vr(u)}, {vr(u)}, {vr(u)}")
        a(f"v_and_b32 {vr(u)}, {sr(S_MASKHI)}, {vr(u)}")
        a(f"v_rcp_f32 {vr(u)}, {vr(u)}")
        for k in range(5):
            A0 = VF+2*k; A1 = A0+1
            a(f"v_sub_f32 {vr(A0)}, {vr(A0)}, {vr(s)}")
            a(f"v_sub_f32 {vr(A1)}, {vr(A1)}, {vr(s)}")
            a(f"v_cvt_pk_bf16_f32 {vr(t)}, {vr(A0)}, {vr(A1)}")
            a(f"v_lshlrev_b32 {vr(A0)}, 16, {vr(t)}")
            a(f"v_and_b32 {vr(A1)}, {sr(S_MASKHI)}, {vr(t)}")
            a(f"v_mul_f32 {vr(A0)}, {vr(A0)}, {vr(u)}")
            a(f"v_mul_f32 {vr(A1)}, {vr(A1)}, {vr(u)}")
            a(f"v_cvt_pk_bf16_f32 {vr(VXR+k)}, {vr(A0)}, {vr(A1)}")
            a(f"v_lshlrev_b32 {vr(A0)}, 16, {vr(VXR+k)}")
            a(f"v_and_b32 {vr(A1)}, {sr(S_MASKHI)}, {vr(VXR+k)}")
            if k == 4: a("s_mov_b32 exec_hi, 0")
            a(f"ds_write_b32 {vr(VWA+k)}, {vr(VXR+k)}")
            a(f"ds_write_b32 {vr(VWA+k)}, {vr(VXR+k)} offset:72")
            if k == 4: a("s_mov_b64 exec, -1")
        a(f"v_cndmask_b32 {vr(VF+8)}, 0, {vr(VF+8)}, {sr(S_EX,2)}")
        a(f"v_cndmask_b32 {vr(VF+9)}, 0, {vr(VF+9)}, {sr(S_EX,2)}")
        a("s_waitcnt lgkmcnt(0)")
        for k in range(9):
            a(f"ds_read2_b32 {vr(VXA+2*k,2)}, {vr(VOF+4)} offset0:{2*k} offset1:{2*k+1}")

    a(f"s_waitcnt vmcnt({DQ})")
    for k in range(5):
        a(f"v_lshlrev_b32 {vr(VF+2*k)}, 16, {vr(VXR+k)}")
        a(f"v_and_b32 {vr(VF+2*k+1)}, {sr(S_MASKHI)}, {vr(VXR+k)}")
    layernorm()
    a("s_waitcnt lgkmcnt(0)")
    for t in range(36):
        ao = VAO + 4*(t&1)
        diag(a, ao, VXA + (t>>1), t&1, SELE, SELO)
        a(f"s_waitcnt vmcnt({min(DQ, 36-t)-1})")
        a("s_nop 0")
        mfma(a, VH0, ao, VW+4*t, None if t == 0 else VH0)
        if t + DQ < 36: wq_load(t + DQ)
    a(f"v_and_b32 {vr(VT)}, 15, {vr(V_LANE)}")
    a(f"v_lshrrev_b32 {vr(VT+1)}, 4, {vr(V_LANE)}")
    a(f"v_lshlrev_b32 {vr(VT)}, 5, {vr(VT)}")
    a(f"v_lshl_add_u32 {vr(VOF+5)}, {vr(VT+1)}, 4, {vr(VT)}")
    a(f"s_lshl_b32 {sr(S_T0)}, {sr(S_SW)}, 9")
    a(f"s_add_u32 {sr(S_T0)}, {sr(S_T0)}, {QPART}")
    a(f"v_add_u32 {vr(VT)}, {sr(S_T0)}, {vr(VOF+5)}")
    a("s_nop 4")
    a("s_mov_b32 exec_hi, 0")
    a(f"ds_write_b128 {vr(VT)}, {vr(VH0,4)}")
    a("s_mov_b64 exec, -1")
    a("s_waitcnt lgkmcnt(0)")
    stamp(a, cfg, 1)
    a("s_barrier")
    if cfg.NOSIDE:
        a("s_barrier")
        a("s_branch L_tail")

    if cfg.POLL:
        a(f"s_cmp_lg_u32 {sr(S_SW)}, 0")
        a("s_cbranch_scc1 L_noreset")
        a(f"s_mul_i32 {sr(S_T0)}, {sr(S_WG)}, 2304")
        srd(a, S_SRD2, S_WS, S_T0, 2304)
        a(f"v_lshlrev_b32 {vr(VT)}, 4, {vr(V_LANE)}")
        if cfg.REDB:
            a(f"s_cmp_eq_u32 {sr(S_H)}, {sr(S_B)}")
            a(f"s_cselect_b32 {sr(S_T1)}, 0, -1")
            for e in range(4): a(f"v_mov_b32 {vr(VW+e)}, {sr(S_T1)}")
        else:
            for e in range(4): a(f"v_mov_b32 {vr(VW+e)}, -1")
        for k in range(3):
            a(f"buffer_store_dwordx4 {vr(VW,4)}, {vr(VT)}, {sr(S_SRD2,4)}, 0 offen offset:{1024*k} sc1")
        a("s_waitcnt vmcnt(0)")
        if cfg.STARTSIG == 'atomic':
            a(f"s_lshl_b32 {sr(S_T0)}, {sr(S_B)}, 5")
            a(f"v_mov_b32 {vr(VT)}, {sr(S_T0)}")
            a(f"v_mov_b32 {vr(VT+1)}, 1")
            a("s_mov_b64 exec, 1")
            a(f"global_atomic_add {vr(VT)}, {vr(VT+1)}, {sr(S_DBG,2)} offset:4")
            a("s_mov_b64 exec, -1")
            a("s_waitcnt vmcnt(0)")
        elif cfg.STARTSIG == 'byte':
            a(f"v_mov_b32 {vr(VT)}, {sr(S_WG)}")
            a(f"v_mov_b32 {vr(VT+1)}, 1")
            a("s_mov_b64 exec, 1")
            a(f"global_store_byte {vr(VT)}, {vr(VT+1)}, {sr(S_DBG,2)} sc1")
            a("s_mov_b64 exec, -1")
            a("s_waitcnt vmcnt(0)")
        a.label("L_noreset")

    def paced(units, compute, D=D):
        flat = [(u, f) for u, fs in enumerate(units) for f in fs]
        last = {}
        for idx, (u, f) in enumerate(flat): last[u] = idx
        done = 0
        nu = len(units)
        for idx, (u, f) in enumerate(flat):
            if idx >= D: a(f"s_waitcnt vmcnt({D-1})")
            f()
            landed = idx - D if idx >= D else -1
            while done < nu and last[done] <= landed:
                compute(done); done += 1
        n = len(flat)
        while done < nu:
            a(f"s_waitcnt vmcnt({n-1-last[done]})")
            compute(done); done += 1

    if cfg.MMAP:
        a(f"s_and_b32 {sr(S_M)}, {sr(S_H)}, 7")
        a(f"s_lshl_b32 {sr(S_M)}, {sr(S_M)}, 2")
        a(f"s_lshr_b32 {sr(S_T0)}, {sr(S_H)}, 3")
        a(f"s_add_u32 {sr(S_M)}, {sr(S_M)}, {sr(S_T0)}")
    else:
        a(f"s_mov_b32 {sr(S_M)}, {sr(S_H)}")
    a(f"s_mul_i32 {sr(S_T0)}, {sr(S_M)}, 288")
    a(f"s_sub_u32 {sr(S_T1)}, {576*9216}, {sr(S_T0)}")
    srd(a, S_SRDV, S_W1, S_T0, sr(S_T1))
    layernorm()
    a(f"s_mul_i32 {sr(S_SO)}, {sr(S_ROT)}, 9216")
    a("s_waitcnt lgkmcnt(0)")
    NB = D + 2
    if not cfg.XTRA:
        def w1_unit(t):
            b = VW + 8*(t % NB)
            def f0(): a(f"buffer_load_dwordx4 {vr(b,4)}, {vr(VOF+1)}, {sr(S_SRDV,4)}, {sr(S_SO)} offen {WF}")
            def f1():
                a(f"buffer_load_dwordx4 {vr(b+4,4)}, {vr(VOF+2)}, {sr(S_SRDV,4)}, {sr(S_SO)} offen {WF}")
                if t < 35: adv(9216, 36)
            return [f0, f1]
        def w1_comp(t):
            b = VW + 8*(t % NB)
            ao = VAO + 4*(t&1)
            diag(a, ao, VXA + (t>>1), t&1, SELE, SELO)
            a("s_nop 1")
            mfma(a, VH0, ao, b, None if t == 0 else VH0)
            mfma(a, VH1, ao, b+4, None if t == 0 else VH1)
        paced([w1_unit(t) for t in range(36)], w1_comp)
    else:
        XW = 160; XY = 180; XA = 185; XT = 193; XE = 201; XE4 = 202
        a(f"v_lshrrev_b32 {vr(XT)}, 1, {vr(V_LANE)}")
        a(f"s_mul_i32 {sr(S_T2)}, {sr(S_SW)}, 144")
        a(f"v_add_u32 {vr(XT+1)}, {sr(S_T2)}, {vr(XT)}")
        a(f"s_movk_i32 {sr(S_T3)}, 9216")
        a(f"v_mul_lo_u32 {vr(XE)}, {vr(XT+1)}, {sr(S_T3)}")
        a(f"v_and_b32 {vr(XT+1)}, 1, {vr(V_LANE)}")
        a(f"v_lshl_add_u32 {vr(XE)}, {vr(XT+1)}, 4, {vr(XE)}")
        a(f"v_add_u32 {vr(XE)}, 256, {vr(XE)}")
        a(f"v_mov_b32 {vr(XT+1)}, 0x7f000000")
        a(f"v_cndmask_b32 {vr(XE4)}, {vr(XT+1)}, {vr(XE)}, {sr(S_EX,2)}")
        a(f"s_mul_i32 {sr(S_T0)}, {sr(S_SW)}, {2560+576}")
        a(f"s_add_u32 {sr(S_T0)}, {sr(S_T0)}, {XPRIV}")
        a(f"s_movk_i32 {sr(S_T1)}, 3641")
        a(f"v_and_b32 {vr(XT+2)}, 1, {vr(XT)}")
        a(f"v_lshlrev_b32 {vr(XT+2)}, 1, {vr(XT+2)}")
        a(f"v_add_u32 {vr(XT+2)}, {sr(S_T0)}, {vr(XT+2)}")
        a(f"v_lshrrev_b32 {vr(XT+3)}, 2, {vr(V_LANE)}")
        for m in range(5):
            a(f"v_add_u32 {vr(XT+4)}, {16*m}, {vr(XT+3)}")
            a(f"v_mul_u32_u24 {vr(XT+5)}, {sr(S_T1)}, {vr(XT+4)}")
            a(f"v_lshrrev_b32 {vr(XT+5)}, 16, {vr(XT+5)}")
            a(f"v_mul_u32_u24 {vr(XT+5)}, 72, {vr(XT+5)}")
            a(f"v_lshl_add_u32 {vr(XT+5)}, {vr(XT+4)}, 2, {vr(XT+5)}")
            a(f"v_add_u32 {vr(XT+5)}, {vr(XT+5)}, {vr(XT+2)}")
            a(f"ds_read_u16 {vr(XY+m)}, {vr(XT+5)}")
        a("s_waitcnt lgkmcnt(0)")
        for m in range(5):
            a(f"v_lshlrev_b32 {vr(XY+m)}, 16, {vr(XY+m)}")
        a(f"v_cndmask_b32 {vr(XY+4)}, 0, {vr(XY+4)}, {sr(S_EX,2)}")
        def x_unit(m):
            def f():
                a(f"s_mov_b32 {sr(S_T3)}, {32*m*9216}")
                a(f"buffer_load_dwordx4 {vr(XW+4*m,4)}, {vr(XE4 if m == 4 else XE)}, {sr(S_SRDV,4)}, {sr(S_T3)} offen {WF}")
            return [f]
        def x_comp(m):
            for k in range(4):
                a(f"v_lshlrev_b32 {vr(XT)}, 16, {vr(XW+4*m+k)}")
                a(f"v_and_b32 {vr(XT+1)}, {sr(S_MASKHI)}, {vr(XW+4*m+k)}")
                if m == 0:
                    a(f"v_mul_f32 {vr(XA+2*k)}, {vr(XY+m)}, {vr(XT)}")
                    a(f"v_mul_f32 {vr(XA+2*k+1)}, {vr(XY+m)}, {vr(XT+1)}")
                else:
                    a(f"v_fmac_f32 {vr(XA+2*k)}, {vr(XY+m)}, {vr(XT)}")
                    a(f"v_fmac_f32 {vr(XA+2*k+1)}, {vr(XY+m)}, {vr(XT+1)}")
        def w1_unit(t):
            b = VW + 4*(t % NB)
            def f0():
                a(f"buffer_load_dwordx4 {vr(b,4)}, {vr(VOF+1)}, {sr(S_SRDV,4)}, {sr(S_SO)} offen {WF}")
                if t < 35: adv(9216, 36)
            return [f0]
        def w1_comp(t):
            b = VW + 4*(t % NB)
            ao = VAO + 4*(t&1)
            diag(a, ao, VXA + (t>>1), t&1, SELE, SELO)
            a("s_nop 1")
            mfma(a, VH0, ao, b, None if t == 0 else VH0)
        paced([x_unit(m) for m in range(5)] + [w1_unit(t) for t in range(36)],
              lambda u: x_comp(u) if u < 5 else w1_comp(u-5))
        for r_ in (2, 4, 8):
            a("s_nop 1")
            for e in range(8):
                a(f"v_add_f32_dpp {vr(XA+e)}, {vr(XA+e)}, {vr(XA+e)} row_ror:{r_} row_mask:0xf bank_mask:0xf")
        for op in ("v_permlane16_swap_b32", "v_permlane32_swap_b32"):
            for e in range(8):
                a(f"v_mov_b32 {vr(XW+e)}, {vr(XA+e)}")
            a("s_nop 1")
            for e in range(8):
                a(f"{op} {vr(XA+e)}, {vr(XW+e)}")
            a("s_nop 1")
            for e in range(8):
                a(f"v_add_f32 {vr(XA+e)}, {vr(XA+e)}, {vr(XW+e)}")
        for e in range(8):
            a(f"v_mov_b32 {vr(XW+e)}, {vr(XA+e)}")
    a(f"s_mul_i32 {sr(S_T0)}, {sr(S_M)}, 288")
    srd(a, S_SRDK, S_B1, S_T0, 288)
    a(f"v_lshrrev_b32 {vr(VT+1)}, 4, {vr(V_LANE)}")
    a(f"v_mul_u32_u24 {vr(VT+2)}, 9, {vr(VT+1)}")
    a(f"s_mul_i32 {sr(S_T2)}, {sr(S_SW)}, 36")
    a(f"v_add_u32 {vr(VT+2)}, {sr(S_T2)}, {vr(VT+2)}")
    a(f"v_lshlrev_b32 {vr(VT+3)}, 1, {vr(VT+2)}")
    for t in range(9):
        a(f"buffer_load_ushort {vr(VF+t)}, {vr(VT+3)}, {sr(S_SRDK,4)}, 0 offen offset:{2*t}")
    a(f"s_lshl_b32 {sr(S_T0)}, {sr(S_SW)}, 10")
    a(f"s_add_u32 {sr(S_T0)}, {sr(S_T0)}, {HPART}")
    a(f"v_add_u32 {vr(VT)}, {sr(S_T0)}, {vr(VOF+5)}")
    a("s_mov_b32 exec_hi, 0")
    a(f"ds_write_b128 {vr(VT)}, {vr(VH0,4)}")
    if not cfg.XTRA:
        a(f"ds_write_b128 {vr(VT)}, {vr(VH1,4)} offset:512")
    else:
        a(f"v_lshlrev_b32 {vr(VT+4)}, 5, {vr(V_LANE)}")
        a(f"v_add_u32 {vr(VT+4)}, {sr(S_T0)}, {vr(VT+4)}")
        a("s_mov_b64 exec, 3")
        a(f"ds_write_b128 {vr(VT+4)}, {vr(160,4)} offset:512")
        a(f"ds_write_b128 {vr(VT+4)}, {vr(164,4)} offset:528")
    a("s_mov_b64 exec, -1")
    a(f"s_mul_i32 {sr(S_T0)}, {sr(S_M)}, {144*1152}")
    srd(a, S_SRDV, S_W2, S_T0, 144*1152)
    a(f"v_and_b32 {vr(VT+4)}, 15, {vr(V_LANE)}")
    a(f"s_movk_i32 {sr(S_T3)}, 1152")
    a(f"v_mul_lo_u32 {vr(VOF)}, {vr(VT+2)}, {sr(S_T3)}")
    a(f"v_lshl_add_u32 {vr(VOF)}, {vr(VT+4)}, 4, {vr(VOF)}")
    a(f"v_add_u32 {vr(VOF+1)}, 1024, {vr(VOF)}")
    a(f"v_mov_b32 {vr(VT+5)}, 0x7f000000")
    a(f"v_cmp_gt_u32 vcc, 8, {vr(VT+4)}")
    a("s_nop 1")
    a(f"v_cndmask_b32 {vr(VOF+1)}, {vr(VT+5)}, {vr(VOF+1)}, vcc")
    a(f"v_lshlrev_b32 {vr(VOF+2)}, 2, {vr(VT+2)}")
    a(f"v_add_u32 {vr(VOF+2)}, {HPART}, {vr(VOF+2)}")
    a(f"v_mov_b32 {vr(VT)}, {FLAG+4}")
    a(f"v_mov_b32 {vr(VT+1)}, 1")
    a("s_waitcnt lgkmcnt(0)")
    a("s_mov_b64 exec, 1")
    a(f"ds_add_u32 {vr(VT)}, {vr(VT+1)}")
    a("s_mov_b64 exec, -1")
    a.label("L_hsync")
    a(f"ds_read_b32 {vr(VT+1)}, {vr(VT)}")
    a("s_waitcnt lgkmcnt(0)")
    a(f"v_readfirstlane_b32 {sr(S_T0)}, {vr(VT+1)}")
    a("s_nop 3")
    a(f"s_cmp_ge_u32 {sr(S_T0)}, 4")
    a("s_cbranch_scc1 L_hsync_done")
    a("s_sleep 4")
    a("s_branch L_hsync")
    a.label("L_hsync_done")
    HS = VXA
    for t in range(9):
        a(f"ds_read_b32 {vr(HS+t)}, {vr(VOF+2)} offset:{4*t}")
        a(f"ds_read_b32 {vr(VT)}, {vr(VOF+2)} offset:{1024+4*t}")
        a(f"ds_read_b32 {vr(VT+1)}, {vr(VOF+2)} offset:{2048+4*t}")
        a(f"ds_read_b32 {vr(VT+2)}, {vr(VOF+2)} offset:{3072+4*t}")
        a("s_waitcnt lgkmcnt(0)")
        a(f"v_add_f32 {vr(HS+t)}, {vr(HS+t)}, {vr(VT)}")
        a(f"v_add_f32 {vr(VT+1)}, {vr(VT+1)}, {vr(VT+2)}")
        a(f"v_add_f32 {vr(HS+t)}, {vr(HS+t)}, {vr(VT+1)}")
    a("s_waitcnt vmcnt(0)")
    K1 = -2.0*math.log2(math.e)*math.sqrt(2.0/math.pi)
    a(f"s_mov_b32 {sr(S_T0)}, {hexf(0.044715)}")
    a(f"s_mov_b32 {sr(S_T1)}, {hexf(K1)}")
    for t in range(9):
        x = HS+t
        a(f"v_cvt_pk_bf16_f32 {vr(x)}, {vr(x)}, {vr(x)}")
        a(f"v_and_b32 {vr(x)}, {sr(S_MASKHI)}, {vr(x)}")
        a(f"v_lshlrev_b32 {vr(VF+t)}, 16, {vr(VF+t)}")
        a(f"v_add_f32 {vr(x)}, {vr(x)}, {vr(VF+t)}")
        a(f"v_cvt_pk_bf16_f32 {vr(x)}, {vr(x)}, {vr(x)}")
        a(f"v_and_b32 {vr(x)}, {sr(S_MASKHI)}, {vr(x)}")
        a(f"v_mul_f32 {vr(VT)}, {vr(x)}, {vr(x)}")
        a(f"v_mul_f32 {vr(VT)}, {vr(VT)}, {vr(x)}")
        a(f"v_fma_f32 {vr(VT)}, {vr(VT)}, {sr(S_T0)}, {vr(x)}")
        a(f"v_mul_f32 {vr(VT)}, {sr(S_T1)}, {vr(VT)}")
        a(f"v_exp_f32 {vr(VT)}, {vr(VT)}")
        a("s_nop 0")
        a(f"v_add_f32 {vr(VT)}, 1.0, {vr(VT)}")
        a(f"v_rcp_f32 {vr(VT)}, {vr(VT)}")
        a("s_nop 0")
        a(f"v_mul_f32 {vr(x)}, {vr(x)}, {vr(VT)}")
    HP = VF
    for k in range(4):
        a(f"v_cvt_pk_bf16_f32 {vr(HP+k)}, {vr(HS+2*k)}, {vr(HS+2*k+1)}")
    a(f"v_cvt_pk_bf16_f32 {vr(HP+4)}, {vr(HS+8)}, {vr(HS+8)}")

    def out_unit(t, base):
        fs = []
        for cg in range(4):
            def f(cg=cg):
                if cg == 0:
                    if cfg.ROT2 and t < 8:
                        a(f"s_and_b32 {sr(S_T3)}, {sr(S_B)}, {cfg.ROT2}")
                        a(f"s_xor_b32 {sr(S_T3)}, {sr(S_T3)}, {t}")
                        a(f"s_mul_i32 {sr(S_T3)}, {sr(S_T3)}, 1152")
                    else:
                        a(f"s_movk_i32 {sr(S_T3)}, {t*1152}")
                a(f"buffer_load_dwordx4 {vr(base+4*cg,4)}, {vr(VOF)}, {sr(S_SRDV,4)}, {sr(S_T3)} offen offset:{256*cg} {WF}")
            fs.append(f)
        fs.append(lambda: a(f"buffer_load_dwordx4 {vr(base+16,4)}, {vr(VOF+1)}, {sr(S_SRDV,4)}, {sr(S_T3)} offen {WF}"))
        return fs
    def out_comp(t, base, src, first):
        ao = VAO + 4*(t&1)
        diag(a, ao, src + (t>>1), t&1, SELE, SELO)
        a("s_nop 1")
        for cg in range(5):
            mfma(a, VACC+4*cg, ao, base+4*cg, None if first else VACC+4*cg)
    NB2 = 3
    paced([out_unit(t, VW + 20*(t % NB2)) for t in range(9)],
          lambda t: out_comp(t, VW + 20*(t % NB2), HP, t == 0), D=cfg.D2 or D)
    a(f"s_mul_i32 {sr(S_T0)}, {sr(S_H)}, {128*1152}")
    srd(a, S_SRDV, S_WO, S_T0, 128*1152)
    a(f"v_lshrrev_b32 {vr(VT+1)}, 4, {vr(V_LANE)}")
    a(f"v_and_b32 {vr(VT+4)}, 15, {vr(V_LANE)}")
    a(f"v_lshlrev_b32 {vr(VT+2)}, 3, {vr(VT+1)}")
    a(f"s_lshl_b32 {sr(S_T2)}, {sr(S_SW)}, 5")
    a(f"v_add_u32 {vr(VT+2)}, {sr(S_T2)}, {vr(VT+2)}")
    a(f"s_movk_i32 {sr(S_T3)}, 1152")
    a(f"v_mul_lo_u32 {vr(VOF)}, {vr(VT+2)}, {sr(S_T3)}")
    a(f"v_lshl_add_u32 {vr(VOF)}, {vr(VT+4)}, 4, {vr(VOF)}")
    a(f"v_add_u32 {vr(VOF+1)}, 1024, {vr(VOF)}")
    a(f"v_mov_b32 {vr(VT+5)}, 0x7f000000")
    a(f"v_cmp_gt_u32 vcc, 8, {vr(VT+4)}")
    a("s_nop 1")
    a(f"v_cndmask_b32 {vr(VOF+1)}, {vr(VT+5)}, {vr(VOF+1)}, vcc")
    paced([out_unit(t, VW + 20*t) for t in range(8)], lambda t: None, D=cfg.D3 or D)
    a(f"v_lshlrev_b32 {vr(VOF+2)}, 2, {vr(VT+2)}")
    a(f"v_add_u32 {vr(VOF+2)}, {OPART}, {vr(VOF+2)}")
    a(f"s_mul_i32 {sr(S_T0)}, {sr(S_SW)}, 2560")
    a(f"s_add_u32 {sr(S_T0)}, {sr(S_T0)}, {OUTP}")
    a(f"v_add_u32 {vr(VOF+3)}, {sr(S_T0)}, {vr(VOF+5)}")
    a(f"v_mov_b32 {vr(VOF+4)}, {ML}")
    a(f"s_mov_b32 {sr(S_C)}, {hexf(math.log2(math.e) if (cfg.RSCORE and cfg.SR) else C_SCALE)}")
    a("s_waitcnt vmcnt(0)")
    if cfg.POLL:
        a(f"s_cmp_lg_u32 {sr(S_H)}, {sr(S_B) if cfg.REDB else cfg.RED_H}")
        a("s_cbranch_scc1 L_started")
        a(f"s_cmp_lg_u32 {sr(S_SW)}, 0")
        a("s_cbranch_scc1 L_started")
        if cfg.STARTSIG == 'atomic':
            a(f"s_lshl_b32 {sr(S_T0)}, {sr(S_B)}, 5")
            a(f"v_mov_b32 {vr(VT)}, {sr(S_T0)}")
            a(f"s_mov_b32 {sr(S_T1)}, 200000")
            a.label("L_startchk")
            a(f"s_sub_u32 {sr(S_T1)}, {sr(S_T1)}, 1")
            a("s_cbranch_scc1 L_started")
            a(f"global_load_dword {vr(VT+1)}, {vr(VT)}, {sr(S_DBG,2)} offset:4 sc1")
            a("s_waitcnt vmcnt(0)")
            a(f"v_readfirstlane_b32 {sr(S_T0)}, {vr(VT+1)}")
            a("s_nop 3")
            a(f"s_cmp_ge_u32 {sr(S_T0)}, 32")
            a("s_cbranch_scc1 L_started")
            a("s_sleep 8")
            a("s_branch L_startchk")
        elif cfg.STARTSIG == 'byte':
            a(f"s_lshl_b32 {sr(S_T0)}, {sr(S_B)}, 5")
            a(f"v_and_b32 {vr(VT)}, 7, {vr(V_LANE)}")
            a(f"v_lshlrev_b32 {vr(VT)}, 2, {vr(VT)}")
            a(f"v_add_u32 {vr(VT)}, {sr(S_T0)}, {vr(VT)}")
            a(f"s_mov_b32 {sr(S_T1)}, 200000")
            a(f"s_mov_b32 {sr(S_T2)}, 0x01010101")
            a.label("L_startchk")
            a(f"s_sub_u32 {sr(S_T1)}, {sr(S_T1)}, 1")
            a("s_cbranch_scc1 L_started")
            a(f"global_load_dword {vr(VT+1)}, {vr(VT)}, {sr(S_DBG,2)} sc1")
            a("s_waitcnt vmcnt(0)")
            a(f"v_cmp_ne_u32 vcc, {sr(S_T2)}, {vr(VT+1)}")
            a("s_cbranch_vccz L_started")
            a("s_sleep 8")
            a("s_branch L_startchk")
        a.label("L_started")
    if cfg.CTL:
        T1, T2, nA, nB, nC = [int(x) for x in cfg.CTL.split(',')]
        niter = (128 - (4*cfg.PROUNDS + 8*cfg.K0))//8
        a(f"s_cmp_lg_u32 {sr(S_SW)}, 0")
        a("s_cbranch_scc1 L_ctl_done")
        a(f"v_mov_b32 {vr(VT)}, {FLAG+8}")
        a(f"ds_read_b32 {vr(VT+1)}, {vr(VT)}")
        a("s_waitcnt lgkmcnt(0)")
        a(f"v_readfirstlane_b32 {sr(S_T3)}, {vr(VT+1)}")
        a.label("L_ctl")
        a(f"s_cmp_ge_u32 {sr(S_T3)}, {niter - cfg.CTLSTOP}")
        a("s_cbranch_scc1 L_ctl_done")
        a("s_sleep 2")
        a(f"ds_read_b32 {vr(VT+1)}, {vr(VT)}")
        a("s_waitcnt lgkmcnt(0)")
        a(f"v_readfirstlane_b32 {sr(S_T2)}, {vr(VT+1)}")
        a("s_nop 3")
        a(f"s_cmp_eq_u32 {sr(S_T2)}, {sr(S_T3)}")
        a("s_cbranch_scc1 L_ctl")
        a(f"s_mov_b32 {sr(S_T3)}, {sr(S_T2)}")
        a(f"s_and_b32 {sr(S_T0)}, {sr(S_T3)}, 7")
        a(f"s_lshl_b32 {sr(S_T0)}, {sr(S_T0)}, 5")
        a(f"s_lshr_b32 {sr(S_T1)}, {sr(S_T3)}, 3")
        a(f"s_lshl_b32 {sr(S_T1)}, {sr(S_T1)}, 2")
        a(f"s_add_u32 {sr(S_T0)}, {sr(S_T0)}, {sr(S_T1)}")
        a(f"v_mov_b32 {vr(VT+2)}, {sr(S_T0)}")
        a(f"v_mov_b32 {vr(VT+3)}, 1")
        a("s_mov_b64 exec, 1")
        a(f"global_atomic_add {vr(VT+4)}, {vr(VT+2)}, {vr(VT+3)}, {sr(S_DBG,2)} offset:8 sc0")
        a("s_mov_b64 exec, -1")
        a("s_waitcnt vmcnt(0)")
        a(f"v_readfirstlane_b32 {sr(S_T0)}, {vr(VT+4)}")
        a("s_nop 3")
        a(f"s_mov_b32 {sr(S_T1)}, {nC}")
        a(f"s_cmp_lt_u32 {sr(S_T0)}, {T2}")
        a(f"s_cselect_b32 {sr(S_T1)}, {nB}, {sr(S_T1)}")
        a(f"s_cmp_lt_u32 {sr(S_T0)}, {T1}")
        a(f"s_cselect_b32 {sr(S_T1)}, {nA}, {sr(S_T1)}")
        a(f"v_mov_b32 {vr(VT+2)}, {sr(S_T1)}")
        a(f"ds_write_b32 {vr(VT)}, {vr(VT+2)} offset:4")
        a("s_branch L_ctl")
        a.label("L_ctl_done")
        a("s_waitcnt lgkmcnt(0)")
    stamp(a, cfg, 2)
    a("s_barrier")
    stamp(a, cfg, 3)
    MM = VXA; LL = VXA+4
    a(f"ds_read_b128 {vr(MM,4)}, {vr(VOF+4)}")
    a(f"ds_read_b128 {vr(LL,4)}, {vr(VOF+4)} offset:16")
    OR = [2, 10, 18, 80]
    for w in range(4):
        a(f"ds_read_b128 {vr(OR[w],4)}, {vr(VOF+2)} offset:{w*512}")
        a(f"ds_read_b128 {vr(OR[w]+4,4)}, {vr(VOF+2)} offset:{w*512+16}")
    a("s_waitcnt lgkmcnt(8)")
    mx = 26; tt = 27
    a(f"v_max3_f32 {vr(mx)}, {vr(MM)}, {vr(MM+1)}, {vr(MM+2)}")
    a(f"v_max_f32 {vr(mx)}, {vr(mx)}, {vr(MM+3)}")
    for w in range(4):
        a(f"v_sub_f32 {vr(MM+w)}, {vr(MM+w)}, {vr(mx)}")
    for w in range(4):
        a(f"v_mul_f32 {vr(MM+w)}, {sr(S_C)}, {vr(MM+w)}")
    for w in range(4):
        a(f"v_exp_f32 {vr(MM+w)}, {vr(MM+w)}")
    a("s_nop 0")
    a(f"v_mul_f32 {vr(tt)}, {vr(MM)}, {vr(LL)}")
    for w in range(1,4):
        a(f"v_fmac_f32 {vr(tt)}, {vr(MM+w)}, {vr(LL+w)}")
    a(f"v_rcp_f32 {vr(tt)}, {vr(tt)}")
    a("s_nop 0")
    for w in range(4):
        a(f"v_mul_f32 {vr(MM+w)}, {vr(MM+w)}, {vr(tt)}")
    a("s_waitcnt lgkmcnt(0)")
    for e in range(8):
        a(f"v_mul_f32 {vr(OR[0]+e)}, {vr(OR[0]+e)}, {vr(MM)}")
    for w in range(1,4):
        for e in range(8):
            a(f"v_fmac_f32 {vr(OR[0]+e)}, {vr(OR[w]+e)}, {vr(MM+w)}")
    OPK = 10
    for k in range(4):
        a(f"v_cvt_pk_bf16_f32 {vr(OPK+k)}, {vr(OR[0]+2*k)}, {vr(OR[0]+2*k+1)}")
    diag(a, VAO, OPK, 0, SELE, SELO)
    diag(a, VAO+4, OPK, 1, SELE, SELO)
    for t in range(8):
        ao = VAO + 4*(t&1)
        for cg in range(5):
            mfma(a, VACC+4*cg, ao, VW + 20*t + 4*cg, VACC+4*cg)
        if t + 2 < 8:
            diag(a, ao, OPK + ((t+2)>>1), (t+2)&1, SELE, SELO)
    a("s_mov_b32 exec_hi, 0")
    a("s_nop 2")
    for cg in range(5):
        a(f"ds_write_b128 {vr(VOF+3)}, {vr(VACC+4*cg,4)} offset:{512*cg}")
    a("s_mov_b64 exec, -1")
    a("s_waitcnt lgkmcnt(0)")


PR1=96; PR2=160; POWN=168; PXB=184; PVO=188; PVO0=189; PV2A=190; PV2B=191; PLA=192; POUT=193; PT=194
def set_poll_regs(base):
    global PR1, PR2, POWN, PXB, PVO, PVO0, PV2A, PV2B, PLA, POUT, PT
    PR1=base; PR2=base+64; POWN=base+72; PXB=base+88; PVO=base+92; PVO0=base+93; PV2A=base+94; PV2B=base+95; PLA=base+96; POUT=base+97; PT=base+98

def poll_setup(a, cfg):
    assert cfg.REDB or cfg.RED_H == 0
    L = 0
    a(f"s_mul_i32 {sr(S_T0)}, {sr(S_B)}, {32*2304}")
    srd(a, S_SRD2, S_WS, S_T0, 32*2304)
    a(f"s_mul_i32 {sr(S_T2)}, {sr(S_WAVE)}, 36")
    a(f"v_and_b32 {vr(PT)}, 31, {vr(L)}")
    a(f"v_add_u32 {vr(PT)}, {sr(S_T2)}, {vr(PT)}")
    a(f"v_lshlrev_b32 {vr(PVO)}, 4, {vr(PT)}")
    a(f"v_lshrrev_b32 {vr(PT+1)}, 5, {vr(L)}")
    a(f"s_mov_b32 {sr(S_T3)}, {16*2304}")
    a(f"v_mul_lo_u32 {vr(PT+1)}, {vr(PT+1)}, {sr(S_T3)}")
    a(f"v_add_u32 {vr(PVO)}, {vr(PVO)}, {vr(PT+1)}")
    a(f"v_mov_b32 {vr(PT+2)}, 0x7f000000")
    a(f"v_cmp_gt_u32 vcc, 32, {vr(L)}")
    a("s_nop 1")
    if cfg.REDB: a(f"v_mov_b32 {vr(PVO0)}, {vr(PVO)}")
    else: a(f"v_cndmask_b32 {vr(PVO0)}, {vr(PVO)}, {vr(PT+2)}, vcc")
    a(f"v_and_b32 {vr(PT)}, 3, {vr(L)}")
    a(f"v_add_u32 {vr(PT)}, {sr(S_T2)}, {vr(PT)}")
    a(f"v_add_u32 {vr(PT)}, 32, {vr(PT)}")
    a(f"v_lshlrev_b32 {vr(PV2A)}, 4, {vr(PT)}")
    a(f"v_lshrrev_b32 {vr(PT+1)}, 2, {vr(L)}")
    a(f"s_movk_i32 {sr(S_T3)}, {2*2304}")
    a(f"v_mul_lo_u32 {vr(PT+1)}, {vr(PT+1)}, {sr(S_T3)}")
    a(f"v_add_u32 {vr(PV2A)}, {vr(PV2A)}, {vr(PT+1)}")
    a(f"v_add_u32 {vr(PV2B)}, 2304, {vr(PV2A)}")
    a(f"v_cmp_gt_u32 vcc, 4, {vr(L)}")
    a("s_nop 1")
    if not cfg.REDB: a(f"v_cndmask_b32 {vr(PV2A)}, {vr(PV2A)}, {vr(PT+2)}, vcc")
    a(f"v_add_u32 {vr(PT)}, {sr(S_T2)}, {vr(L)}")
    a(f"v_lshlrev_b32 {vr(PLA)}, 4, {vr(PT)}")
    a(f"v_add_u32 {vr(PLA)}, {OUTP}, {vr(PLA)}")
    a(f"v_lshlrev_b32 {vr(POUT)}, 3, {vr(PT)}")
    a(f"v_cmp_gt_u32 vcc, 36, {vr(L)}")
    a("s_nop 1")
    a(f"v_cndmask_b32 {vr(POUT)}, {vr(PT+2)}, {vr(POUT)}, vcc")
    a(f"s_mul_i32 {sr(S_T0)}, {sr(S_B)}, 1152")
    srd(a, S_SRD3, S_X, S_T0, 1152)
    a(f"buffer_load_dwordx2 {vr(PXB,2)}, {vr(POUT)}, {sr(S_SRD3,4)}, 0 offen")
    srd(a, S_SRD3, S_B2, None, 1152)
    a(f"buffer_load_dwordx2 {vr(PXB+2,2)}, {vr(POUT)}, {sr(S_SRD3,4)}, 0 offen")

def gen_poll_tail(a, cfg):
    V_LANE = 0
    a("s_barrier")
    stamp(a, cfg, 4)
    a("s_branch L_done")
    a.label("L_tail")
    a(f"s_lshl_b32 {sr(S_T0)}, {sr(S_WAVE)}, 10")
    a(f"v_lshl_add_u32 v2, {vr(V_LANE)}, 4, {sr(S_T0)}")
    a(f"v_add_u32 v3, {OUTP}, v2")
    a(f"s_mul_i32 {sr(S_T0)}, {sr(S_WG)}, 2304")
    srd(a, S_SRD3, S_WS, S_T0, 2304)
    a("s_barrier")
    stamp(a, cfg, 4)
    a(f"s_cmp_ge_u32 {sr(S_WAVE)}, 3")
    a("s_cbranch_scc1 L_done")
    for sw in range(4):
        a(f"ds_read_b128 {vr(8+4*sw,4)}, v3 offset:{sw*2560}")
    a("s_waitcnt lgkmcnt(2)")
    a("v_pk_add_f32 v[8:9], v[8:9], v[12:13]")
    a("v_pk_add_f32 v[10:11], v[10:11], v[14:15]")
    a("s_waitcnt lgkmcnt(0)")
    a("v_pk_add_f32 v[16:17], v[16:17], v[20:21]")
    a("v_pk_add_f32 v[18:19], v[18:19], v[22:23]")
    a("v_pk_add_f32 v[8:9], v[8:9], v[16:17]")
    a("v_pk_add_f32 v[10:11], v[10:11], v[18:19]")
    a(f"buffer_store_dwordx4 v[8:11], v2, {sr(S_SRD3,4)}, 0 offen {cfg.PUBF}")
    a("s_branch L_done")

    def pload(s):
        if s < 16:
            a(f"s_mov_b32 {sr(S_T0)}, {s*2304}")
            a(f"buffer_load_dwordx4 {vr(PR1+4*s,4)}, {vr(PVO0 if s == 0 else PVO)}, {sr(S_SRD2,4)}, {sr(S_T0)} offen {cfg.POLF}")
        else:
            a(f"buffer_load_dwordx4 {vr(PR2+4*(s-16),4)}, {vr(PV2A if s == 16 else PV2B)}, {sr(S_SRD2,4)}, 0 offen {cfg.POLF}")
    def reg(s): return PR1+4*s if s < 16 else PR2+4*(s-16)
    a.label("L_reducer")
    for s_ in range(18): pload(s_)
    a("s_barrier")
    stamp(a, cfg, 4)
    for sw in range(4):
        a(f"ds_read_b128 {vr(POWN+4*sw,4)}, {vr(PLA)} offset:{sw*2560}")
    a("s_waitcnt lgkmcnt(0)")
    for e in range(4):
        a(f"v_add_f32 {vr(POWN+e)}, {vr(POWN+e)}, {vr(POWN+4+e)}")
        a(f"v_add_f32 {vr(POWN+8+e)}, {vr(POWN+8+e)}, {vr(POWN+12+e)}")
    for e in range(4):
        a(f"v_add_f32 {vr(POWN+e)}, {vr(POWN+e)}, {vr(POWN+8+e)}")
    a(f"s_mov_b32 {sr(S_T1)}, 0xffff0000")
    for src in (PXB, PXB+2):
        a(f"v_lshlrev_b32 {vr(PT)}, 16, {vr(src)}")
        a(f"v_and_b32 {vr(PT+1)}, {sr(S_T1)}, {vr(src)}")
        a(f"v_lshlrev_b32 {vr(PT+2)}, 16, {vr(src+1)}")
        a(f"v_and_b32 {vr(PT+3)}, {sr(S_T1)}, {vr(src+1)}")
        for e in range(4):
            a(f"v_add_f32 {vr(POWN+e)}, {vr(POWN+e)}, {vr(PT+e)}")
    a(f"s_mul_i32 {sr(S_T0)}, {sr(S_B)}, 1152")
    srd(a, S_SRD3, S_OUT, S_T0, 1152)
    a(f"s_mov_b32 {sr(S_CNT)}, 200000")
    TS = PT + 4
    TQ = TS + 32
    a.label("L_poll")
    a(f"s_sub_u32 {sr(S_CNT)}, {sr(S_CNT)}, 1")
    a("s_cbranch_scc1 L_pollok")
    if cfg.POLLDBG:
        a(f"s_mov_b32 {sr(S_STAMP+2)}, {sr(S_STAMP+8)}")
        a(f"s_mov_b32 {sr(S_STAMP+3)}, {sr(S_STAMP+9)}")
        a(f"s_memrealtime {sr(S_STAMP+4,2)}")
    a("s_waitcnt vmcnt(0)")
    if cfg.POLLDBG:
        a(f"s_memrealtime {sr(S_STAMP+8,2)}")
        a("s_waitcnt lgkmcnt(0)")
    for k in range(0, 32, 2):
        a(f"v_pk_add_f32 {vr(TS+k,2)}, {vr(PR1+k,2)}, {vr(PR1+k+32,2)}")
    for k in (0, 2):
        a(f"v_pk_add_f32 {vr(TQ+k,2)}, {vr(PR2+k,2)}, {vr(PR2+4+k,2)}")
    for step in (16, 8, 4):
        for k in range(0, step, 2):
            a(f"v_pk_add_f32 {vr(TS+k,2)}, {vr(TS+k,2)}, {vr(TS+k+step,2)}")
    a(f"v_pk_add_f32 {vr(TS+4,2)}, {vr(TS,2)}, {vr(TS+2,2)}")
    a(f"v_pk_add_f32 {vr(TS+6,2)}, {vr(TQ,2)}, {vr(TQ+2,2)}")
    a(f"v_pk_add_f32 {vr(TS+4,2)}, {vr(TS+4,2)}, {vr(TS+6,2)}")
    a(f"v_cmp_u_f32 vcc, {vr(TS+4)}, {vr(TS+5)}")
    a("s_cbranch_vccz L_pollok")
    MASK = [16,18,20,22,24,26,28,30, 84,86,88,90,92,94,96,98,100, 4]
    tt = [PT, PT+1, PT+2, PT+3]
    for s_ in range(18):
        r = reg(s_); t0 = tt[s_ % 4]
        a(f"v_max3_u32 {vr(t0)}, {vr(r)}, {vr(r+1)}, {vr(r+2)}")
        a(f"v_max_u32 {vr(t0)}, {vr(t0)}, {vr(r+3)}")
        a(f"v_cmp_eq_u32 {sr(MASK[s_],2)}, -1, {vr(t0)}")
    a(f"s_mov_b32 {sr(S_T2)}, 0")
    a("s_nop 2")
    for s_ in range(18):
        a(f"s_cmp_lg_u64 {sr(MASK[s_],2)}, 0")
        a(f"s_cbranch_scc1 L_rl{s_}")
        a.label(f"L_rb{s_}")
    a(f"s_cmp_lg_u32 {sr(S_T2)}, 0")
    a("s_cbranch_scc1 L_poll")
    a("s_branch L_pollok")
    for s_ in range(18):
        a.label(f"L_rl{s_}")
        a(f"s_mov_b64 exec, {sr(MASK[s_],2)}")
        if s_ < 16:
            a(f"s_mov_b32 {sr(S_T0)}, {s_*2304}")
            a(f"buffer_load_dwordx4 {vr(PR1+4*s_,4)}, {vr(PVO0 if s_ == 0 else PVO)}, {sr(S_SRD2,4)}, {sr(S_T0)} offen {cfg.POLF}")
        else:
            a(f"buffer_load_dwordx4 {vr(PR2+4*(s_-16),4)}, {vr(PV2A if s_ == 16 else PV2B)}, {sr(S_SRD2,4)}, 0 offen {cfg.POLF}")
        a("s_mov_b64 exec, -1")
        a(f"s_mov_b32 {sr(S_T2)}, 1")
        a(f"s_branch L_rb{s_}")
    a.label("L_pollok")
    stamp(a, cfg, 5)
    if cfg.POLLDBG:
        a(f"s_sub_u32 {sr(S_STAMP+6)}, 200000, {sr(S_CNT)}")
        a(f"s_mov_b32 {sr(S_STAMP+7)}, 0")
    for e in range(4):
        a(f"v_mov_b32 {vr(PR1+e)}, {vr(TS+e)}")
        a(f"v_mov_b32 {vr(PR2+e)}, {vr(TQ+e)}")
    for e in range(4):
        a(f"v_mov_b32 {vr(PR1+8+e)}, {vr(PR1+e)}")
    a("s_nop 1")
    for e in range(4):
        a(f"v_permlane32_swap_b32 {vr(PR1+e)}, {vr(PR1+8+e)}")
    for r_ in (4, 8):
        for e in range(4):
            a(f"v_add_f32_dpp {vr(PR2+e)}, {vr(PR2+e)}, {vr(PR2+e)} row_ror:{r_} row_mask:0xf bank_mask:0xf")
    for e in range(4):
        a(f"v_add_f32 {vr(PR1+e)}, {vr(PR1+e)}, {vr(PR1+8+e)}")
    for e in range(4):
        a(f"v_mov_b32 {vr(PR2+4+e)}, {vr(PR2+e)}")
    a("s_nop 1")
    for e in range(4):
        a(f"v_permlane16_swap_b32 {vr(PR2+e)}, {vr(PR2+4+e)}")
    a("s_nop 1")
    for e in range(4):
        a(f"v_add_f32 {vr(PR2+e)}, {vr(PR2+e)}, {vr(PR2+4+e)}")
    for e in range(4):
        a(f"v_mov_b32 {vr(PR2+4+e)}, {vr(PR2+e)}")
    a("s_nop 1")
    for e in range(4):
        a(f"v_permlane32_swap_b32 {vr(PR2+e)}, {vr(PR2+4+e)}")
    a("s_nop 1")
    for e in range(4):
        a(f"v_add_f32 {vr(PR2+e)}, {vr(PR2+e)}, {vr(PR2+4+e)}")
    a(f"v_cmp_gt_u32 vcc, 32, {vr(V_LANE)}")
    a(f"s_mov_b32 {sr(S_T1)}, 0xffff0000")
    a("s_nop 0")
    for e in range(4):
        a(f"v_cndmask_b32 {vr(PR1+e)}, {vr(PR2+e)}, {vr(PR1+e)}, vcc")
    for e in range(4):
        a(f"v_add_f32 {vr(PR1+e)}, {vr(PR1+e)}, {vr(POWN+e)}")
    a(f"v_cvt_pk_bf16_f32 {vr(PR1)}, {vr(PR1)}, {vr(PR1+1)}")
    a(f"v_cvt_pk_bf16_f32 {vr(PR1+1)}, {vr(PR1+2)}, {vr(PR1+3)}")
    a(f"buffer_store_dwordx2 {vr(PR1,2)}, {vr(POUT)}, {sr(S_SRD3,4)}, 0 offen")

def gen_tail(a, cfg):
    V_LANE=0
    if cfg.POLL:
        gen_poll_tail(a, cfg)
    else:
        gen_count_tail(a, cfg)
    gen_end(a, cfg)

def gen_count_tail(a, cfg):
    V_LANE=0
    a.label("L_tail")
    a("s_barrier")
    stamp(a, cfg, 4)
    a(f"s_cmp_lg_u32 {sr(S_WAVE)}, 0")
    a("s_cbranch_scc1 L_wait_flag")
    a(f"v_lshlrev_b32 v2, 4, {vr(V_LANE)}")
    a(f"v_add_u32 v3, {OUTP}, v2")
    for k in range(3):
        for sw in range(4):
            a(f"ds_read_b128 {vr(8+16*k+4*sw,4)}, v3 offset:{sw*2560 + k*1024}")
    a(f"s_mul_i32 {sr(S_T0)}, {sr(S_WG)}, 2304")
    srd(a, S_SRD2, S_WS, S_T0, 2304)
    for k in range(3):
        a(f"s_waitcnt lgkmcnt({8-4*k})")
        b = 8+16*k
        for e in range(4):
            a(f"v_add_f32 {vr(b+e)}, {vr(b+e)}, {vr(b+4+e)}")
            a(f"v_add_f32 {vr(b+8+e)}, {vr(b+8+e)}, {vr(b+12+e)}")
        for e in range(4):
            a(f"v_add_f32 {vr(b+e)}, {vr(b+e)}, {vr(b+8+e)}")
        a(f"buffer_store_dwordx4 {vr(b,4)}, v2, {sr(S_SRD2,4)}, 0 offen offset:{1024*k} sc1")
    a("s_waitcnt vmcnt(0)")
    a(f"s_lshl_b32 {sr(S_T0)}, {sr(S_B)}, 5")
    a(f"v_mov_b32 v4, {sr(S_T0)}")
    a("v_mov_b32 v5, 1")
    a("s_mov_b64 exec, 1")
    a(f"global_atomic_add v6, v4, v5, {sr(S_DBG,2)} sc0")
    a("s_waitcnt vmcnt(0)")
    a(f"v_mov_b32 v7, {FLAG}")
    a("ds_write_b32 v7, v6")
    a("s_mov_b64 exec, -1")
    a("s_waitcnt lgkmcnt(0)")
    a.label("L_wait_flag")
    a("s_barrier")
    stamp(a, cfg, 5)
    a(f"v_mov_b32 v7, {FLAG}")
    a("ds_read_b32 v6, v7")
    a("s_waitcnt lgkmcnt(0)")
    a("s_nop 0")
    a(f"v_readfirstlane_b32 {sr(S_T0)}, v6")
    a("s_nop 3")
    a(f"s_cmp_lg_u32 {sr(S_T0)}, 31")
    a("s_cbranch_scc1 L_done")
    a(f"s_mul_i32 {sr(S_T0)}, {sr(S_B)}, {32*2304}")
    srd(a, S_SRD2, S_WS, S_T0, 32*2304)
    a(f"v_lshlrev_b32 v2, 4, {vr(V_LANE)}")
    a(f"v_add_u32 v3, 2048, v2")
    a("v_mov_b32 v4, 0x7f000000")
    a(f"v_cmp_gt_u32 vcc, 16, {vr(V_LANE)}")
    a("s_nop 1")
    a("v_cndmask_b32 v3, v4, v3, vcc")
    a(f"s_mul_i32 {sr(S_T1)}, {sr(S_WAVE)}, {4*2304}")
    for u in range(4):
        a(f"buffer_load_dwordx4 {vr(8+12*u,4)}, v2, {sr(S_SRD2,4)}, {sr(S_T1)} offen sc1")
        a(f"buffer_load_dwordx4 {vr(12+12*u,4)}, v2, {sr(S_SRD2,4)}, {sr(S_T1)} offen offset:1024 sc1")
        a(f"buffer_load_dwordx4 {vr(16+12*u,4)}, v3, {sr(S_SRD2,4)}, {sr(S_T1)} offen sc1")
        if u < 3: a(f"s_add_u32 {sr(S_T1)}, {sr(S_T1)}, 2304")
    a(f"s_mul_i32 {sr(S_T0)}, {sr(S_B)}, 1152")
    srd(a, S_SRD3, S_X, S_T0, 1152)
    srd(a, S_SRDK, S_B2, None, 1152)
    a(f"s_lshl_b32 {sr(S_T2)}, {sr(S_WAVE)}, 6")
    a(f"v_add_u32 v5, {sr(S_T2)}, {vr(V_LANE)}")
    a("v_lshlrev_b32 v6, 3, v5")
    a(f"buffer_load_dwordx2 v[60:61], v6, {sr(S_SRD3,4)}, 0 offen")
    a(f"buffer_load_dwordx2 v[62:63], v6, {sr(S_SRDK,4)}, 0 offen")
    a("s_waitcnt vmcnt(2)")
    for e in range(12):
        a(f"v_add_f32 {vr(8+e)}, {vr(8+e)}, {vr(20+e)}")
        a(f"v_add_f32 {vr(32+e)}, {vr(32+e)}, {vr(44+e)}")
    for e in range(12):
        a(f"v_add_f32 {vr(8+e)}, {vr(8+e)}, {vr(32+e)}")
    a(f"s_mul_i32 {sr(S_T0)}, {sr(S_WAVE)}, 3072")
    a(f"v_add_u32 v7, {sr(S_T0)}, v2")
    for k in range(3):
        a(f"ds_write_b128 v7, {vr(8+4*k,4)} offset:{RED + 1024*k}")
    a("s_waitcnt lgkmcnt(0)")
    a("s_barrier")
    a(f"s_cmp_ge_u32 {sr(S_WAVE)}, 3")
    a("s_cbranch_scc1 L_done")
    a("v_lshlrev_b32 v7, 4, v5")
    for w in range(8):
        a(f"ds_read_b128 {vr(8+4*w,4)}, v7 offset:{RED + 3072*w}")
    a("s_waitcnt lgkmcnt(0)")
    for e in range(4):
        a(f"v_add_f32 {vr(8+e)}, {vr(8+e)}, {vr(12+e)}")
        a(f"v_add_f32 {vr(16+e)}, {vr(16+e)}, {vr(20+e)}")
        a(f"v_add_f32 {vr(24+e)}, {vr(24+e)}, {vr(28+e)}")
        a(f"v_add_f32 {vr(32+e)}, {vr(32+e)}, {vr(36+e)}")
    for e in range(4):
        a(f"v_add_f32 {vr(8+e)}, {vr(8+e)}, {vr(16+e)}")
        a(f"v_add_f32 {vr(24+e)}, {vr(24+e)}, {vr(32+e)}")
    for e in range(4):
        a(f"v_add_f32 {vr(8+e)}, {vr(8+e)}, {vr(24+e)}")
    a("s_waitcnt vmcnt(0)")
    a(f"s_mov_b32 {sr(S_T1)}, 0xffff0000")
    for (src) in (60, 62):
        a(f"v_lshlrev_b32 v40, 16, {vr(src)}")
        a(f"v_and_b32 v41, {sr(S_T1)}, {vr(src)}")
        a(f"v_lshlrev_b32 v42, 16, {vr(src+1)}")
        a(f"v_and_b32 v43, {sr(S_T1)}, {vr(src+1)}")
        for e in range(4):
            a(f"v_add_f32 {vr(8+e)}, {vr(8+e)}, {vr(40+e)}")
    a("v_cvt_pk_bf16_f32 v8, v8, v9")
    a("v_cvt_pk_bf16_f32 v9, v10, v11")
    a(f"s_mul_i32 {sr(S_T0)}, {sr(S_B)}, 1152")
    srd(a, S_SRD2, S_OUT, S_T0, 1152)
    a(f"buffer_store_dwordx2 v[8:9], v6, {sr(S_SRD2,4)}, 0 offen")

def gen_end(a, cfg):
    a.label("L_done")
    if cfg.SPINTO or cfg.SPINX >= 0:
        a(f"s_cmp_lg_u32 {sr(S_WAVE)}, 0")
        a("s_cbranch_scc1 L_exit")
        a(f"s_memrealtime {sr(S_STAMP+12,2)}")
        a("s_waitcnt lgkmcnt(0)")
        if cfg.SPINTO:
            a(f"s_add_u32 {sr(S_T2)}, {sr(S_STAMP)}, {cfg.SPINTO}")
        else:
            a(f"s_sub_u32 {sr(S_T2)}, {sr(S_STAMP+2*cfg.SPINX)}, {sr(S_STAMP)}")
            a(f"s_add_u32 {sr(S_T2)}, {sr(S_T2)}, {sr(S_STAMP+12)}")
        a.label("L_spin")
        a(f"s_memrealtime {sr(S_STAMP+12,2)}")
        a("s_waitcnt lgkmcnt(0)")
        a(f"s_sub_u32 {sr(S_T3)}, {sr(S_STAMP+12)}, {sr(S_T2)}")
        a(f"s_cmp_lt_i32 {sr(S_T3)}, 0")
        a("s_cbranch_scc1 L_spin")
    if cfg.DBGT:
        a(f"s_memrealtime {sr(S_STAMP+12,2)}")
        a("s_waitcnt lgkmcnt(0)")
        a(f"s_cmp_lg_u32 {sr(S_WAVE)}, 0")
        a("s_cbranch_scc1 L_exit")
        a("s_mov_b64 exec, 1")
        a("v_mov_b32 v2, 0")
        for (w, idx, inv) in [(1,0,True),(2,2,False),(3,3,False),(4,6,False),(5,3,True),(6,6,True),(7,2,True)]:
            a(f"v_mov_b32 v4, {sr(S_STAMP+2*idx)}")
            if inv: a("v_not_b32 v4, v4")
            a(f"global_atomic_umax v2, v4, {sr(S_DBG,2)} offset:{4*w}")
    if cfg.STAMPS:
        stamp(a, cfg, 6)
        a("s_waitcnt lgkmcnt(0)")
        a(f"s_lshl_b32 {sr(S_T0)}, {sr(S_WG)}, 3")
        a(f"s_add_u32 {sr(S_T0)}, {sr(S_T0)}, {sr(S_WAVE)}")
        a(f"s_lshl_b32 {sr(S_T0)}, {sr(S_T0)}, 6")
        a(f"s_add_u32 {sr(S_T0)}, {sr(S_T0)}, 0x100000")
        a(f"v_mov_b32 v2, {sr(S_T0)}")
        a("s_mov_b64 exec, 1")
        for k in range(7):
            a(f"v_mov_b32 v4, {sr(S_STAMP+2*k)}")
            a(f"v_mov_b32 v5, {sr(S_STAMP+2*k+1)}")
            a(f"global_store_dwordx2 v2, v[4:5], {sr(S_WS,2)} offset:{8*k}")
    a.label("L_exit")
    a("s_endpgm")

def generate(cfg):
    a = Asm()
    stamp(a, cfg, 0)
    a(f"s_cmp_ge_u32 {sr(S_WG)}, 256")
    a("s_cbranch_scc1 L_exit")
    a(f"s_load_dwordx4 {sr(S_K,4)}, s[0:1], 8")
    a(f"s_load_dwordx2 {sr(S_X,2)}, s[0:1], 0")
    a(f"s_load_dwordx4 {sr(S_WQ,4)}, s[0:1], 24")
    a(f"s_load_dwordx4 {sr(S_W1,4)}, s[0:1], 48")
    a(f"s_load_dwordx4 {sr(S_W2,4)}, s[0:1], 64")
    a(f"s_load_dwordx4 {sr(S_OUT,4)}, s[0:1], 80")
    a(f"s_load_dwordx2 {sr(S_WS,2)}, s[0:1], 96")
    a("v_lshrrev_b32 v1, 6, v0")
    a(f"s_lshr_b32 {sr(S_B)}, {sr(S_WG)}, 5")
    a(f"v_readfirstlane_b32 {sr(S_WAVE)}, v1")
    if cfg.HMAP:
        a(f"s_and_b32 {sr(S_H)}, {sr(S_WG)}, 7")
        a(f"s_lshl_b32 {sr(S_H)}, {sr(S_H)}, 2")
        a(f"s_bfe_u32 {sr(S_T0)}, {sr(S_WG)}, 0x20003")
        a(f"s_add_u32 {sr(S_H)}, {sr(S_H)}, {sr(S_T0)}")
    else:
        a(f"s_and_b32 {sr(S_H)}, {sr(S_WG)}, 31")
    a("v_and_b32 v0, 63, v0")
    if cfg.HMAP:
        a(f"s_lshl_b32 {sr(S_WG)}, {sr(S_B)}, 5")
        a(f"s_add_u32 {sr(S_WG)}, {sr(S_WG)}, {sr(S_H)}")
    a("s_nop 1")
    a(f"s_cmp_ge_u32 {sr(S_WAVE)}, 4")
    if not cfg.SR: a("s_waitcnt lgkmcnt(0)")
    a("s_cbranch_scc1 L_side")
    (gen_stream_sr if cfg.SR else gen_stream)(a, cfg)
    gen_side(a, cfg)
    gen_tail(a, cfg)
    body = a.text()
    hdr = f"""; Fused decode block:  out = x + MHA(LN(x); K/V cache) @ wo + MLP(LN(LN(x)))          (B=8, H=32, Sk=4096, Dh=128, D=576, F=4608)
;       fixed number of loads in flight; q.K^T by MFMA from an XOR-swizzled K image, online softmax (true running max),
; Cross-workgroup sum over the 32 heads: every workgroup resets its slot in d_ws to a NaN sentinel at start (counted in d_debug),
;   publishes its partial with write-through stores at the end; workgroup h == b polls the 31 other slots, adds x + b2, stores out[b].
; Kernarg layout (104 bytes): A_x, K, V, wq, wo, B_x, w1, b1, w2, b2, out, debug, ws
; @launch grid=(256,1,1) block=(512,1,1) lds={LDS_BYTES}
.amdgcn_target "amdgcn-amd-amdhsa--gfx950"
.text
.globl {KNAME}
.p2align 8
.type {KNAME},@function
{KNAME}:
"""
    ftr = f"""
.section .rodata,"a"
.p2align 6
.amdhsa_kernel {KNAME}
  .amdhsa_next_free_vgpr 256
  .amdhsa_next_free_sgpr 102
  .amdhsa_accum_offset 256
  .amdhsa_group_segment_fixed_size 0
  .amdhsa_kernarg_size 104
  .amdhsa_user_sgpr_count 2
  .amdhsa_user_sgpr_kernarg_segment_ptr 1
  .amdhsa_system_sgpr_workgroup_id_x 1
  .amdhsa_float_denorm_mode_32 3
.end_amdhsa_kernel
"""
    return hdr + body + ftr

if __name__ == "__main__":
    cfg = Cfg()
    out = sys.argv[1]
    for kv in sys.argv[2:]:
        k, v = kv.split("=")
        cur = getattr(cfg, k)
        if isinstance(cur, bool): v = v in ("1","True","true")
        elif isinstance(cur, int): v = int(v)
        setattr(cfg, k, v)
    open(out, "w").write(generate(cfg))
    print("wrote", out, "LDS", LDS_BYTES)
```

```python
import sys, math

KNAME = "parallel_sum__mha_block_cached__mixer_channel_mlp__decode_kernel"

class Cfg:
    N = 5
    RUNAHEAD = 56
    PROUNDS = 4
    XTRA = 0
    RSCORE = 1
    RAMP = ''
    MMAP = 1
    POLLDBG = False
    D2 = 0
    D3 = 3
    SR = 1
    DQ = 4
    ROT2 = 0
    HMAP = 0
    STARTSIG = 'atomic'
    CTLSTOP = 1
    VERS = '5,7'
    WPOL = ''
    CTL = ''
    NT = 7
    KT = 1
    POLL = True
    RED_H = 0
    QFLAG = 1
    LOOPSTAMP = 0
    ALIGN = 0
    PUBF = 'sc1'
    POLF = 'sc1'
    REDB = 1
    K0 = 1
    B2_ITER = 3
    WFLAGS = ""
    NOSIDE = False
    NOCONS = False
    ITSTAMP = False
    DEPTH = 2
    ROT = True
    DBGT = False
    SPINTO = 0
    SPINX = -1
    PROSTAMP = False
    KFLAGS = "nt"
    VFLAGS = "nt"
    STAMPS = False
    PRIO = 2
    perm = 0

RING = 0
MISC = 131072
QPART = MISC
QBF   = QPART + 2048
HPART = QBF + 1024
OPART = HPART + 4096
ML    = OPART + 2048
OUTP  = ML + 64
XPRIV = OUTP
FLAG  = OUTP + 10240
LDS_END = FLAG + 64
RED   = 0
LDS_BYTES = (LDS_END + 1024 + 255)//256*256

C_SCALE = (128 ** -0.5) * math.log2(math.e)

import struct
def f2u(x): return struct.unpack("<I", struct.pack("<f", x))[0]
def hexf(x): return "0x%08x" % f2u(x)

class Asm:
    def __init__(self): self.L = []
    def __call__(self, s): self.L.append("  " + s)
    def label(self, s): self.L.append(s + ":")
    def c(self, s): self.L.append("  ; " + s)
    def text(self): return "\n".join(self.L)

def vr(b, n=1): return f"v{b}" if n == 1 else f"v[{b}:{b+n-1}]"
def sr(b, n=1): return f"s{b}" if n == 1 else f"s[{b}:{b+n-1}]"

S_WG=2; S_WAVE=3
S_K=4; S_V=6
S_SRDK=8; S_SRDV=12
S_X=16
S_WQ=20; S_WO=22
S_W1=24; S_B1=26
S_W2=28; S_B2=30
S_OUT=32; S_DBG=34
S_WS=36
S_B=38; S_H=39; S_M=63
S_T0=40; S_T1=41; S_T2=42; S_T3=43
S_OFFA=44; S_OFFB=45; S_RING=46; S_CNT=47
S_C=48
S_SRD2=52
S_SRD3=56
S_EX=60
S_SW=62
S_STAMP=64
S_MASKHI=80
S_TS=82

def allreduce_sum(a, v, t):
    for r in (8,4,2,1):
        a("s_nop 1")
        a(f"v_add_f32_dpp {vr(v)}, {vr(v)}, {vr(v)} row_ror:{r} row_mask:0xf bank_mask:0xf")
    a(f"v_mov_b32 {vr(t)}, {vr(v)}")
    a("s_nop 1")
    a(f"v_permlane16_swap_b32 {vr(v)}, {vr(t)}")
    a("s_nop 1")
    a(f"v_add_f32 {vr(v)}, {vr(v)}, {vr(t)}")
    a(f"v_mov_b32 {vr(t)}, {vr(v)}")
    a("s_nop 1")
    a(f"v_permlane32_swap_b32 {vr(v)}, {vr(t)}")
    a("s_nop 1")
    a(f"v_add_f32 {vr(v)}, {vr(v)}, {vr(t)}")

def groups_allreduce(a, v, t, op):
    a(f"v_mov_b32 {vr(t)}, {vr(v)}")
    a("s_nop 1")
    a(f"v_permlane16_swap_b32 {vr(v)}, {vr(t)}")
    a("s_nop 1")
    a(f"{op} {vr(v)}, {vr(v)}, {vr(t)}")
    a(f"v_mov_b32 {vr(t)}, {vr(v)}")
    a("s_nop 1")
    a(f"v_permlane32_swap_b32 {vr(v)}, {vr(t)}")
    a("s_nop 1")
    a(f"{op} {vr(v)}, {vr(v)}, {vr(t)}")

def make_selectors(a, lane, selE, selO, t0, t1, t2, t3):
    a(f"v_and_b32 {vr(t0)}, 15, {vr(lane)}")
    a(f"v_and_b32 {vr(t1)}, 1, {vr(t0)}")
    a(f"v_mov_b32 {vr(t2)}, 0x0c0c0100")
    a(f"v_mov_b32 {vr(t3)}, 0x01000c0c")
    a(f"v_cmp_eq_u32 vcc, 1, {vr(t1)}")
    a("s_nop 1")
    a(f"v_cndmask_b32 {vr(t2)}, {vr(t2)}, {vr(t3)}, vcc")
    a(f"v_mov_b32 {vr(t3)}, 0x0c0c0302")
    a(f"v_mov_b32 {vr(t1)}, 0x03020c0c")
    a(f"v_cndmask_b32 {vr(t3)}, {vr(t3)}, {vr(t1)}, vcc")
    a(f"v_lshrrev_b32 {vr(t0)}, 1, {vr(t0)}")
    a(f"v_mov_b32 {vr(t1)}, 0x0c0c0c0c")
    for k in range(4):
        a(f"v_cmp_eq_u32 vcc, {k}, {vr(t0)}")
        a("s_nop 1")
        a(f"v_cndmask_b32 {vr(selE+k)}, {vr(t1)}, {vr(t2)}, vcc")
        a(f"v_cndmask_b32 {vr(selO+k)}, {vr(t1)}, {vr(t3)}, vcc")

def diag(a, dst, P, parity, selE, selO):
    sel = selO if parity else selE
    for k in range(4):
        a(f"v_perm_b32 {vr(dst+k)}, {vr(P)}, {vr(P)}, {vr(sel+k)}")

def mfma(a, D, A, B, C):
    c = "0" if C is None else vr(C,4)
    a(f"v_mfma_f32_16x16x32_bf16 {vr(D,4)}, {vr(A,4)}, {vr(B,4)}, {c}")

def stamp(a, cfg, idx):
    if cfg.PROSTAMP and idx in (2,4,5): return
    if cfg.STAMPS or ((cfg.DBGT or cfg.SPINTO or cfg.SPINX >= 0) and idx in (0,1,2,3)):
        a(f"s_memrealtime {sr(S_STAMP+2*idx,2)}")

def srd(a, d, base, off_lo_sreg_or_none, size):
    if off_lo_sreg_or_none is None:
        a(f"s_mov_b32 {sr(d)}, {sr(base)}")
        a(f"s_mov_b32 {sr(d+1)}, {sr(base+1)}")
    else:
        a(f"s_add_u32 {sr(d)}, {sr(base)}, {sr(off_lo_sreg_or_none)}")
        a(f"s_addc_u32 {sr(d+1)}, {sr(base+1)}, 0")
    if isinstance(size, int):
        a(f"s_mov_b32 {sr(d+2)}, {size}")
    else:
        a(f"s_mov_b32 {sr(d+2)}, {size}")
    a(f"s_mov_b32 {sr(d+3)}, 0x20000")

def gen_stream(a, cfg):
    N = cfg.N
    LAG = 3 + N
    PR = cfg.PROUNDS
    assert PR in (0, 2, 4)
    V_LANE=0
    VK=2
    VV=6
    VVD=7
    VKR=8
    VVR=12
    VT=13
    VQ=16
    VA=32
    VS=48
    VP=56
    VAO=60
    VO=68
    VM=72; VL=73; VAL=74; VMC=75
    SELE=76; SELO=80
    VX=84
    VD=96

    a.label("L_stream")
    if cfg.PRIO: a(f"s_setprio {cfg.PRIO}")
    a(f"s_lshl_b32 {sr(S_T0)}, {sr(S_WG)}, 20")
    srd(a, S_SRDK, S_K, S_T0, 0x100000)
    srd(a, S_SRDV, S_V, S_T0, 0x100000)
    a(f"s_lshl_b32 {sr(S_OFFA)}, {sr(S_WAVE)}, 13")
    a(f"s_add_u32 {sr(S_OFFB)}, {sr(S_OFFA)}, 4096")
    a(f"s_lshl_b32 {sr(S_RING)}, {sr(S_WAVE)}, 15")

    NP = 16*PR
    def load_desc(i):
        if i < NP:
            r, p = divmod(i, 16)
            half = (p % 8)//4; j = p % 4
            if p < 8: return dict(kind='K', j=j, half=half, slot=2*r+half, last=False, req=None)
            return dict(kind='VD', j=j, half=half, dst=VD+32*r+16*half+4*j, last=(p == 15), req=None)
        ip = i - NP
        g = ip//4; j = ip % 4; pos = (ip % 16)//4
        slot = g % 8
        if ip < 32:
            req = None if slot >= 2*PR else 4*(slot//2) + (slot % 2)
        else:
            req = 4*PR + (ip-32)//4
        return dict(kind='K' if pos < 2 else 'V', j=j, half=pos % 2, slot=slot, last=(ip % 16 == 15), req=req)
    def unit_desc(u):
        if u < 4*PR:
            r, pos = divmod(u, 4)
            if pos < 2: return dict(pos=pos, slot=2*r+pos, need=16*r+4*pos+3, direct=None)
            return dict(pos=pos, slot=None, need=16*r+8+4*(pos-2)+3, direct=VD+32*r+16*(pos-2))
        g = u - 4*PR
        return dict(pos=g % 4, slot=g % 8, need=NP+4*g+3, direct=None)

    state = {"m0": None}
    win = {"n": N}
    def issue(i, wait=True):
        d = load_desc(i)
        so = S_OFFB if d['half'] else S_OFFA
        if d['kind'] != 'VD' and state["m0"] != d['slot']:
            a(f"s_add_u32 m0, {sr(S_RING)}, {d['slot']*4096}")
            state["m0"] = d['slot']
            if not wait: a("s_nop 0")
        if wait: a(f"s_waitcnt vmcnt({win['n']-1})")
        j = d['j']
        if d['kind'] == 'K':
            a(f"buffer_load_dwordx4 {vr(VK+j)}, {sr(S_SRDK,4)}, {sr(so)} offen offset:{j*1024} {cfg.KFLAGS} lds")
        elif d['kind'] == 'V':
            a(f"buffer_load_dwordx4 {vr(VV)}, {sr(S_SRDV,4)}, {sr(so)} offen offset:{j*1024} {cfg.VFLAGS} lds")
        else:
            a(f"buffer_load_dwordx4 {vr(d['dst'],4)}, {vr(VVD)}, {sr(S_SRDV,4)}, {sr(so)} offen offset:{j*256} {cfg.VFLAGS}")
        if d['last']:
            a(f"s_add_u32 {sr(S_OFFA)}, {sr(S_OFFA)}, 32768")
            a(f"s_add_u32 {sr(S_OFFB)}, {sr(S_OFFB)}, 32768")

    def piece(u, p):
        if cfg.NOCONS: return
        d = unit_desc(u)
        pos = d['pos']
        if pos < 2:
            S = VS + 4*pos
            slot = d['slot']*4096
            if p == 0:
                for t in range(4):
                    a(f"ds_read_b128 {vr(VA+4*t,4)}, {vr(VKR+t)} offset:{slot}")
            elif p == 1:
                for t in range(4):
                    a(f"s_waitcnt lgkmcnt({3-t})")
                    mfma(a, S, VA+4*t, VQ+4*t, None if t == 0 else S)
            elif pos == 1 and p == 2:
                softmax_a()
            elif pos == 1 and p == 3:
                softmax_b()
        else:
            half = pos - 2
            if d['direct'] is None:
                if p == 0:
                    for r in range(4):
                        a(f"ds_read_b128 {vr(VA+4*r,4)}, {vr(VVR)} offset:{d['slot']*4096 + r*256}")
                r = p
                ao = VAO + 4*(r&1)
                diag(a, ao, VP + 2*half + (r>>1), r&1, SELE, SELO)
                a(f"s_waitcnt lgkmcnt({3-r})")
                a("s_nop 0")
                mfma(a, VO, ao, VA+4*r, VO)
            else:
                r = p
                ao = VAO + 4*(r&1)
                diag(a, ao, VP + 2*half + (r>>1), r&1, SELE, SELO)
                a("s_nop 1")
                mfma(a, VO, ao, d['direct']+4*r, VO)

    def softmax_a():
        a(f"v_max3_f32 {vr(VX)}, {vr(VS)}, {vr(VS+1)}, {vr(VS+2)}")
        a(f"v_max3_f32 {vr(VX)}, {vr(VX)}, {vr(VS+3)}, {vr(VM)}")
        a("s_nop 5")
        a(f"v_max3_f32 {vr(VX+1)}, {vr(VS+4)}, {vr(VS+5)}, {vr(VS+6)}")
        a(f"v_max3_f32 {vr(VX)}, {vr(VX)}, {vr(VS+7)}, {vr(VX+1)}")
        groups_allreduce(a, VX, VX+1, "v_max_f32")
        a(f"v_sub_f32 {vr(VAL)}, {vr(VM)}, {vr(VX)}")
        a(f"v_mul_f32 {vr(VMC)}, {sr(S_C)}, {vr(VX)}")
        a(f"v_mul_f32 {vr(VAL)}, {sr(S_C)}, {vr(VAL)}")
        a(f"v_mov_b32 {vr(VM)}, {vr(VX)}")
        a(f"v_exp_f32 {vr(VAL)}, {vr(VAL)}")
        for r in range(8):
            a(f"v_fma_f32 {vr(VS+r)}, {vr(VS+r)}, {sr(S_C)}, -{vr(VMC)}")
    def softmax_b():
        for r in range(8):
            a(f"v_exp_f32 {vr(VS+r)}, {vr(VS+r)}")
        for r in range(4):
            a(f"v_mul_f32 {vr(VO+r)}, {vr(VO+r)}, {vr(VAL)}")
        a(f"v_mul_f32 {vr(VL)}, {vr(VL)}, {vr(VAL)}")
        a(f"v_add_f32 {vr(VX)}, {vr(VS)}, {vr(VS+1)}")
        a(f"v_add_f32 {vr(VX+1)}, {vr(VS+2)}, {vr(VS+3)}")
        a(f"v_add_f32 {vr(VX+2)}, {vr(VS+4)}, {vr(VS+5)}")
        a(f"v_add_f32 {vr(VX+3)}, {vr(VS+6)}, {vr(VS+7)}")
        for r in range(4):
            a(f"v_cvt_pk_bf16_f32 {vr(VP+r)}, {vr(VS+2*r)}, {vr(VS+2*r+1)}")
        a(f"v_add_f32 {vr(VX)}, {vr(VX)}, {vr(VX+1)}")
        a(f"v_add_f32 {vr(VX+2)}, {vr(VX+2)}, {vr(VX+3)}")
        a(f"v_add_f32 {vr(VL)}, {vr(VL)}, {vr(VX)}")
        a(f"v_add_f32 {vr(VL)}, {vr(VL)}, {vr(VX+2)}")

    a(f"v_lshrrev_b32 {vr(VT)}, 4, {vr(V_LANE)}")
    a(f"v_and_b32 {vr(VT+1)}, 15, {vr(V_LANE)}")
    for j in range(4):
        a(f"v_add_u32 {vr(VK+j)}, {4*j}, {vr(VT)}")
        a(f"v_xor_b32 {vr(VK+j)}, {vr(VK+j)}, {vr(VT+1)}")
        a(f"v_lshlrev_b32 {vr(VK+j)}, 4, {vr(VK+j)}")
        a(f"v_lshl_add_u32 {vr(VK+j)}, {vr(VT)}, 8, {vr(VK+j)}")
    for i in range(N): issue(i, wait=False)
    a(f"v_lshlrev_b32 {vr(VV)}, 4, {vr(V_LANE)}")
    a(f"v_lshlrev_b32 {vr(VVD)}, 10, {vr(VT)}")
    a(f"v_lshl_add_u32 {vr(VVD)}, {vr(VT+1)}, 4, {vr(VVD)}")
    for t in range(4):
        a(f"v_add_u32 {vr(VKR+t)}, {4*t}, {vr(VT)}")
        a(f"v_xor_b32 {vr(VKR+t)}, {vr(VKR+t)}, {vr(VT+1)}")
        a(f"v_lshlrev_b32 {vr(VKR+t)}, 4, {vr(VKR+t)}")
        a(f"v_lshl_add_u32 {vr(VKR+t)}, {vr(VT+1)}, 8, {vr(VKR+t)}")
        a(f"v_add_u32 {vr(VKR+t)}, {sr(S_RING)}, {vr(VKR+t)}")
    a(f"v_add_u32 {vr(VVR)}, {sr(S_RING)}, {vr(VVD)}")
    make_selectors(a, V_LANE, SELE, SELO, VX, VX+1, VX+2, VX+3)
    a(f"v_mov_b32 {vr(VM)}, 0xff800000")
    a(f"v_mov_b32 {vr(VL)}, 0")
    for r in range(4): a(f"v_mov_b32 {vr(VO+r)}, 0")
    a(f"s_mov_b32 {sr(S_C)}, {hexf(C_SCALE)}")

    RA = cfg.RUNAHEAD
    for i in range(N, RA):
        assert load_desc(i)['req'] is None
        issue(i)
        if cfg.PROSTAMP and i == N: a(f"s_memrealtime {sr(S_STAMP+4,2)}")
        if cfg.PROSTAMP and i == 20: a(f"s_memrealtime {sr(S_STAMP+8,2)}")
        if cfg.PROSTAMP and i == 40: a(f"s_memrealtime {sr(S_STAMP+10,2)}")
    stamp(a, cfg, 1)
    a("s_barrier")
    stamp(a, cfg, 2)
    nxt = RA
    def try_issue(done_units):
        nonlocal nxt
        d = load_desc(nxt)
        if d['req'] is not None and d['req'] >= done_units: return False
        issue(nxt); nxt += 1
        return True
    a(f"v_lshlrev_b32 {vr(VX)}, 4, {vr(V_LANE)}")
    a(f"v_and_b32 {vr(VX)}, 0x1ff, {vr(VX)}")
    a(f"v_add_u32 {vr(VX)}, {QPART}, {vr(VX)}")
    for p in range(4):
        a(f"ds_read_b128 {vr(VA+4*p,4)}, {vr(VX)} offset:{p*512}")
    try_issue(0); try_issue(0)
    a("s_waitcnt lgkmcnt(0)")
    for e in range(4):
        a(f"v_add_f32 {vr(VA+e)}, {vr(VA+e)}, {vr(VA+4+e)}")
        a(f"v_add_f32 {vr(VA+8+e)}, {vr(VA+8+e)}, {vr(VA+12+e)}")
    for e in range(4):
        a(f"v_add_f32 {vr(VA+e)}, {vr(VA+e)}, {vr(VA+8+e)}")
    a(f"v_cvt_pk_bf16_f32 {vr(VA+4)}, {vr(VA)}, {vr(VA+1)}")
    a(f"v_cvt_pk_bf16_f32 {vr(VA+5)}, {vr(VA+2)}, {vr(VA+3)}")
    a(f"v_lshlrev_b32 {vr(VX+1)}, 3, {vr(V_LANE)}")
    a(f"v_and_b32 {vr(VX+1)}, 0xff, {vr(VX+1)}")
    a(f"s_lshl_b32 {sr(S_T0)}, {sr(S_WAVE)}, 8")
    a(f"s_add_u32 {sr(S_T0)}, {sr(S_T0)}, {QBF}")
    a(f"v_add_u32 {vr(VX+1)}, {sr(S_T0)}, {vr(VX+1)}")
    a(f"ds_write_b64 {vr(VX+1)}, {vr(VA+4,2)}")
    a(f"v_lshrrev_b32 {vr(VX+2)}, 4, {vr(V_LANE)}")
    a(f"v_lshlrev_b32 {vr(VX+2)}, 4, {vr(VX+2)}")
    a(f"v_add_u32 {vr(VX+2)}, {sr(S_T0)}, {vr(VX+2)}")
    a("s_waitcnt lgkmcnt(0)")
    for t in range(4):
        a(f"ds_read_b128 {vr(VQ+4*t,4)}, {vr(VX+2)} offset:{t*64}")
    try_issue(0)
    a("s_waitcnt lgkmcnt(0)")
    VERS = [int(x) for x in cfg.VERS.split(',')]
    NMAX = max(VERS + [N])
    U0 = 4*PR + 8*cfg.K0
    target = NP + 32*cfg.K0 + NMAX + 3
    u = 0
    while u < U0 or nxt < target:
        d = unit_desc(u) if u < U0 else None
        if d is not None and nxt - 1 - N >= d['need']:
            ahead = (nxt - 1 - N) - d['need']
            for p in range(4):
                piece(u, p)
                want = (ahead < 2) or (p in (1, 3))
                if want and nxt < target:
                    try_issue(u)
            u += 1
        else:
            if not (nxt < target and try_issue(u)):
                raise RuntimeError(f"schedule deadlock u={u} nxt={nxt}")
    assert nxt == target and u == U0, (nxt, target, u, U0)
    if cfg.POLL:
        poll_setup(a, cfg)
    niter = (128 - U0)//8
    assert (128 - U0) % 8 == 0
    S_POL = S_TS
    VPG = 224
    if cfg.WPOL:
        wp = [int(x) for x in cfg.WPOL.split(',')]
        a(f"s_mov_b32 {sr(S_POL)}, {wp[0]}")
        for w in range(1, 4):
            a(f"s_cmp_eq_u32 {sr(S_WAVE)}, {w}")
            a(f"s_cselect_b32 {sr(S_POL)}, {wp[w]}, {sr(S_POL)}")
    else:
        a(f"s_mov_b32 {sr(S_POL)}, {N}")
    if cfg.CTL:
        a(f"v_mov_b32 {vr(VPG)}, {FLAG+8}")
    a(f"s_mov_b32 {sr(S_CNT)}, 1")
    a.label("L_sloop")
    if cfg.KT:
        a(f"s_cmp_gt_u32 {sr(S_CNT)}, {niter - cfg.KT}")
        a(f"s_cselect_b32 {sr(S_POL)}, {cfg.NT}, {sr(S_POL)}")
        assert cfg.NT in VERS
    if cfg.CTL:
        a(f"v_mov_b32 {vr(VPG+1)}, {sr(S_CNT)}")
        a(f"s_cmp_lg_u32 {sr(S_WAVE)}, 0")
        a("s_cbranch_scc1 L_nopg")
        a(f"ds_write_b32 {vr(VPG)}, {vr(VPG+1)}")
        a.label("L_nopg")
    for vi, n in enumerate(VERS[:-1]):
        a(f"s_cmp_eq_u32 {sr(S_POL)}, {n}")
        a(f"s_cbranch_scc1 L_ver{n}")
    order = [VERS[-1]] + VERS[:-1]
    for vi, n in enumerate(order):
        a.label(f"L_ver{n}")
        win["n"] = n
        state["m0"] = None
        for uu in range(32):
            issue(target + uu)
            if cfg.CTL and uu == 28:
                a(f"ds_read_b32 {vr(VPG+2)}, {vr(VPG)} offset:4")
            piece(U0 + uu//4, uu % 4)
        if vi < len(order) - 1:
            a("s_branch L_snext")
    a.label("L_snext")
    if cfg.CTL:
        a(f"v_readfirstlane_b32 {sr(S_POL)}, {vr(VPG+2)}")
    a(f"s_add_u32 {sr(S_CNT)}, {sr(S_CNT)}, 1")
    a(f"s_cmp_le_u32 {sr(S_CNT)}, {niter}")
    a("s_cbranch_scc1 L_sloop")
    stamp(a, cfg, 3)
    groups_allreduce(a, VL, VX, "v_add_f32")
    a(f"v_and_b32 {vr(VX)}, 15, {vr(V_LANE)}")
    a(f"v_lshrrev_b32 {vr(VX+1)}, 4, {vr(V_LANE)}")
    a(f"v_lshlrev_b32 {vr(VX)}, 5, {vr(VX)}")
    a(f"v_lshl_add_u32 {vr(VX)}, {vr(VX+1)}, 4, {vr(VX)}")
    a(f"s_lshl_b32 {sr(S_T0)}, {sr(S_WAVE)}, 9")
    a(f"s_add_u32 {sr(S_T0)}, {sr(S_T0)}, {OPART}")
    a(f"v_add_u32 {vr(VX)}, {sr(S_T0)}, {vr(VX)}")
    a(f"s_lshl_b32 {sr(S_T0)}, {sr(S_WAVE)}, 2")
    a(f"s_add_u32 {sr(S_T0)}, {sr(S_T0)}, {ML}")
    a(f"v_mov_b32 {vr(VX+2)}, {sr(S_T0)}")
    a("s_mov_b32 exec_hi, 0")
    a(f"ds_write_b128 {vr(VX)}, {vr(VO,4)}")
    a("s_mov_b64 exec, 1")
    a(f"ds_write_b32 {vr(VX+2)}, {vr(VM)}")
    a(f"ds_write_b32 {vr(VX+2)}, {vr(VL)} offset:16")
    a("s_mov_b64 exec, -1")
    a("s_waitcnt lgkmcnt(0)")
    a("s_barrier")
    if cfg.POLL:
        a(f"s_cmp_eq_u32 {sr(S_H)}, {sr(S_B) if cfg.REDB else cfg.RED_H}")
        a("s_cbranch_scc1 L_reducer")
    else:
        a("s_waitcnt vmcnt(0)")
    a("s_branch L_tail")

def gen_stream_sr(a, cfg):
    N = cfg.N
    LAG = 3 + N
    PR = cfg.PROUNDS
    assert PR in (0, 2, 4)
    V_LANE=0
    VK=2
    VV=6
    VVD=7
    VKR=8
    VVR=12
    VT=13
    VQ=16
    VA=32
    VS=48
    VP=80
    VAO=82
    VO=92
    VM=90; VL=91; VAL=96; VMC=97
    SELE=98; SELO=102
    VX=106
    VMX=14
    VD=112
    set_poll_regs(112)
    S_SOF = S_OFFB

    a.label("L_stream")
    if cfg.PRIO: a(f"s_setprio {cfg.PRIO}")
    a(f"s_lshl_b32 {sr(S_OFFA)}, {sr(S_WAVE)}, 13")
    a(f"s_lshl_b32 {sr(S_RING)}, {sr(S_WAVE)}, 15")
    a(f"v_lshrrev_b32 {vr(VT)}, 4, {vr(V_LANE)}")
    a(f"v_and_b32 {vr(VT+1)}, 15, {vr(V_LANE)}")
    for j in range(4):
        a(f"v_add_u32 {vr(VK+j)}, {4*j}, {vr(VT)}")
        a(f"v_xor_b32 {vr(VK+j)}, {vr(VK+j)}, {vr(VT+1)}")
        a(f"v_lshlrev_b32 {vr(VK+j)}, 4, {vr(VK+j)}")
        a(f"v_lshl_add_u32 {vr(VK+j)}, {vr(VT)}, 8, {vr(VK+j)}")
    a(f"s_lshl_b32 {sr(S_T0)}, {sr(S_WG)}, 20")
    a("s_waitcnt lgkmcnt(0)")
    srd(a, S_SRDK, S_K, S_T0, 0x100000)
    srd(a, S_SRDV, S_V, S_T0, 0x100000)

    NP = 64
    def load_desc(i):
        if i < NP:
            p = i % 32; r = p//8; half = (p % 8)//4; j = p % 4
            if i < 32: return dict(kind='K', j=j, r=r, half=half, slot=p//4, last=False, req=None)
            return dict(kind='VD', j=j, r=r, half=half, dst=VD+32*r+16*half+4*j, last=(i == 63), req=None)
        ip = i - NP
        g = ip//4; j = ip % 4; p = ip % 64
        pp = p % 32; r = pp//8; half = (pp % 8)//4
        req = g if ip < 32 else 16 + (ip-32)//4
        return dict(kind='K' if p < 32 else 'V', j=j, r=r, half=half, slot=g % 8, last=(p == 63), req=req)
    def unit_desc(u):
        if u < 16:
            if u < 8: return dict(k=True, r=u//2, half=u % 2, slot=u, need=4*u+3, direct=None)
            q = u - 8
            return dict(k=False, r=q//2, half=q % 2, slot=None, need=32+4*q+3, direct=VD+32*(q//2)+16*(q % 2))
        g = u - 16; q = g % 16
        qq = q % 8
        return dict(k=(q < 8), r=qq//2, half=qq % 2, slot=g % 8, need=NP+4*g+3, direct=None)

    state = {"m0": None, "sof": None}
    win = {"n": N}
    def issue(i, wait=True):
        d = load_desc(i)
        key = (d['r'], d['half'])
        if state["sof"] != key or d['j'] == 0:
            a(f"s_add_u32 {sr(S_SOF)}, {sr(S_OFFA)}, {d['r']*32768 + d['half']*4096}")
            state["sof"] = key
        if d['kind'] != 'VD' and state["m0"] != d['slot']:
            a(f"s_add_u32 m0, {sr(S_RING)}, {d['slot']*4096}")
            state["m0"] = d['slot']
            if not wait: a("s_nop 0")
        if wait: a(f"s_waitcnt vmcnt({win['n']-1})")
        j = d['j']
        if d['kind'] == 'K':
            a(f"buffer_load_dwordx4 {vr(VK+j)}, {sr(S_SRDK,4)}, {sr(S_SOF)} offen offset:{j*1024} {cfg.KFLAGS} lds")
        elif d['kind'] == 'V':
            a(f"buffer_load_dwordx4 {vr(VV)}, {sr(S_SRDV,4)}, {sr(S_SOF)} offen offset:{j*1024} {cfg.VFLAGS} lds")
        else:
            a(f"buffer_load_dwordx4 {vr(d['dst'],4)}, {vr(VVD)}, {sr(S_SRDV,4)}, {sr(S_SOF)} offen offset:{j*256} {cfg.VFLAGS}")
        if d['last']:
            a(f"s_add_u32 {sr(S_OFFA)}, {sr(S_OFFA)}, 131072")
            state["sof"] = None

    def piece(u, p):
        if cfg.NOCONS: return
        d = unit_desc(u)
        S = VS + 8*d['r'] + 4*d['half']
        if d['k']:
            slot = d['slot']*4096
            first = (d['r'] == 0 and d['half'] == 0)
            lastk = (d['r'] == 3 and d['half'] == 1)
            if p == 0:
                for t in range(4):
                    a(f"ds_read_b128 {vr(VA+4*t,4)}, {vr(VKR+t)} offset:{slot}")
            elif p == 1:
                for t in range(4):
                    a(f"s_waitcnt lgkmcnt({3-t})")
                    mfma(a, S, VA+4*t, VQ+4*t, None if t == 0 else S)
            elif p == 2:
                a("s_nop 7")
                if cfg.RSCORE:
                    for rnd in range(2):
                        a(f"v_cvt_pk_bf16_f32 {vr(VX)}, {vr(S)}, {vr(S+1)}")
                        a(f"v_cvt_pk_bf16_f32 {vr(VX+1)}, {vr(S+2)}, {vr(S+3)}")
                        a(f"v_lshlrev_b32 {vr(S)}, 16, {vr(VX)}")
                        a(f"v_and_b32 {vr(S+1)}, {sr(S_MASKHI)}, {vr(VX)}")
                        a(f"v_lshlrev_b32 {vr(S+2)}, 16, {vr(VX+1)}")
                        a(f"v_and_b32 {vr(S+3)}, {sr(S_MASKHI)}, {vr(VX+1)}")
                        if rnd == 0:
                            for e in range(4):
                                a(f"v_mul_f32 {vr(S+e)}, {sr(S_MASKHI+1)}, {vr(S+e)}")
                a(f"v_max3_f32 {vr(VMX)}, {vr(VM if first else VMX)}, {vr(S)}, {vr(S+1)}")
                a(f"v_max3_f32 {vr(VMX)}, {vr(VMX)}, {vr(S+2)}, {vr(S+3)}")
            elif p == 3 and lastk:
                groups_allreduce(a, VMX, VX, "v_max_f32")
                a(f"v_sub_f32 {vr(VAL)}, {vr(VM)}, {vr(VMX)}")
                a(f"v_mul_f32 {vr(VMC)}, {sr(S_C)}, {vr(VMX)}")
                a(f"v_mul_f32 {vr(VAL)}, {sr(S_C)}, {vr(VAL)}")
                a(f"v_mov_b32 {vr(VM)}, {vr(VMX)}")
                a(f"v_exp_f32 {vr(VAL)}, {vr(VAL)}")
                a("s_nop 0")
                for r in range(4):
                    a(f"v_mul_f32 {vr(VO+r)}, {vr(VO+r)}, {vr(VAL)}")
                a(f"v_mul_f32 {vr(VL)}, {vr(VL)}, {vr(VAL)}")
        else:
            direct = d['direct']
            if p == 0:
                if direct is None:
                    for r in range(4):
                        a(f"ds_read_b128 {vr(VA+4*r,4)}, {vr(VVR)} offset:{d['slot']*4096 + r*256}")
                for r in range(4):
                    a(f"v_fma_f32 {vr(S+r)}, {vr(S+r)}, {sr(S_C)}, -{vr(VMC)}")
                for r in range(4):
                    a(f"v_exp_f32 {vr(S+r)}, {vr(S+r)}")
                a("s_nop 0")
                a(f"v_cvt_pk_bf16_f32 {vr(VP)}, {vr(S)}, {vr(S+1)}")
                a(f"v_cvt_pk_bf16_f32 {vr(VP+1)}, {vr(S+2)}, {vr(S+3)}")
                a(f"v_add_f32 {vr(VX)}, {vr(S)}, {vr(S+1)}")
                a(f"v_add_f32 {vr(VX+1)}, {vr(S+2)}, {vr(S+3)}")
                a(f"v_add_f32 {vr(VL)}, {vr(VL)}, {vr(VX)}")
                a(f"v_add_f32 {vr(VL)}, {vr(VL)}, {vr(VX+1)}")
            r = p
            ao = VAO + 4*(r&1)
            diag(a, ao, VP + (r>>1), r&1, SELE, SELO)
            if direct is None:
                a(f"s_waitcnt lgkmcnt({3-r})")
                a("s_nop 0")
                mfma(a, VO, ao, VA+4*r, VO)
            else:
                a("s_nop 1")
                mfma(a, VO, ao, direct+4*r, VO)

    for i in range(N): issue(i, wait=False)
    if cfg.QFLAG: a("s_barrier")
    a(f"v_lshlrev_b32 {vr(VV)}, 4, {vr(V_LANE)}")
    a(f"v_lshlrev_b32 {vr(VVD)}, 10, {vr(VT)}")
    a(f"v_lshl_add_u32 {vr(VVD)}, {vr(VT+1)}, 4, {vr(VVD)}")
    for t in range(4):
        a(f"v_add_u32 {vr(VKR+t)}, {4*t}, {vr(VT)}")
        a(f"v_xor_b32 {vr(VKR+t)}, {vr(VKR+t)}, {vr(VT+1)}")
        a(f"v_lshlrev_b32 {vr(VKR+t)}, 4, {vr(VKR+t)}")
        a(f"v_lshl_add_u32 {vr(VKR+t)}, {vr(VT+1)}, 8, {vr(VKR+t)}")
        a(f"v_add_u32 {vr(VKR+t)}, {sr(S_RING)}, {vr(VKR+t)}")
    a(f"v_add_u32 {vr(VVR)}, {sr(S_RING)}, {vr(VVD)}")
    make_selectors(a, V_LANE, SELE, SELO, VX, VX+1, VX+2, VX+3)
    a(f"v_mov_b32 {vr(VM)}, 0xff800000")
    a(f"v_mov_b32 {vr(VL)}, 0")
    for r in range(4): a(f"v_mov_b32 {vr(VO+r)}, 0")
    a(f"s_mov_b32 {sr(S_C)}, {hexf(math.log2(math.e) if cfg.RSCORE else C_SCALE)}")
    a(f"s_mov_b32 {sr(S_MASKHI)}, 0xffff0000")
    a(f"s_mov_b32 {sr(S_MASKHI+1)}, {hexf(128 ** -0.5)}")

    RA = cfg.RUNAHEAD
    for i in range(N, RA):
        assert load_desc(i)['req'] is None
        issue(i)
        if cfg.PROSTAMP and i == N: a(f"s_memrealtime {sr(S_STAMP+4,2)}")
        if cfg.PROSTAMP and i == 20: a(f"s_memrealtime {sr(S_STAMP+8,2)}")
        if cfg.PROSTAMP and i == 40: a(f"s_memrealtime {sr(S_STAMP+10,2)}")
    stamp(a, cfg, 1)
    if cfg.QFLAG:
        a(f"v_mov_b32 {vr(VX)}, {FLAG+16}")
        a.label("L_qwait")
        a(f"ds_read_b32 {vr(VX+1)}, {vr(VX)}")
        a("s_waitcnt lgkmcnt(0)")
        a(f"v_readfirstlane_b32 {sr(S_T0)}, {vr(VX+1)}")
        a("s_nop 3")
        a(f"s_cmp_ge_u32 {sr(S_T0)}, 4")
        a("s_cbranch_scc1 L_qready")
        a("s_sleep 1")
        a("s_branch L_qwait")
        a.label("L_qready")
    else:
        a("s_barrier")
    stamp(a, cfg, 2)
    nxt = RA
    def try_issue(done_units):
        nonlocal nxt
        d = load_desc(nxt)
        if d['req'] is not None and d['req'] >= done_units: return False
        issue(nxt); nxt += 1
        return True
    a(f"v_lshlrev_b32 {vr(VX)}, 4, {vr(V_LANE)}")
    a(f"v_and_b32 {vr(VX)}, 0x1ff, {vr(VX)}")
    a(f"v_add_u32 {vr(VX)}, {QPART}, {vr(VX)}")
    for p in range(4):
        a(f"ds_read_b128 {vr(VA+4*p,4)}, {vr(VX)} offset:{p*512}")
    try_issue(0); try_issue(0)
    a("s_waitcnt lgkmcnt(0)")
    for e in range(4):
        a(f"v_add_f32 {vr(VA+e)}, {vr(VA+e)}, {vr(VA+4+e)}")
        a(f"v_add_f32 {vr(VA+8+e)}, {vr(VA+8+e)}, {vr(VA+12+e)}")
    for e in range(4):
        a(f"v_add_f32 {vr(VA+e)}, {vr(VA+e)}, {vr(VA+8+e)}")
    a(f"v_cvt_pk_bf16_f32 {vr(VA+4)}, {vr(VA)}, {vr(VA+1)}")
    a(f"v_cvt_pk_bf16_f32 {vr(VA+5)}, {vr(VA+2)}, {vr(VA+3)}")
    a(f"v_lshlrev_b32 {vr(VX+1)}, 3, {vr(V_LANE)}")
    a(f"v_and_b32 {vr(VX+1)}, 0xff, {vr(VX+1)}")
    a(f"s_lshl_b32 {sr(S_T0)}, {sr(S_WAVE)}, 8")
    a(f"s_add_u32 {sr(S_T0)}, {sr(S_T0)}, {QBF}")
    a(f"v_add_u32 {vr(VX+1)}, {sr(S_T0)}, {vr(VX+1)}")
    a(f"ds_write_b64 {vr(VX+1)}, {vr(VA+4,2)}")
    a(f"v_lshrrev_b32 {vr(VX+2)}, 4, {vr(V_LANE)}")
    a(f"v_lshlrev_b32 {vr(VX+2)}, 4, {vr(VX+2)}")
    a(f"v_add_u32 {vr(VX+2)}, {sr(S_T0)}, {vr(VX+2)}")
    a("s_waitcnt lgkmcnt(0)")
    for t in range(4):
        a(f"ds_read_b128 {vr(VQ+4*t,4)}, {vr(VX+2)} offset:{t*64}")
    try_issue(0)
    a("s_waitcnt lgkmcnt(0)")
    VERS = [int(x) for x in cfg.VERS.split(',')]
    ramp = [tuple(int(y) for y in x.split(':')) for x in cfg.RAMP.split(',')] if cfg.RAMP else []
    NMAX = max([v for v in VERS if v != 99] + [N] + [r[0] for r in ramp])
    U0 = 32
    target = NP + 64 + NMAX + 3
    u = 0
    while u < U0 or nxt < target:
        d = unit_desc(u) if u < U0 else None
        if d is not None and nxt - 1 - N >= d['need']:
            ahead = (nxt - 1 - N) - d['need']
            for p in range(4):
                piece(u, p)
                want = (ahead < 2) or (p in (1, 3))
                if want and nxt < target:
                    try_issue(u)
            u += 1
        else:
            if not (nxt < target and try_issue(u)):
                raise RuntimeError(f"schedule deadlock u={u} nxt={nxt}")
    assert nxt == target and u == U0, (nxt, target, u, U0)
    if cfg.POLL:
        poll_setup(a, cfg)
    niter = (128 - U0)//16
    S_POL = S_TS
    VPG = 224
    if cfg.WPOL:
        wp = [int(x) for x in cfg.WPOL.split(',')]
        a(f"s_mov_b32 {sr(S_POL)}, {wp[0]}")
        for w in range(1, 4):
            a(f"s_cmp_eq_u32 {sr(S_WAVE)}, {w}")
            a(f"s_cselect_b32 {sr(S_POL)}, {wp[w]}, {sr(S_POL)}")
    else:
        a(f"s_mov_b32 {sr(S_POL)}, {N}")
    if cfg.CTL:
        a(f"v_mov_b32 {vr(VPG)}, {FLAG+8}")
    if cfg.LOOPSTAMP:
        a(f"s_memrealtime {sr(S_STAMP+4,2)}")
        a("s_waitcnt lgkmcnt(0)")
    a(f"s_mov_b32 {sr(S_CNT)}, 1")
    if cfg.ALIGN: a(f".p2align {cfg.ALIGN}")
    a.label("L_sloop")
    if cfg.KT:
        a(f"s_cmp_gt_u32 {sr(S_CNT)}, {niter - cfg.KT}")
        a(f"s_cselect_b32 {sr(S_POL)}, {cfg.NT}, {sr(S_POL)}")
        assert cfg.NT in VERS
    if cfg.CTL:
        a(f"v_mov_b32 {vr(VPG+1)}, {sr(S_CNT)}")
        a(f"s_cmp_lg_u32 {sr(S_WAVE)}, 0")
        a("s_cbranch_scc1 L_nopg")
        a(f"ds_write_b32 {vr(VPG)}, {vr(VPG+1)}")
        a.label("L_nopg")
    for vi, n in enumerate(VERS[:-1]):
        a(f"s_cmp_eq_u32 {sr(S_POL)}, {n}")
        a(f"s_cbranch_scc1 L_ver{n}")
    order = [VERS[-1]] + VERS[:-1]
    for vi, n in enumerate(order):
        if cfg.ALIGN and vi > 0: a(f".p2align {cfg.ALIGN}")
        a.label(f"L_ver{n}")
        win["n"] = n
        state["m0"] = None; state["sof"] = None
        final = (cfg.KT == 1 and n == cfg.NT and cfg.NT != N and not cfg.CTL)
        for uu in range(64):
            if n == 99:
                win["n"] = [w for (w, f) in ramp if f <= uu][-1]
            actual = target + uu + 64*(niter-1)
            if final and actual >= 512:
                if uu % 4 == 0:
                    need = unit_desc(U0 + uu//4)['need'] + 64*(niter-1)
                    assert need <= 511
                    a(f"s_waitcnt vmcnt({511 - need})")
            else:
                issue(target + uu)
            piece(U0 + uu//4, uu % 4)
        if vi < len(order) - 1:
            a("s_branch L_snext")
    a.label("L_snext")
    if cfg.LOOPSTAMP:
        a(f"s_cmp_eq_u32 {sr(S_CNT)}, {cfg.LOOPSTAMP}")
        a("s_cbranch_scc0 L_nols")
        a(f"s_memrealtime {sr(S_STAMP+2,2)}")
        a("s_waitcnt lgkmcnt(0)")
        a.label("L_nols")
    if cfg.CTL:
        a(f"v_readfirstlane_b32 {sr(S_POL)}, {vr(VPG+2)}")
    a(f"s_add_u32 {sr(S_CNT)}, {sr(S_CNT)}, 1")
    a(f"s_cmp_le_u32 {sr(S_CNT)}, {niter}")
    a("s_cbranch_scc1 L_sloop")
    stamp(a, cfg, 3)
    groups_allreduce(a, VL, VX, "v_add_f32")
    a(f"v_and_b32 {vr(VX)}, 15, {vr(V_LANE)}")
    a(f"v_lshrrev_b32 {vr(VX+1)}, 4, {vr(V_LANE)}")
    a(f"v_lshlrev_b32 {vr(VX)}, 5, {vr(VX)}")
    a(f"v_lshl_add_u32 {vr(VX)}, {vr(VX+1)}, 4, {vr(VX)}")
    a(f"s_lshl_b32 {sr(S_T0)}, {sr(S_WAVE)}, 9")
    a(f"s_add_u32 {sr(S_T0)}, {sr(S_T0)}, {OPART}")
    a(f"v_add_u32 {vr(VX)}, {sr(S_T0)}, {vr(VX)}")
    a(f"s_lshl_b32 {sr(S_T0)}, {sr(S_WAVE)}, 2")
    a(f"s_add_u32 {sr(S_T0)}, {sr(S_T0)}, {ML}")
    a(f"v_mov_b32 {vr(VX+2)}, {sr(S_T0)}")
    a("s_mov_b32 exec_hi, 0")
    a(f"ds_write_b128 {vr(VX)}, {vr(VO,4)}")
    a("s_mov_b64 exec, 1")
    a(f"ds_write_b32 {vr(VX+2)}, {vr(VM)}")
    a(f"ds_write_b32 {vr(VX+2)}, {vr(VL)} offset:16")
    a("s_mov_b64 exec, -1")
    a("s_waitcnt lgkmcnt(0)")
    a("s_barrier")
    if cfg.POLL:
        a(f"s_cmp_eq_u32 {sr(S_H)}, {sr(S_B) if cfg.REDB else cfg.RED_H}")
        a("s_cbranch_scc1 L_reducer")
    else:
        a("s_waitcnt vmcnt(0)")
    a("s_branch L_tail")

def gen_side(a, cfg):
    V_LANE=0
    VF=2
    VXR=12
    VT=17
    SELE=28; SELO=32
    VAO=36
    VACC=44
    VH0=64; VH1=68
    VXA=72
    VOF=90
    VW=96
    VWA=VACC
    WF = cfg.WFLAGS
    D = cfg.DEPTH
    S_ROT = S_CNT
    S_SO = S_OFFA

    a.label("L_side")
    a(f"s_sub_u32 {sr(S_SW)}, {sr(S_WAVE)}, 4")
    a("s_waitcnt lgkmcnt(0)")
    if cfg.QFLAG:
        a(f"v_mov_b32 {vr(VT+4)}, {FLAG+4}")
        a(f"v_mov_b32 {vr(VT+5)}, 0")
        a(f"ds_write_b32 {vr(VT+4)}, {vr(VT+5)}")
        a(f"ds_write_b32 {vr(VT+4)}, {vr(VT+5)} offset:12")
    a(f"s_mul_i32 {sr(S_T0)}, {sr(S_B)}, 1152")
    srd(a, S_SRDK, S_X, S_T0, 1152)
    a(f"v_lshlrev_b32 {vr(VT)}, 2, {vr(V_LANE)}")
    for k in range(5):
        a(f"buffer_load_dword {vr(VXR+k)}, {vr(VT)}, {sr(S_SRDK,4)}, 0 offen offset:{256*k}")
    a(f"s_lshl_b32 {sr(S_T0)}, {sr(S_H)}, 8")
    a(f"s_sub_u32 {sr(S_T1)}, {576*8192}, {sr(S_T0)}")
    srd(a, S_SRDV, S_WQ, S_T0, sr(S_T1))
    if cfg.ROT:
        a(f"s_mul_i32 {sr(S_ROT)}, {sr(S_B)}, 18")
        a(f"s_lshr_b32 {sr(S_ROT)}, {sr(S_ROT)}, 3")
        a(f"s_lshl_b32 {sr(S_ROT)}, {sr(S_ROT)}, 1")
    else:
        a(f"s_mov_b32 {sr(S_ROT)}, 0")
    a(f"v_lshrrev_b32 {vr(VT+1)}, 4, {vr(V_LANE)}")
    a(f"v_and_b32 {vr(VT+2)}, 15, {vr(V_LANE)}")
    a(f"v_mul_u32_u24 {vr(VT+3)}, 36, {vr(VT+1)}")
    a(f"s_mul_i32 {sr(S_T2)}, {sr(S_SW)}, 144")
    a(f"v_add_u32 {vr(VT+3)}, {sr(S_T2)}, {vr(VT+3)}")
    a(f"v_lshlrev_b32 {vr(VOF)}, 13, {vr(VT+3)}")
    a(f"v_lshl_add_u32 {vr(VOF)}, {vr(VT+2)}, 4, {vr(VOF)}")
    def adv(step, n):
        a(f"s_add_u32 {sr(S_SO)}, {sr(S_SO)}, {step}")
        a(f"s_cmp_ge_u32 {sr(S_SO)}, {step*n}")
        a(f"s_cselect_b32 {sr(S_SO)}, 0, {sr(S_SO)}")
    a(f"s_lshl_b32 {sr(S_SO)}, {sr(S_ROT)}, 13")
    DQ = cfg.DQ
    def wq_load(t):
        a(f"buffer_load_dwordx4 {vr(VW+4*t,4)}, {vr(VOF)}, {sr(S_SRDV,4)}, {sr(S_SO)} offen {WF}")
        if t < 35: adv(8192, 36)
    for t in range(DQ): wq_load(t)
    if cfg.QFLAG:
        a("s_waitcnt lgkmcnt(0)")
        a("s_barrier")
    a(f"s_mov_b32 {sr(S_T3)}, 9216")
    a(f"v_mul_lo_u32 {vr(VOF+1)}, {vr(VT+3)}, {sr(S_T3)}")
    a(f"v_lshl_add_u32 {vr(VOF+1)}, {vr(VT+2)}, 4, {vr(VOF+1)}")
    a(f"v_add_u32 {vr(VOF+2)}, 256, {vr(VOF+1)}")
    a(f"v_mov_b32 {vr(VT+4)}, 0x7f000000")
    a(f"v_cmp_gt_u32 vcc, 2, {vr(VT+2)}")
    a("s_nop 1")
    a(f"v_cndmask_b32 {vr(VOF+2)}, {vr(VT+4)}, {vr(VOF+2)}, vcc")
    make_selectors(a, V_LANE, SELE, SELO, VT+4, VT+5, VT+6, VT+7)
    a(f"s_mov_b32 {sr(S_MASKHI)}, 0xffff0000")
    a(f"s_mul_i32 {sr(S_T0)}, {sr(S_SW)}, 2560")
    a(f"s_add_u32 {sr(S_T0)}, {sr(S_T0)}, {XPRIV}")
    a(f"s_movk_i32 {sr(S_T1)}, 3641")
    for k in range(5):
        a(f"v_add_u32 {vr(VT+4)}, {64*k}, {vr(V_LANE)}")
        a(f"v_mul_u32_u24 {vr(VT+5)}, {sr(S_T1)}, {vr(VT+4)}")
        a(f"v_lshrrev_b32 {vr(VT+5)}, 16, {vr(VT+5)}")
        a(f"v_mul_u32_u24 {vr(VT+5)}, 72, {vr(VT+5)}")
        a(f"v_lshl_add_u32 {vr(VWA+k)}, {vr(VT+4)}, 2, {vr(VT+5)}")
        a(f"v_add_u32 {vr(VWA+k)}, {sr(S_T0)}, {vr(VWA+k)}")
    a(f"s_mul_i32 {sr(S_T1)}, {sr(S_SW)}, 576")
    a(f"s_add_u32 {sr(S_T0)}, {sr(S_T0)}, {sr(S_T1)}")
    a(f"s_lshl_b32 {sr(S_T1)}, {sr(S_ROT)}, 1")
    a(f"s_add_u32 {sr(S_T0)}, {sr(S_T0)}, {sr(S_T1)}")
    a(f"v_mul_u32_u24 {vr(VOF+4)}, 144, {vr(VT+1)}")
    a(f"v_add_u32 {vr(VOF+4)}, {sr(S_T0)}, {vr(VOF+4)}")
    a(f"s_mov_b32 {sr(S_EX)}, -1")
    a(f"s_mov_b32 {sr(S_EX+1)}, 0")
    a(f"v_mov_b32 {vr(VT+4)}, {FLAG+4}")
    a(f"v_mov_b32 {vr(VT+5)}, 0")
    if not cfg.QFLAG: a(f"ds_write_b32 {vr(VT+4)}, {vr(VT+5)}")
    a(f"ds_write_b32 {vr(VT+4)}, {vr(VT+5)} offset:4")
    a(f"v_mov_b32 {vr(VT+5)}, {cfg.N}")
    a(f"ds_write_b32 {vr(VT+4)}, {vr(VT+5)} offset:8")

    def layernorm():
        s = VT+8; t = VT+9; u = VT+10
        a(f"v_add_f32 {vr(s)}, {vr(VF)}, {vr(VF+1)}")
        for k in range(2,10): a(f"v_add_f32 {vr(s)}, {vr(s)}, {vr(VF+k)}")
        allreduce_sum(a, s, t)
        a(f"v_mul_f32 {vr(s)}, {hexf(1.0/576)}, {vr(s)}")
        a(f"v_sub_f32 {vr(t)}, {vr(VF)}, {vr(s)}")
        a(f"v_mul_f32 {vr(u)}, {vr(t)}, {vr(t)}")
        for k in range(1,10):
            a(f"v_sub_f32 {vr(t)}, {vr(VF+k)}, {vr(s)}")
            if k >= 8:
                a(f"v_cndmask_b32 {vr(t)}, 0, {vr(t)}, {sr(S_EX,2)}")
            a(f"v_fmac_f32 {vr(u)}, {vr(t)}, {vr(t)}")
        allreduce_sum(a, u, t)
        a(f"v_mul_f32 {vr(u)}, {hexf(1.0/576)}, {vr(u)}")
        a(f"v_cvt_pk_bf16_f32 {vr(t)}, {vr(s)}, {vr(u)}")
        a(f"v_lshlrev_b32 {vr(s)}, 16, {vr(t)}")
        a(f"v_and_b32 {vr(u)}, {sr(S_MASKHI)}, {vr(t)}")
        a(f"v_add_f32 {vr(u)}, {hexf(1e-5)}, {vr(u)}")
        a(f"v_cvt_pk_bf16_f32 {vr(u)}, {vr(u)}, {vr(u)}")
        a(f"v_and_b32 {vr(u)}, {sr(S_MASKHI)}, {vr(u)}")
        a(f"v_sqrt_f32 {vr(u)}, {vr(u)}")
        a("s_nop 0")
        a(f"v_cvt_pk_bf16_f32 {vr(u)}, {vr(u)}, {vr(u)}")
        a(f"v_and_b32 {vr(u)}, {sr(S_MASKHI)}, {vr(u)}")
        a(f"v_rcp_f32 {vr(u)}, {vr(u)}")
        for k in range(5):
            A0 = VF+2*k; A1 = A0+1
            a(f"v_sub_f32 {vr(A0)}, {vr(A0)}, {vr(s)}")
            a(f"v_sub_f32 {vr(A1)}, {vr(A1)}, {vr(s)}")
            a(f"v_cvt_pk_bf16_f32 {vr(t)}, {vr(A0)}, {vr(A1)}")
            a(f"v_lshlrev_b32 {vr(A0)}, 16, {vr(t)}")
            a(f"v_and_b32 {vr(A1)}, {sr(S_MASKHI)}, {vr(t)}")
            a(f"v_mul_f32 {vr(A0)}, {vr(A0)}, {vr(u)}")
            a(f"v_mul_f32 {vr(A1)}, {vr(A1)}, {vr(u)}")
            a(f"v_cvt_pk_bf16_f32 {vr(VXR+k)}, {vr(A0)}, {vr(A1)}")
            a(f"v_lshlrev_b32 {vr(A0)}, 16, {vr(VXR+k)}")
            a(f"v_and_b32 {vr(A1)}, {sr(S_MASKHI)}, {vr(VXR+k)}")
            if k == 4: a("s_mov_b32 exec_hi, 0")
            a(f"ds_write_b32 {vr(VWA+k)}, {vr(VXR+k)}")
            a(f"ds_write_b32 {vr(VWA+k)}, {vr(VXR+k)} offset:72")
            if k == 4: a("s_mov_b64 exec, -1")
        a(f"v_cndmask_b32 {vr(VF+8)}, 0, {vr(VF+8)}, {sr(S_EX,2)}")
        a(f"v_cndmask_b32 {vr(VF+9)}, 0, {vr(VF+9)}, {sr(S_EX,2)}")
        a("s_waitcnt lgkmcnt(0)")
        for k in range(9):
            a(f"ds_read2_b32 {vr(VXA+2*k,2)}, {vr(VOF+4)} offset0:{2*k} offset1:{2*k+1}")

    a(f"s_waitcnt vmcnt({DQ})")
    for k in range(5):
        a(f"v_lshlrev_b32 {vr(VF+2*k)}, 16, {vr(VXR+k)}")
        a(f"v_and_b32 {vr(VF+2*k+1)}, {sr(S_MASKHI)}, {vr(VXR+k)}")
    layernorm()
    a("s_waitcnt lgkmcnt(0)")
    for t in range(36):
        ao = VAO + 4*(t&1)
        diag(a, ao, VXA + (t>>1), t&1, SELE, SELO)
        a(f"s_waitcnt vmcnt({min(DQ, 36-t)-1})")
        a("s_nop 0")
        mfma(a, VH0, ao, VW+4*t, None if t == 0 else VH0)
        if t + DQ < 36: wq_load(t + DQ)
    a(f"v_and_b32 {vr(VT)}, 15, {vr(V_LANE)}")
    a(f"v_lshrrev_b32 {vr(VT+1)}, 4, {vr(V_LANE)}")
    a(f"v_lshlrev_b32 {vr(VT)}, 5, {vr(VT)}")
    a(f"v_lshl_add_u32 {vr(VOF+5)}, {vr(VT+1)}, 4, {vr(VT)}")
    a(f"s_lshl_b32 {sr(S_T0)}, {sr(S_SW)}, 9")
    a(f"s_add_u32 {sr(S_T0)}, {sr(S_T0)}, {QPART}")
    a(f"v_add_u32 {vr(VT)}, {sr(S_T0)}, {vr(VOF+5)}")
    a("s_nop 4")
    a("s_mov_b32 exec_hi, 0")
    a(f"ds_write_b128 {vr(VT)}, {vr(VH0,4)}")
    a("s_mov_b64 exec, -1")
    a("s_waitcnt lgkmcnt(0)")
    stamp(a, cfg, 1)
    if cfg.QFLAG:
        a(f"v_mov_b32 {vr(VT)}, {FLAG+16}")
        a(f"v_mov_b32 {vr(VT+1)}, 1")
        a("s_mov_b64 exec, 1")
        a(f"ds_add_u32 {vr(VT)}, {vr(VT+1)}")
        a("s_mov_b64 exec, -1")
    else:
        a("s_barrier")
    if cfg.NOSIDE:
        a("s_barrier")
        a("s_branch L_tail")

    if cfg.POLL:
        a(f"s_cmp_lg_u32 {sr(S_SW)}, 0")
        a("s_cbranch_scc1 L_noreset")
        a(f"s_mul_i32 {sr(S_T0)}, {sr(S_WG)}, 2304")
        srd(a, S_SRD2, S_WS, S_T0, 2304)
        a(f"v_lshlrev_b32 {vr(VT)}, 4, {vr(V_LANE)}")
        if cfg.REDB:
            a(f"s_cmp_eq_u32 {sr(S_H)}, {sr(S_B)}")
            a(f"s_cselect_b32 {sr(S_T1)}, 0, -1")
            for e in range(4): a(f"v_mov_b32 {vr(VW+e)}, {sr(S_T1)}")
        else:
            for e in range(4): a(f"v_mov_b32 {vr(VW+e)}, -1")
        for k in range(3):
            a(f"buffer_store_dwordx4 {vr(VW,4)}, {vr(VT)}, {sr(S_SRD2,4)}, 0 offen offset:{1024*k} sc1")
        a("s_waitcnt vmcnt(0)")
        if cfg.STARTSIG == 'atomic':
            a(f"s_lshl_b32 {sr(S_T0)}, {sr(S_B)}, 5")
            a(f"v_mov_b32 {vr(VT)}, {sr(S_T0)}")
            a(f"v_mov_b32 {vr(VT+1)}, 1")
            a("s_mov_b64 exec, 1")
            a(f"global_atomic_add {vr(VT)}, {vr(VT+1)}, {sr(S_DBG,2)} offset:4")
            a("s_mov_b64 exec, -1")
            a("s_waitcnt vmcnt(0)")
        elif cfg.STARTSIG == 'byte':
            a(f"v_mov_b32 {vr(VT)}, {sr(S_WG)}")
            a(f"v_mov_b32 {vr(VT+1)}, 1")
            a("s_mov_b64 exec, 1")
            a(f"global_store_byte {vr(VT)}, {vr(VT+1)}, {sr(S_DBG,2)} sc1")
            a("s_mov_b64 exec, -1")
            a("s_waitcnt vmcnt(0)")
        a.label("L_noreset")

    def paced(units, compute, D=D):
        flat = [(u, f) for u, fs in enumerate(units) for f in fs]
        last = {}
        for idx, (u, f) in enumerate(flat): last[u] = idx
        done = 0
        nu = len(units)
        for idx, (u, f) in enumerate(flat):
            if idx >= D: a(f"s_waitcnt vmcnt({D-1})")
            f()
            landed = idx - D if idx >= D else -1
            while done < nu and last[done] <= landed:
                compute(done); done += 1
        n = len(flat)
        while done < nu:
            a(f"s_waitcnt vmcnt({n-1-last[done]})")
            compute(done); done += 1

    if cfg.MMAP:
        a(f"s_and_b32 {sr(S_M)}, {sr(S_H)}, 7")
        a(f"s_lshl_b32 {sr(S_M)}, {sr(S_M)}, 2")
        a(f"s_lshr_b32 {sr(S_T0)}, {sr(S_H)}, 3")
        a(f"s_add_u32 {sr(S_M)}, {sr(S_M)}, {sr(S_T0)}")
    else:
        a(f"s_mov_b32 {sr(S_M)}, {sr(S_H)}")
    a(f"s_mul_i32 {sr(S_T0)}, {sr(S_M)}, 288")
    a(f"s_sub_u32 {sr(S_T1)}, {576*9216}, {sr(S_T0)}")
    srd(a, S_SRDV, S_W1, S_T0, sr(S_T1))
    layernorm()
    a(f"s_mul_i32 {sr(S_SO)}, {sr(S_ROT)}, 9216")
    a("s_waitcnt lgkmcnt(0)")
    NB = D + 2
    if not cfg.XTRA:
        def w1_unit(t):
            b = VW + 8*(t % NB)
            def f0(): a(f"buffer_load_dwordx4 {vr(b,4)}, {vr(VOF+1)}, {sr(S_SRDV,4)}, {sr(S_SO)} offen {WF}")
            def f1():
                a(f"buffer_load_dwordx4 {vr(b+4,4)}, {vr(VOF+2)}, {sr(S_SRDV,4)}, {sr(S_SO)} offen {WF}")
                if t < 35: adv(9216, 36)
            return [f0, f1]
        def w1_comp(t):
            b = VW + 8*(t % NB)
            ao = VAO + 4*(t&1)
            diag(a, ao, VXA + (t>>1), t&1, SELE, SELO)
            a("s_nop 1")
            mfma(a, VH0, ao, b, None if t == 0 else VH0)
            mfma(a, VH1, ao, b+4, None if t == 0 else VH1)
        paced([w1_unit(t) for t in range(36)], w1_comp)
    else:
        XW = 160; XY = 180; XA = 185; XT = 193; XE = 201; XE4 = 202
        a(f"v_lshrrev_b32 {vr(XT)}, 1, {vr(V_LANE)}")
        a(f"s_mul_i32 {sr(S_T2)}, {sr(S_SW)}, 144")
        a(f"v_add_u32 {vr(XT+1)}, {sr(S_T2)}, {vr(XT)}")
        a(f"s_movk_i32 {sr(S_T3)}, 9216")
        a(f"v_mul_lo_u32 {vr(XE)}, {vr(XT+1)}, {sr(S_T3)}")
        a(f"v_and_b32 {vr(XT+1)}, 1, {vr(V_LANE)}")
        a(f"v_lshl_add_u32 {vr(XE)}, {vr(XT+1)}, 4, {vr(XE)}")
        a(f"v_add_u32 {vr(XE)}, 256, {vr(XE)}")
        a(f"v_mov_b32 {vr(XT+1)}, 0x7f000000")
        a(f"v_cndmask_b32 {vr(XE4)}, {vr(XT+1)}, {vr(XE)}, {sr(S_EX,2)}")
        a(f"s_mul_i32 {sr(S_T0)}, {sr(S_SW)}, {2560+576}")
        a(f"s_add_u32 {sr(S_T0)}, {sr(S_T0)}, {XPRIV}")
        a(f"s_movk_i32 {sr(S_T1)}, 3641")
        a(f"v_and_b32 {vr(XT+2)}, 1, {vr(XT)}")
        a(f"v_lshlrev_b32 {vr(XT+2)}, 1, {vr(XT+2)}")
        a(f"v_add_u32 {vr(XT+2)}, {sr(S_T0)}, {vr(XT+2)}")
        a(f"v_lshrrev_b32 {vr(XT+3)}, 2, {vr(V_LANE)}")
        for m in range(5):
            a(f"v_add_u32 {vr(XT+4)}, {16*m}, {vr(XT+3)}")
            a(f"v_mul_u32_u24 {vr(XT+5)}, {sr(S_T1)}, {vr(XT+4)}")
            a(f"v_lshrrev_b32 {vr(XT+5)}, 16, {vr(XT+5)}")
            a(f"v_mul_u32_u24 {vr(XT+5)}, 72, {vr(XT+5)}")
            a(f"v_lshl_add_u32 {vr(XT+5)}, {vr(XT+4)}, 2, {vr(XT+5)}")
            a(f"v_add_u32 {vr(XT+5)}, {vr(XT+5)}, {vr(XT+2)}")
            a(f"ds_read_u16 {vr(XY+m)}, {vr(XT+5)}")
        a("s_waitcnt lgkmcnt(0)")
        for m in range(5):
            a(f"v_lshlrev_b32 {vr(XY+m)}, 16, {vr(XY+m)}")
        a(f"v_cndmask_b32 {vr(XY+4)}, 0, {vr(XY+4)}, {sr(S_EX,2)}")
        def x_unit(m):
            def f():
                a(f"s_mov_b32 {sr(S_T3)}, {32*m*9216}")
                a(f"buffer_load_dwordx4 {vr(XW+4*m,4)}, {vr(XE4 if m == 4 else XE)}, {sr(S_SRDV,4)}, {sr(S_T3)} offen {WF}")
            return [f]
        def x_comp(m):
            for k in range(4):
                a(f"v_lshlrev_b32 {vr(XT)}, 16, {vr(XW+4*m+k)}")
                a(f"v_and_b32 {vr(XT+1)}, {sr(S_MASKHI)}, {vr(XW+4*m+k)}")
                if m == 0:
                    a(f"v_mul_f32 {vr(XA+2*k)}, {vr(XY+m)}, {vr(XT)}")
                    a(f"v_mul_f32 {vr(XA+2*k+1)}, {vr(XY+m)}, {vr(XT+1)}")
                else:
                    a(f"v_fmac_f32 {vr(XA+2*k)}, {vr(XY+m)}, {vr(XT)}")
                    a(f"v_fmac_f32 {vr(XA+2*k+1)}, {vr(XY+m)}, {vr(XT+1)}")
        def w1_unit(t):
            b = VW + 4*(t % NB)
            def f0():
                a(f"buffer_load_dwordx4 {vr(b,4)}, {vr(VOF+1)}, {sr(S_SRDV,4)}, {sr(S_SO)} offen {WF}")
                if t < 35: adv(9216, 36)
            return [f0]
        def w1_comp(t):
            b = VW + 4*(t % NB)
            ao = VAO + 4*(t&1)
            diag(a, ao, VXA + (t>>1), t&1, SELE, SELO)
            a("s_nop 1")
            mfma(a, VH0, ao, b, None if t == 0 else VH0)
        paced([x_unit(m) for m in range(5)] + [w1_unit(t) for t in range(36)],
              lambda u: x_comp(u) if u < 5 else w1_comp(u-5))
        for r_ in (2, 4, 8):
            a("s_nop 1")
            for e in range(8):
                a(f"v_add_f32_dpp {vr(XA+e)}, {vr(XA+e)}, {vr(XA+e)} row_ror:{r_} row_mask:0xf bank_mask:0xf")
        for op in ("v_permlane16_swap_b32", "v_permlane32_swap_b32"):
            for e in range(8):
                a(f"v_mov_b32 {vr(XW+e)}, {vr(XA+e)}")
            a("s_nop 1")
            for e in range(8):
                a(f"{op} {vr(XA+e)}, {vr(XW+e)}")
            a("s_nop 1")
            for e in range(8):
                a(f"v_add_f32 {vr(XA+e)}, {vr(XA+e)}, {vr(XW+e)}")
        for e in range(8):
            a(f"v_mov_b32 {vr(XW+e)}, {vr(XA+e)}")
    a(f"s_mul_i32 {sr(S_T0)}, {sr(S_M)}, 288")
    srd(a, S_SRDK, S_B1, S_T0, 288)
    a(f"v_lshrrev_b32 {vr(VT+1)}, 4, {vr(V_LANE)}")
    a(f"v_mul_u32_u24 {vr(VT+2)}, 9, {vr(VT+1)}")
    a(f"s_mul_i32 {sr(S_T2)}, {sr(S_SW)}, 36")
    a(f"v_add_u32 {vr(VT+2)}, {sr(S_T2)}, {vr(VT+2)}")
    a(f"v_lshlrev_b32 {vr(VT+3)}, 1, {vr(VT+2)}")
    for t in range(9):
        a(f"buffer_load_ushort {vr(VF+t)}, {vr(VT+3)}, {sr(S_SRDK,4)}, 0 offen offset:{2*t}")
    a(f"s_lshl_b32 {sr(S_T0)}, {sr(S_SW)}, 10")
    a(f"s_add_u32 {sr(S_T0)}, {sr(S_T0)}, {HPART}")
    a(f"v_add_u32 {vr(VT)}, {sr(S_T0)}, {vr(VOF+5)}")
    a("s_mov_b32 exec_hi, 0")
    a(f"ds_write_b128 {vr(VT)}, {vr(VH0,4)}")
    if not cfg.XTRA:
        a(f"ds_write_b128 {vr(VT)}, {vr(VH1,4)} offset:512")
    else:
        a(f"v_lshlrev_b32 {vr(VT+4)}, 5, {vr(V_LANE)}")
        a(f"v_add_u32 {vr(VT+4)}, {sr(S_T0)}, {vr(VT+4)}")
        a("s_mov_b64 exec, 3")
        a(f"ds_write_b128 {vr(VT+4)}, {vr(160,4)} offset:512")
        a(f"ds_write_b128 {vr(VT+4)}, {vr(164,4)} offset:528")
    a("s_mov_b64 exec, -1")
    a(f"s_mul_i32 {sr(S_T0)}, {sr(S_M)}, {144*1152}")
    srd(a, S_SRDV, S_W2, S_T0, 144*1152)
    a(f"v_and_b32 {vr(VT+4)}, 15, {vr(V_LANE)}")
    a(f"s_movk_i32 {sr(S_T3)}, 1152")
    a(f"v_mul_lo_u32 {vr(VOF)}, {vr(VT+2)}, {sr(S_T3)}")
    a(f"v_lshl_add_u32 {vr(VOF)}, {vr(VT+4)}, 4, {vr(VOF)}")
    a(f"v_add_u32 {vr(VOF+1)}, 1024, {vr(VOF)}")
    a(f"v_mov_b32 {vr(VT+5)}, 0x7f000000")
    a(f"v_cmp_gt_u32 vcc, 8, {vr(VT+4)}")
    a("s_nop 1")
    a(f"v_cndmask_b32 {vr(VOF+1)}, {vr(VT+5)}, {vr(VOF+1)}, vcc")
    a(f"v_lshlrev_b32 {vr(VOF+2)}, 2, {vr(VT+2)}")
    a(f"v_add_u32 {vr(VOF+2)}, {HPART}, {vr(VOF+2)}")
    a(f"v_mov_b32 {vr(VT)}, {FLAG+4}")
    a(f"v_mov_b32 {vr(VT+1)}, 1")
    a("s_waitcnt lgkmcnt(0)")
    a("s_mov_b64 exec, 1")
    a(f"ds_add_u32 {vr(VT)}, {vr(VT+1)}")
    a("s_mov_b64 exec, -1")
    a.label("L_hsync")
    a(f"ds_read_b32 {vr(VT+1)}, {vr(VT)}")
    a("s_waitcnt lgkmcnt(0)")
    a(f"v_readfirstlane_b32 {sr(S_T0)}, {vr(VT+1)}")
    a("s_nop 3")
    a(f"s_cmp_ge_u32 {sr(S_T0)}, 4")
    a("s_cbranch_scc1 L_hsync_done")
    a("s_sleep 4")
    a("s_branch L_hsync")
    a.label("L_hsync_done")
    HS = VXA
    for t in range(9):
        a(f"ds_read_b32 {vr(HS+t)}, {vr(VOF+2)} offset:{4*t}")
        a(f"ds_read_b32 {vr(VT)}, {vr(VOF+2)} offset:{1024+4*t}")
        a(f"ds_read_b32 {vr(VT+1)}, {vr(VOF+2)} offset:{2048+4*t}")
        a(f"ds_read_b32 {vr(VT+2)}, {vr(VOF+2)} offset:{3072+4*t}")
        a("s_waitcnt lgkmcnt(0)")
        a(f"v_add_f32 {vr(HS+t)}, {vr(HS+t)}, {vr(VT)}")
        a(f"v_add_f32 {vr(VT+1)}, {vr(VT+1)}, {vr(VT+2)}")
        a(f"v_add_f32 {vr(HS+t)}, {vr(HS+t)}, {vr(VT+1)}")
    a("s_waitcnt vmcnt(0)")
    K1 = -2.0*math.log2(math.e)*math.sqrt(2.0/math.pi)
    a(f"s_mov_b32 {sr(S_T0)}, {hexf(0.044715)}")
    a(f"s_mov_b32 {sr(S_T1)}, {hexf(K1)}")
    for t in range(9):
        x = HS+t
        a(f"v_cvt_pk_bf16_f32 {vr(x)}, {vr(x)}, {vr(x)}")
        a(f"v_and_b32 {vr(x)}, {sr(S_MASKHI)}, {vr(x)}")
        a(f"v_lshlrev_b32 {vr(VF+t)}, 16, {vr(VF+t)}")
        a(f"v_add_f32 {vr(x)}, {vr(x)}, {vr(VF+t)}")
        a(f"v_cvt_pk_bf16_f32 {vr(x)}, {vr(x)}, {vr(x)}")
        a(f"v_and_b32 {vr(x)}, {sr(S_MASKHI)}, {vr(x)}")
        a(f"v_mul_f32 {vr(VT)}, {vr(x)}, {vr(x)}")
        a(f"v_mul_f32 {vr(VT)}, {vr(VT)}, {vr(x)}")
        a(f"v_fma_f32 {vr(VT)}, {vr(VT)}, {sr(S_T0)}, {vr(x)}")
        a(f"v_mul_f32 {vr(VT)}, {sr(S_T1)}, {vr(VT)}")
        a(f"v_exp_f32 {vr(VT)}, {vr(VT)}")
        a("s_nop 0")
        a(f"v_add_f32 {vr(VT)}, 1.0, {vr(VT)}")
        a(f"v_rcp_f32 {vr(VT)}, {vr(VT)}")
        a("s_nop 0")
        a(f"v_mul_f32 {vr(x)}, {vr(x)}, {vr(VT)}")
    HP = VF
    for k in range(4):
        a(f"v_cvt_pk_bf16_f32 {vr(HP+k)}, {vr(HS+2*k)}, {vr(HS+2*k+1)}")
    a(f"v_cvt_pk_bf16_f32 {vr(HP+4)}, {vr(HS+8)}, {vr(HS+8)}")

    def out_unit(t, base):
        fs = []
        for cg in range(4):
            def f(cg=cg):
                if cg == 0:
                    if cfg.ROT2 and t < 8:
                        a(f"s_and_b32 {sr(S_T3)}, {sr(S_B)}, {cfg.ROT2}")
                        a(f"s_xor_b32 {sr(S_T3)}, {sr(S_T3)}, {t}")
                        a(f"s_mul_i32 {sr(S_T3)}, {sr(S_T3)}, 1152")
                    else:
                        a(f"s_movk_i32 {sr(S_T3)}, {t*1152}")
                a(f"buffer_load_dwordx4 {vr(base+4*cg,4)}, {vr(VOF)}, {sr(S_SRDV,4)}, {sr(S_T3)} offen offset:{256*cg} {WF}")
            fs.append(f)
        fs.append(lambda: a(f"buffer_load_dwordx4 {vr(base+16,4)}, {vr(VOF+1)}, {sr(S_SRDV,4)}, {sr(S_T3)} offen {WF}"))
        return fs
    def out_comp(t, base, src, first):
        ao = VAO + 4*(t&1)
        diag(a, ao, src + (t>>1), t&1, SELE, SELO)
        a("s_nop 1")
        for cg in range(5):
            mfma(a, VACC+4*cg, ao, base+4*cg, None if first else VACC+4*cg)
    NB2 = 3
    paced([out_unit(t, VW + 20*(t % NB2)) for t in range(9)],
          lambda t: out_comp(t, VW + 20*(t % NB2), HP, t == 0), D=cfg.D2 or D)
    a(f"s_mul_i32 {sr(S_T0)}, {sr(S_H)}, {128*1152}")
    srd(a, S_SRDV, S_WO, S_T0, 128*1152)
    a(f"v_lshrrev_b32 {vr(VT+1)}, 4, {vr(V_LANE)}")
    a(f"v_and_b32 {vr(VT+4)}, 15, {vr(V_LANE)}")
    a(f"v_lshlrev_b32 {vr(VT+2)}, 3, {vr(VT+1)}")
    a(f"s_lshl_b32 {sr(S_T2)}, {sr(S_SW)}, 5")
    a(f"v_add_u32 {vr(VT+2)}, {sr(S_T2)}, {vr(VT+2)}")
    a(f"s_movk_i32 {sr(S_T3)}, 1152")
    a(f"v_mul_lo_u32 {vr(VOF)}, {vr(VT+2)}, {sr(S_T3)}")
    a(f"v_lshl_add_u32 {vr(VOF)}, {vr(VT+4)}, 4, {vr(VOF)}")
    a(f"v_add_u32 {vr(VOF+1)}, 1024, {vr(VOF)}")
    a(f"v_mov_b32 {vr(VT+5)}, 0x7f000000")
    a(f"v_cmp_gt_u32 vcc, 8, {vr(VT+4)}")
    a("s_nop 1")
    a(f"v_cndmask_b32 {vr(VOF+1)}, {vr(VT+5)}, {vr(VOF+1)}, vcc")
    paced([out_unit(t, VW + 20*t) for t in range(8)], lambda t: None, D=cfg.D3 or D)
    a(f"v_lshlrev_b32 {vr(VOF+2)}, 2, {vr(VT+2)}")
    a(f"v_add_u32 {vr(VOF+2)}, {OPART}, {vr(VOF+2)}")
    a(f"s_mul_i32 {sr(S_T0)}, {sr(S_SW)}, 2560")
    a(f"s_add_u32 {sr(S_T0)}, {sr(S_T0)}, {OUTP}")
    a(f"v_add_u32 {vr(VOF+3)}, {sr(S_T0)}, {vr(VOF+5)}")
    a(f"v_mov_b32 {vr(VOF+4)}, {ML}")
    a(f"s_mov_b32 {sr(S_C)}, {hexf(math.log2(math.e) if (cfg.RSCORE and cfg.SR) else C_SCALE)}")
    a("s_waitcnt vmcnt(0)")
    if cfg.POLL:
        a(f"s_cmp_lg_u32 {sr(S_H)}, {sr(S_B) if cfg.REDB else cfg.RED_H}")
        a("s_cbranch_scc1 L_started")
        a(f"s_cmp_lg_u32 {sr(S_SW)}, 0")
        a("s_cbranch_scc1 L_started")
        if cfg.STARTSIG == 'atomic':
            a(f"s_lshl_b32 {sr(S_T0)}, {sr(S_B)}, 5")
            a(f"v_mov_b32 {vr(VT)}, {sr(S_T0)}")
            a(f"s_mov_b32 {sr(S_T1)}, 200000")
            a.label("L_startchk")
            a(f"s_sub_u32 {sr(S_T1)}, {sr(S_T1)}, 1")
            a("s_cbranch_scc1 L_started")
            a(f"global_load_dword {vr(VT+1)}, {vr(VT)}, {sr(S_DBG,2)} offset:4 sc1")
            a("s_waitcnt vmcnt(0)")
            a(f"v_readfirstlane_b32 {sr(S_T0)}, {vr(VT+1)}")
            a("s_nop 3")
            a(f"s_cmp_ge_u32 {sr(S_T0)}, 32")
            a("s_cbranch_scc1 L_started")
            a("s_sleep 8")
            a("s_branch L_startchk")
        elif cfg.STARTSIG == 'byte':
            a(f"s_lshl_b32 {sr(S_T0)}, {sr(S_B)}, 5")
            a(f"v_and_b32 {vr(VT)}, 7, {vr(V_LANE)}")
            a(f"v_lshlrev_b32 {vr(VT)}, 2, {vr(VT)}")
            a(f"v_add_u32 {vr(VT)}, {sr(S_T0)}, {vr(VT)}")
            a(f"s_mov_b32 {sr(S_T1)}, 200000")
            a(f"s_mov_b32 {sr(S_T2)}, 0x01010101")
            a.label("L_startchk")
            a(f"s_sub_u32 {sr(S_T1)}, {sr(S_T1)}, 1")
            a("s_cbranch_scc1 L_started")
            a(f"global_load_dword {vr(VT+1)}, {vr(VT)}, {sr(S_DBG,2)} sc1")
            a("s_waitcnt vmcnt(0)")
            a(f"v_cmp_ne_u32 vcc, {sr(S_T2)}, {vr(VT+1)}")
            a("s_cbranch_vccz L_started")
            a("s_sleep 8")
            a("s_branch L_startchk")
        a.label("L_started")
    if cfg.CTL:
        T1, T2, nA, nB, nC = [int(x) for x in cfg.CTL.split(',')]
        niter = (128 - (4*cfg.PROUNDS + 8*cfg.K0))//8
        a(f"s_cmp_lg_u32 {sr(S_SW)}, 0")
        a("s_cbranch_scc1 L_ctl_done")
        a(f"v_mov_b32 {vr(VT)}, {FLAG+8}")
        a(f"ds_read_b32 {vr(VT+1)}, {vr(VT)}")
        a("s_waitcnt lgkmcnt(0)")
        a(f"v_readfirstlane_b32 {sr(S_T3)}, {vr(VT+1)}")
        a.label("L_ctl")
        a(f"s_cmp_ge_u32 {sr(S_T3)}, {niter - cfg.CTLSTOP}")
        a("s_cbranch_scc1 L_ctl_done")
        a("s_sleep 2")
        a(f"ds_read_b32 {vr(VT+1)}, {vr(VT)}")
        a("s_waitcnt lgkmcnt(0)")
        a(f"v_readfirstlane_b32 {sr(S_T2)}, {vr(VT+1)}")
        a("s_nop 3")
        a(f"s_cmp_eq_u32 {sr(S_T2)}, {sr(S_T3)}")
        a("s_cbranch_scc1 L_ctl")
        a(f"s_mov_b32 {sr(S_T3)}, {sr(S_T2)}")
        a(f"s_and_b32 {sr(S_T0)}, {sr(S_T3)}, 7")
        a(f"s_lshl_b32 {sr(S_T0)}, {sr(S_T0)}, 5")
        a(f"s_lshr_b32 {sr(S_T1)}, {sr(S_T3)}, 3")
        a(f"s_lshl_b32 {sr(S_T1)}, {sr(S_T1)}, 2")
        a(f"s_add_u32 {sr(S_T0)}, {sr(S_T0)}, {sr(S_T1)}")
        a(f"v_mov_b32 {vr(VT+2)}, {sr(S_T0)}")
        a(f"v_mov_b32 {vr(VT+3)}, 1")
        a("s_mov_b64 exec, 1")
        a(f"global_atomic_add {vr(VT+4)}, {vr(VT+2)}, {vr(VT+3)}, {sr(S_DBG,2)} offset:8 sc0")
        a("s_mov_b64 exec, -1")
        a("s_waitcnt vmcnt(0)")
        a(f"v_readfirstlane_b32 {sr(S_T0)}, {vr(VT+4)}")
        a("s_nop 3")
        a(f"s_mov_b32 {sr(S_T1)}, {nC}")
        a(f"s_cmp_lt_u32 {sr(S_T0)}, {T2}")
        a(f"s_cselect_b32 {sr(S_T1)}, {nB}, {sr(S_T1)}")
        a(f"s_cmp_lt_u32 {sr(S_T0)}, {T1}")
        a(f"s_cselect_b32 {sr(S_T1)}, {nA}, {sr(S_T1)}")
        a(f"v_mov_b32 {vr(VT+2)}, {sr(S_T1)}")
        a(f"ds_write_b32 {vr(VT)}, {vr(VT+2)} offset:4")
        a("s_branch L_ctl")
        a.label("L_ctl_done")
        a("s_waitcnt lgkmcnt(0)")
    stamp(a, cfg, 2)
    a("s_barrier")
    stamp(a, cfg, 3)
    MM = VXA; LL = VXA+4
    a(f"ds_read_b128 {vr(MM,4)}, {vr(VOF+4)}")
    a(f"ds_read_b128 {vr(LL,4)}, {vr(VOF+4)} offset:16")
    OR = [2, 10, 18, 80]
    for w in range(4):
        a(f"ds_read_b128 {vr(OR[w],4)}, {vr(VOF+2)} offset:{w*512}")
        a(f"ds_read_b128 {vr(OR[w]+4,4)}, {vr(VOF+2)} offset:{w*512+16}")
    a("s_waitcnt lgkmcnt(8)")
    mx = 26; tt = 27
    a(f"v_max3_f32 {vr(mx)}, {vr(MM)}, {vr(MM+1)}, {vr(MM+2)}")
    a(f"v_max_f32 {vr(mx)}, {vr(mx)}, {vr(MM+3)}")
    for w in range(4):
        a(f"v_sub_f32 {vr(MM+w)}, {vr(MM+w)}, {vr(mx)}")
    for w in range(4):
        a(f"v_mul_f32 {vr(MM+w)}, {sr(S_C)}, {vr(MM+w)}")
    for w in range(4):
        a(f"v_exp_f32 {vr(MM+w)}, {vr(MM+w)}")
    a("s_nop 0")
    a(f"v_mul_f32 {vr(tt)}, {vr(MM)}, {vr(LL)}")
    for w in range(1,4):
        a(f"v_fmac_f32 {vr(tt)}, {vr(MM+w)}, {vr(LL+w)}")
    a(f"v_rcp_f32 {vr(tt)}, {vr(tt)}")
    a("s_nop 0")
    for w in range(4):
        a(f"v_mul_f32 {vr(MM+w)}, {vr(MM+w)}, {vr(tt)}")
    a("s_waitcnt lgkmcnt(0)")
    for e in range(8):
        a(f"v_mul_f32 {vr(OR[0]+e)}, {vr(OR[0]+e)}, {vr(MM)}")
    for w in range(1,4):
        for e in range(8):
            a(f"v_fmac_f32 {vr(OR[0]+e)}, {vr(OR[w]+e)}, {vr(MM+w)}")
    OPK = 10
    for k in range(4):
        a(f"v_cvt_pk_bf16_f32 {vr(OPK+k)}, {vr(OR[0]+2*k)}, {vr(OR[0]+2*k+1)}")
    diag(a, VAO, OPK, 0, SELE, SELO)
    diag(a, VAO+4, OPK, 1, SELE, SELO)
    for t in range(8):
        ao = VAO + 4*(t&1)
        for cg in range(5):
            mfma(a, VACC+4*cg, ao, VW + 20*t + 4*cg, VACC+4*cg)
        if t + 2 < 8:
            diag(a, ao, OPK + ((t+2)>>1), (t+2)&1, SELE, SELO)
    a("s_mov_b32 exec_hi, 0")
    a("s_nop 2")
    for cg in range(5):
        a(f"ds_write_b128 {vr(VOF+3)}, {vr(VACC+4*cg,4)} offset:{512*cg}")
    a("s_mov_b64 exec, -1")
    a("s_waitcnt lgkmcnt(0)")


PR1=96; PR2=160; POWN=168; PXB=184; PVO=188; PVO0=189; PV2A=190; PV2B=191; PLA=192; POUT=193; PT=194
def set_poll_regs(base):
    global PR1, PR2, POWN, PXB, PVO, PVO0, PV2A, PV2B, PLA, POUT, PT
    PR1=base; PR2=base+64; POWN=base+72; PXB=base+88; PVO=base+92; PVO0=base+93; PV2A=base+94; PV2B=base+95; PLA=base+96; POUT=base+97; PT=base+98

def poll_setup(a, cfg):
    assert cfg.REDB or cfg.RED_H == 0
    L = 0
    a(f"s_mul_i32 {sr(S_T0)}, {sr(S_B)}, {32*2304}")
    srd(a, S_SRD2, S_WS, S_T0, 32*2304)
    a(f"s_mul_i32 {sr(S_T2)}, {sr(S_WAVE)}, 36")
    a(f"v_and_b32 {vr(PT)}, 31, {vr(L)}")
    a(f"v_add_u32 {vr(PT)}, {sr(S_T2)}, {vr(PT)}")
    a(f"v_lshlrev_b32 {vr(PVO)}, 4, {vr(PT)}")
    a(f"v_lshrrev_b32 {vr(PT+1)}, 5, {vr(L)}")
    a(f"s_mov_b32 {sr(S_T3)}, {16*2304}")
    a(f"v_mul_lo_u32 {vr(PT+1)}, {vr(PT+1)}, {sr(S_T3)}")
    a(f"v_add_u32 {vr(PVO)}, {vr(PVO)}, {vr(PT+1)}")
    a(f"v_mov_b32 {vr(PT+2)}, 0x7f000000")
    a(f"v_cmp_gt_u32 vcc, 32, {vr(L)}")
    a("s_nop 1")
    if cfg.REDB: a(f"v_mov_b32 {vr(PVO0)}, {vr(PVO)}")
    else: a(f"v_cndmask_b32 {vr(PVO0)}, {vr(PVO)}, {vr(PT+2)}, vcc")
    a(f"v_and_b32 {vr(PT)}, 3, {vr(L)}")
    a(f"v_add_u32 {vr(PT)}, {sr(S_T2)}, {vr(PT)}")
    a(f"v_add_u32 {vr(PT)}, 32, {vr(PT)}")
    a(f"v_lshlrev_b32 {vr(PV2A)}, 4, {vr(PT)}")
    a(f"v_lshrrev_b32 {vr(PT+1)}, 2, {vr(L)}")
    a(f"s_movk_i32 {sr(S_T3)}, {2*2304}")
    a(f"v_mul_lo_u32 {vr(PT+1)}, {vr(PT+1)}, {sr(S_T3)}")
    a(f"v_add_u32 {vr(PV2A)}, {vr(PV2A)}, {vr(PT+1)}")
    a(f"v_add_u32 {vr(PV2B)}, 2304, {vr(PV2A)}")
    a(f"v_cmp_gt_u32 vcc, 4, {vr(L)}")
    a("s_nop 1")
    if not cfg.REDB: a(f"v_cndmask_b32 {vr(PV2A)}, {vr(PV2A)}, {vr(PT+2)}, vcc")
    a(f"v_add_u32 {vr(PT)}, {sr(S_T2)}, {vr(L)}")
    a(f"v_lshlrev_b32 {vr(PLA)}, 4, {vr(PT)}")
    a(f"v_add_u32 {vr(PLA)}, {OUTP}, {vr(PLA)}")
    a(f"v_lshlrev_b32 {vr(POUT)}, 3, {vr(PT)}")
    a(f"v_cmp_gt_u32 vcc, 36, {vr(L)}")
    a("s_nop 1")
    a(f"v_cndmask_b32 {vr(POUT)}, {vr(PT+2)}, {vr(POUT)}, vcc")
    a(f"s_mul_i32 {sr(S_T0)}, {sr(S_B)}, 1152")
    srd(a, S_SRD3, S_X, S_T0, 1152)
    a(f"buffer_load_dwordx2 {vr(PXB,2)}, {vr(POUT)}, {sr(S_SRD3,4)}, 0 offen")
    srd(a, S_SRD3, S_B2, None, 1152)
    a(f"buffer_load_dwordx2 {vr(PXB+2,2)}, {vr(POUT)}, {sr(S_SRD3,4)}, 0 offen")

def gen_poll_tail(a, cfg):
    V_LANE = 0
    a("s_barrier")
    stamp(a, cfg, 4)
    a("s_branch L_done")
    a.label("L_tail")
    a(f"s_lshl_b32 {sr(S_T0)}, {sr(S_WAVE)}, 10")
    a(f"v_lshl_add_u32 v2, {vr(V_LANE)}, 4, {sr(S_T0)}")
    a(f"v_add_u32 v3, {OUTP}, v2")
    a(f"s_mul_i32 {sr(S_T0)}, {sr(S_WG)}, 2304")
    srd(a, S_SRD3, S_WS, S_T0, 2304)
    a("s_barrier")
    stamp(a, cfg, 4)
    a(f"s_cmp_ge_u32 {sr(S_WAVE)}, 3")
    a("s_cbranch_scc1 L_done")
    for sw in range(4):
        a(f"ds_read_b128 {vr(8+4*sw,4)}, v3 offset:{sw*2560}")
    a("s_waitcnt lgkmcnt(2)")
    a("v_pk_add_f32 v[8:9], v[8:9], v[12:13]")
    a("v_pk_add_f32 v[10:11], v[10:11], v[14:15]")
    a("s_waitcnt lgkmcnt(0)")
    a("v_pk_add_f32 v[16:17], v[16:17], v[20:21]")
    a("v_pk_add_f32 v[18:19], v[18:19], v[22:23]")
    a("v_pk_add_f32 v[8:9], v[8:9], v[16:17]")
    a("v_pk_add_f32 v[10:11], v[10:11], v[18:19]")
    a(f"buffer_store_dwordx4 v[8:11], v2, {sr(S_SRD3,4)}, 0 offen {cfg.PUBF}")
    a("s_branch L_done")

    def pload(s):
        if s < 16:
            a(f"s_mov_b32 {sr(S_T0)}, {s*2304}")
            a(f"buffer_load_dwordx4 {vr(PR1+4*s,4)}, {vr(PVO0 if s == 0 else PVO)}, {sr(S_SRD2,4)}, {sr(S_T0)} offen {cfg.POLF}")
        else:
            a(f"buffer_load_dwordx4 {vr(PR2+4*(s-16),4)}, {vr(PV2A if s == 16 else PV2B)}, {sr(S_SRD2,4)}, 0 offen {cfg.POLF}")
    def reg(s): return PR1+4*s if s < 16 else PR2+4*(s-16)
    a.label("L_reducer")
    for s_ in range(18): pload(s_)
    a("s_barrier")
    stamp(a, cfg, 4)
    for sw in range(4):
        a(f"ds_read_b128 {vr(POWN+4*sw,4)}, {vr(PLA)} offset:{sw*2560}")
    a("s_waitcnt lgkmcnt(0)")
    for e in range(4):
        a(f"v_add_f32 {vr(POWN+e)}, {vr(POWN+e)}, {vr(POWN+4+e)}")
        a(f"v_add_f32 {vr(POWN+8+e)}, {vr(POWN+8+e)}, {vr(POWN+12+e)}")
    for e in range(4):
        a(f"v_add_f32 {vr(POWN+e)}, {vr(POWN+e)}, {vr(POWN+8+e)}")
    a(f"s_mov_b32 {sr(S_T1)}, 0xffff0000")
    for src in (PXB, PXB+2):
        a(f"v_lshlrev_b32 {vr(PT)}, 16, {vr(src)}")
        a(f"v_and_b32 {vr(PT+1)}, {sr(S_T1)}, {vr(src)}")
        a(f"v_lshlrev_b32 {vr(PT+2)}, 16, {vr(src+1)}")
        a(f"v_and_b32 {vr(PT+3)}, {sr(S_T1)}, {vr(src+1)}")
        for e in range(4):
            a(f"v_add_f32 {vr(POWN+e)}, {vr(POWN+e)}, {vr(PT+e)}")
    a(f"s_mul_i32 {sr(S_T0)}, {sr(S_B)}, 1152")
    srd(a, S_SRD3, S_OUT, S_T0, 1152)
    a(f"s_mov_b32 {sr(S_CNT)}, 200000")
    TS = PT + 4
    TQ = TS + 32
    a.label("L_poll")
    a(f"s_sub_u32 {sr(S_CNT)}, {sr(S_CNT)}, 1")
    a("s_cbranch_scc1 L_pollok")
    if cfg.POLLDBG:
        a(f"s_mov_b32 {sr(S_STAMP+2)}, {sr(S_STAMP+8)}")
        a(f"s_mov_b32 {sr(S_STAMP+3)}, {sr(S_STAMP+9)}")
        a(f"s_memrealtime {sr(S_STAMP+4,2)}")
    a("s_waitcnt vmcnt(0)")
    if cfg.POLLDBG:
        a(f"s_memrealtime {sr(S_STAMP+8,2)}")
        a("s_waitcnt lgkmcnt(0)")
    for k in range(0, 32, 2):
        a(f"v_pk_add_f32 {vr(TS+k,2)}, {vr(PR1+k,2)}, {vr(PR1+k+32,2)}")
    for k in (0, 2):
        a(f"v_pk_add_f32 {vr(TQ+k,2)}, {vr(PR2+k,2)}, {vr(PR2+4+k,2)}")
    for step in (16, 8, 4):
        for k in range(0, step, 2):
            a(f"v_pk_add_f32 {vr(TS+k,2)}, {vr(TS+k,2)}, {vr(TS+k+step,2)}")
    a(f"v_pk_add_f32 {vr(TS+4,2)}, {vr(TS,2)}, {vr(TS+2,2)}")
    a(f"v_pk_add_f32 {vr(TS+6,2)}, {vr(TQ,2)}, {vr(TQ+2,2)}")
    a(f"v_pk_add_f32 {vr(TS+4,2)}, {vr(TS+4,2)}, {vr(TS+6,2)}")
    a(f"v_cmp_u_f32 vcc, {vr(TS+4)}, {vr(TS+5)}")
    a("s_cbranch_vccz L_pollok")
    MASK = [16,18,20,22,24,26,28,30, 84,86,88,90,92,94,96,98,100, 4]
    tt = [PT, PT+1, PT+2, PT+3]
    for s_ in range(18):
        r = reg(s_); t0 = tt[s_ % 4]
        a(f"v_max3_u32 {vr(t0)}, {vr(r)}, {vr(r+1)}, {vr(r+2)}")
        a(f"v_max_u32 {vr(t0)}, {vr(t0)}, {vr(r+3)}")
        a(f"v_cmp_eq_u32 {sr(MASK[s_],2)}, -1, {vr(t0)}")
    a(f"s_mov_b32 {sr(S_T2)}, 0")
    a("s_nop 2")
    for s_ in range(18):
        a(f"s_cmp_lg_u64 {sr(MASK[s_],2)}, 0")
        a(f"s_cbranch_scc1 L_rl{s_}")
        a.label(f"L_rb{s_}")
    a(f"s_cmp_lg_u32 {sr(S_T2)}, 0")
    a("s_cbranch_scc1 L_poll")
    a("s_branch L_pollok")
    for s_ in range(18):
        a.label(f"L_rl{s_}")
        a(f"s_mov_b64 exec, {sr(MASK[s_],2)}")
        if s_ < 16:
            a(f"s_mov_b32 {sr(S_T0)}, {s_*2304}")
            a(f"buffer_load_dwordx4 {vr(PR1+4*s_,4)}, {vr(PVO0 if s_ == 0 else PVO)}, {sr(S_SRD2,4)}, {sr(S_T0)} offen {cfg.POLF}")
        else:
            a(f"buffer_load_dwordx4 {vr(PR2+4*(s_-16),4)}, {vr(PV2A if s_ == 16 else PV2B)}, {sr(S_SRD2,4)}, 0 offen {cfg.POLF}")
        a("s_mov_b64 exec, -1")
        a(f"s_mov_b32 {sr(S_T2)}, 1")
        a(f"s_branch L_rb{s_}")
    a.label("L_pollok")
    stamp(a, cfg, 5)
    if cfg.POLLDBG:
        a(f"s_sub_u32 {sr(S_STAMP+6)}, 200000, {sr(S_CNT)}")
        a(f"s_mov_b32 {sr(S_STAMP+7)}, 0")
    for e in range(4):
        a(f"v_mov_b32 {vr(PR1+e)}, {vr(TS+e)}")
        a(f"v_mov_b32 {vr(PR2+e)}, {vr(TQ+e)}")
    for e in range(4):
        a(f"v_mov_b32 {vr(PR1+8+e)}, {vr(PR1+e)}")
    a("s_nop 1")
    for e in range(4):
        a(f"v_permlane32_swap_b32 {vr(PR1+e)}, {vr(PR1+8+e)}")
    for r_ in (4, 8):
        for e in range(4):
            a(f"v_add_f32_dpp {vr(PR2+e)}, {vr(PR2+e)}, {vr(PR2+e)} row_ror:{r_} row_mask:0xf bank_mask:0xf")
    for e in range(4):
        a(f"v_add_f32 {vr(PR1+e)}, {vr(PR1+e)}, {vr(PR1+8+e)}")
    for e in range(4):
        a(f"v_mov_b32 {vr(PR2+4+e)}, {vr(PR2+e)}")
    a("s_nop 1")
    for e in range(4):
        a(f"v_permlane16_swap_b32 {vr(PR2+e)}, {vr(PR2+4+e)}")
    a("s_nop 1")
    for e in range(4):
        a(f"v_add_f32 {vr(PR2+e)}, {vr(PR2+e)}, {vr(PR2+4+e)}")
    for e in range(4):
        a(f"v_mov_b32 {vr(PR2+4+e)}, {vr(PR2+e)}")
    a("s_nop 1")
    for e in range(4):
        a(f"v_permlane32_swap_b32 {vr(PR2+e)}, {vr(PR2+4+e)}")
    a("s_nop 1")
    for e in range(4):
        a(f"v_add_f32 {vr(PR2+e)}, {vr(PR2+e)}, {vr(PR2+4+e)}")
    a(f"v_cmp_gt_u32 vcc, 32, {vr(V_LANE)}")
    a(f"s_mov_b32 {sr(S_T1)}, 0xffff0000")
    a("s_nop 0")
    for e in range(4):
        a(f"v_cndmask_b32 {vr(PR1+e)}, {vr(PR2+e)}, {vr(PR1+e)}, vcc")
    for e in range(4):
        a(f"v_add_f32 {vr(PR1+e)}, {vr(PR1+e)}, {vr(POWN+e)}")
    a(f"v_cvt_pk_bf16_f32 {vr(PR1)}, {vr(PR1)}, {vr(PR1+1)}")
    a(f"v_cvt_pk_bf16_f32 {vr(PR1+1)}, {vr(PR1+2)}, {vr(PR1+3)}")
    a(f"buffer_store_dwordx2 {vr(PR1,2)}, {vr(POUT)}, {sr(S_SRD3,4)}, 0 offen")

def gen_tail(a, cfg):
    V_LANE=0
    if cfg.POLL:
        gen_poll_tail(a, cfg)
    else:
        gen_count_tail(a, cfg)
    gen_end(a, cfg)

def gen_count_tail(a, cfg):
    V_LANE=0
    a.label("L_tail")
    a("s_barrier")
    stamp(a, cfg, 4)
    a(f"s_cmp_lg_u32 {sr(S_WAVE)}, 0")
    a("s_cbranch_scc1 L_wait_flag")
    a(f"v_lshlrev_b32 v2, 4, {vr(V_LANE)}")
    a(f"v_add_u32 v3, {OUTP}, v2")
    for k in range(3):
        for sw in range(4):
            a(f"ds_read_b128 {vr(8+16*k+4*sw,4)}, v3 offset:{sw*2560 + k*1024}")
    a(f"s_mul_i32 {sr(S_T0)}, {sr(S_WG)}, 2304")
    srd(a, S_SRD2, S_WS, S_T0, 2304)
    for k in range(3):
        a(f"s_waitcnt lgkmcnt({8-4*k})")
        b = 8+16*k
        for e in range(4):
            a(f"v_add_f32 {vr(b+e)}, {vr(b+e)}, {vr(b+4+e)}")
            a(f"v_add_f32 {vr(b+8+e)}, {vr(b+8+e)}, {vr(b+12+e)}")
        for e in range(4):
            a(f"v_add_f32 {vr(b+e)}, {vr(b+e)}, {vr(b+8+e)}")
        a(f"buffer_store_dwordx4 {vr(b,4)}, v2, {sr(S_SRD2,4)}, 0 offen offset:{1024*k} sc1")
    a("s_waitcnt vmcnt(0)")
    a(f"s_lshl_b32 {sr(S_T0)}, {sr(S_B)}, 5")
    a(f"v_mov_b32 v4, {sr(S_T0)}")
    a("v_mov_b32 v5, 1")
    a("s_mov_b64 exec, 1")
    a(f"global_atomic_add v6, v4, v5, {sr(S_DBG,2)} sc0")
    a("s_waitcnt vmcnt(0)")
    a(f"v_mov_b32 v7, {FLAG}")
    a("ds_write_b32 v7, v6")
    a("s_mov_b64 exec, -1")
    a("s_waitcnt lgkmcnt(0)")
    a.label("L_wait_flag")
    a("s_barrier")
    stamp(a, cfg, 5)
    a(f"v_mov_b32 v7, {FLAG}")
    a("ds_read_b32 v6, v7")
    a("s_waitcnt lgkmcnt(0)")
    a("s_nop 0")
    a(f"v_readfirstlane_b32 {sr(S_T0)}, v6")
    a("s_nop 3")
    a(f"s_cmp_lg_u32 {sr(S_T0)}, 31")
    a("s_cbranch_scc1 L_done")
    a(f"s_mul_i32 {sr(S_T0)}, {sr(S_B)}, {32*2304}")
    srd(a, S_SRD2, S_WS, S_T0, 32*2304)
    a(f"v_lshlrev_b32 v2, 4, {vr(V_LANE)}")
    a(f"v_add_u32 v3, 2048, v2")
    a("v_mov_b32 v4, 0x7f000000")
    a(f"v_cmp_gt_u32 vcc, 16, {vr(V_LANE)}")
    a("s_nop 1")
    a("v_cndmask_b32 v3, v4, v3, vcc")
    a(f"s_mul_i32 {sr(S_T1)}, {sr(S_WAVE)}, {4*2304}")
    for u in range(4):
        a(f"buffer_load_dwordx4 {vr(8+12*u,4)}, v2, {sr(S_SRD2,4)}, {sr(S_T1)} offen sc1")
        a(f"buffer_load_dwordx4 {vr(12+12*u,4)}, v2, {sr(S_SRD2,4)}, {sr(S_T1)} offen offset:1024 sc1")
        a(f"buffer_load_dwordx4 {vr(16+12*u,4)}, v3, {sr(S_SRD2,4)}, {sr(S_T1)} offen sc1")
        if u < 3: a(f"s_add_u32 {sr(S_T1)}, {sr(S_T1)}, 2304")
    a(f"s_mul_i32 {sr(S_T0)}, {sr(S_B)}, 1152")
    srd(a, S_SRD3, S_X, S_T0, 1152)
    srd(a, S_SRDK, S_B2, None, 1152)
    a(f"s_lshl_b32 {sr(S_T2)}, {sr(S_WAVE)}, 6")
    a(f"v_add_u32 v5, {sr(S_T2)}, {vr(V_LANE)}")
    a("v_lshlrev_b32 v6, 3, v5")
    a(f"buffer_load_dwordx2 v[60:61], v6, {sr(S_SRD3,4)}, 0 offen")
    a(f"buffer_load_dwordx2 v[62:63], v6, {sr(S_SRDK,4)}, 0 offen")
    a("s_waitcnt vmcnt(2)")
    for e in range(12):
        a(f"v_add_f32 {vr(8+e)}, {vr(8+e)}, {vr(20+e)}")
        a(f"v_add_f32 {vr(32+e)}, {vr(32+e)}, {vr(44+e)}")
    for e in range(12):
        a(f"v_add_f32 {vr(8+e)}, {vr(8+e)}, {vr(32+e)}")
    a(f"s_mul_i32 {sr(S_T0)}, {sr(S_WAVE)}, 3072")
    a(f"v_add_u32 v7, {sr(S_T0)}, v2")
    for k in range(3):
        a(f"ds_write_b128 v7, {vr(8+4*k,4)} offset:{RED + 1024*k}")
    a("s_waitcnt lgkmcnt(0)")
    a("s_barrier")
    a(f"s_cmp_ge_u32 {sr(S_WAVE)}, 3")
    a("s_cbranch_scc1 L_done")
    a("v_lshlrev_b32 v7, 4, v5")
    for w in range(8):
        a(f"ds_read_b128 {vr(8+4*w,4)}, v7 offset:{RED + 3072*w}")
    a("s_waitcnt lgkmcnt(0)")
    for e in range(4):
        a(f"v_add_f32 {vr(8+e)}, {vr(8+e)}, {vr(12+e)}")
        a(f"v_add_f32 {vr(16+e)}, {vr(16+e)}, {vr(20+e)}")
        a(f"v_add_f32 {vr(24+e)}, {vr(24+e)}, {vr(28+e)}")
        a(f"v_add_f32 {vr(32+e)}, {vr(32+e)}, {vr(36+e)}")
    for e in range(4):
        a(f"v_add_f32 {vr(8+e)}, {vr(8+e)}, {vr(16+e)}")
        a(f"v_add_f32 {vr(24+e)}, {vr(24+e)}, {vr(32+e)}")
    for e in range(4):
        a(f"v_add_f32 {vr(8+e)}, {vr(8+e)}, {vr(24+e)}")
    a("s_waitcnt vmcnt(0)")
    a(f"s_mov_b32 {sr(S_T1)}, 0xffff0000")
    for (src) in (60, 62):
        a(f"v_lshlrev_b32 v40, 16, {vr(src)}")
        a(f"v_and_b32 v41, {sr(S_T1)}, {vr(src)}")
        a(f"v_lshlrev_b32 v42, 16, {vr(src+1)}")
        a(f"v_and_b32 v43, {sr(S_T1)}, {vr(src+1)}")
        for e in range(4):
            a(f"v_add_f32 {vr(8+e)}, {vr(8+e)}, {vr(40+e)}")
    a("v_cvt_pk_bf16_f32 v8, v8, v9")
    a("v_cvt_pk_bf16_f32 v9, v10, v11")
    a(f"s_mul_i32 {sr(S_T0)}, {sr(S_B)}, 1152")
    srd(a, S_SRD2, S_OUT, S_T0, 1152)
    a(f"buffer_store_dwordx2 v[8:9], v6, {sr(S_SRD2,4)}, 0 offen")

def gen_end(a, cfg):
    a.label("L_done")
    if cfg.SPINTO or cfg.SPINX >= 0:
        a(f"s_cmp_lg_u32 {sr(S_WAVE)}, 0")
        a("s_cbranch_scc1 L_exit")
        a(f"s_memrealtime {sr(S_STAMP+12,2)}")
        a("s_waitcnt lgkmcnt(0)")
        if cfg.SPINTO:
            a(f"s_add_u32 {sr(S_T2)}, {sr(S_STAMP)}, {cfg.SPINTO}")
        else:
            a(f"s_sub_u32 {sr(S_T2)}, {sr(S_STAMP+2*cfg.SPINX)}, {sr(S_STAMP)}")
            a(f"s_add_u32 {sr(S_T2)}, {sr(S_T2)}, {sr(S_STAMP+12)}")
        a.label("L_spin")
        a(f"s_memrealtime {sr(S_STAMP+12,2)}")
        a("s_waitcnt lgkmcnt(0)")
        a(f"s_sub_u32 {sr(S_T3)}, {sr(S_STAMP+12)}, {sr(S_T2)}")
        a(f"s_cmp_lt_i32 {sr(S_T3)}, 0")
        a("s_cbranch_scc1 L_spin")
    if cfg.DBGT:
        a(f"s_memrealtime {sr(S_STAMP+12,2)}")
        a("s_waitcnt lgkmcnt(0)")
        a(f"s_cmp_lg_u32 {sr(S_WAVE)}, 0")
        a("s_cbranch_scc1 L_exit")
        a("s_mov_b64 exec, 1")
        a("v_mov_b32 v2, 0")
        for (w, idx, inv) in [(1,0,True),(2,2,False),(3,3,False),(4,6,False),(5,3,True),(6,6,True),(7,2,True)]:
            a(f"v_mov_b32 v4, {sr(S_STAMP+2*idx)}")
            if inv: a("v_not_b32 v4, v4")
            a(f"global_atomic_umax v2, v4, {sr(S_DBG,2)} offset:{4*w}")
    if cfg.STAMPS:
        stamp(a, cfg, 6)
        a("s_waitcnt lgkmcnt(0)")
        a(f"s_lshl_b32 {sr(S_T0)}, {sr(S_WG)}, 3")
        a(f"s_add_u32 {sr(S_T0)}, {sr(S_T0)}, {sr(S_WAVE)}")
        a(f"s_lshl_b32 {sr(S_T0)}, {sr(S_T0)}, 6")
        a(f"s_add_u32 {sr(S_T0)}, {sr(S_T0)}, 0x100000")
        a(f"v_mov_b32 v2, {sr(S_T0)}")
        a("s_mov_b64 exec, 1")
        for k in range(7):
            a(f"v_mov_b32 v4, {sr(S_STAMP+2*k)}")
            a(f"v_mov_b32 v5, {sr(S_STAMP+2*k+1)}")
            a(f"global_store_dwordx2 v2, v[4:5], {sr(S_WS,2)} offset:{8*k}")
    a.label("L_exit")
    a("s_endpgm")

def generate(cfg):
    a = Asm()
    stamp(a, cfg, 0)
    a(f"s_cmp_ge_u32 {sr(S_WG)}, 256")
    a("s_cbranch_scc1 L_exit")
    a(f"s_load_dwordx4 {sr(S_K,4)}, s[0:1], 8")
    a(f"s_load_dwordx2 {sr(S_X,2)}, s[0:1], 0")
    a(f"s_load_dwordx4 {sr(S_WQ,4)}, s[0:1], 24")
    a(f"s_load_dwordx4 {sr(S_W1,4)}, s[0:1], 48")
    a(f"s_load_dwordx4 {sr(S_W2,4)}, s[0:1], 64")
    a(f"s_load_dwordx4 {sr(S_OUT,4)}, s[0:1], 80")
    a(f"s_load_dwordx2 {sr(S_WS,2)}, s[0:1], 96")
    a("v_lshrrev_b32 v1, 6, v0")
    a(f"s_lshr_b32 {sr(S_B)}, {sr(S_WG)}, 5")
    a(f"v_readfirstlane_b32 {sr(S_WAVE)}, v1")
    if cfg.HMAP:
        a(f"s_and_b32 {sr(S_H)}, {sr(S_WG)}, 7")
        a(f"s_lshl_b32 {sr(S_H)}, {sr(S_H)}, 2")
        a(f"s_bfe_u32 {sr(S_T0)}, {sr(S_WG)}, 0x20003")
        a(f"s_add_u32 {sr(S_H)}, {sr(S_H)}, {sr(S_T0)}")
    else:
        a(f"s_and_b32 {sr(S_H)}, {sr(S_WG)}, 31")
    a("v_and_b32 v0, 63, v0")
    if cfg.HMAP:
        a(f"s_lshl_b32 {sr(S_WG)}, {sr(S_B)}, 5")
        a(f"s_add_u32 {sr(S_WG)}, {sr(S_WG)}, {sr(S_H)}")
    a("s_nop 1")
    a(f"s_cmp_ge_u32 {sr(S_WAVE)}, 4")
    if not cfg.SR: a("s_waitcnt lgkmcnt(0)")
    a("s_cbranch_scc1 L_side")
    (gen_stream_sr if cfg.SR else gen_stream)(a, cfg)
    gen_side(a, cfg)
    gen_tail(a, cfg)
    body = a.text()
    hdr = f"""; Fused decode block:  out = x + MHA(LN(x); K/V cache) @ wo + MLP(LN(LN(x)))          (B=8, H=32, Sk=4096, Dh=128, D=576, F=4608)
;       fixed number of loads in flight; q.K^T by MFMA from an XOR-swizzled K image, online softmax (true running max),
; Cross-workgroup sum over the 32 heads: every workgroup resets its slot in d_ws to a NaN sentinel at start (counted in d_debug),
;   publishes its partial with write-through stores at the end; workgroup h == b polls the 31 other slots, adds x + b2, stores out[b].
; Kernarg layout (104 bytes): A_x, K, V, wq, wo, B_x, w1, b1, w2, b2, out, debug, ws
; @launch grid=(256,1,1) block=(512,1,1) lds={LDS_BYTES}
.amdgcn_target "amdgcn-amd-amdhsa--gfx950"
.text
.globl {KNAME}
.p2align 8
.type {KNAME},@function
{KNAME}:
"""
    ftr = f"""
.section .rodata,"a"
.p2align 6
.amdhsa_kernel {KNAME}
  .amdhsa_next_free_vgpr 256
  .amdhsa_next_free_sgpr 102
  .amdhsa_accum_offset 256
  .amdhsa_group_segment_fixed_size 0
  .amdhsa_kernarg_size 104
  .amdhsa_user_sgpr_count 2
  .amdhsa_user_sgpr_kernarg_segment_ptr 1
  .amdhsa_system_sgpr_workgroup_id_x 1
  .amdhsa_float_denorm_mode_32 3
.end_amdhsa_kernel
"""
    return hdr + body + ftr

if __name__ == "__main__":
    cfg = Cfg()
    out = sys.argv[1]
    for kv in sys.argv[2:]:
        k, v = kv.split("=")
        cur = getattr(cfg, k)
        if isinstance(cur, bool): v = v in ("1","True","true")
        elif isinstance(cur, int): v = int(v)
        setattr(cfg, k, v)
    open(out, "w").write(generate(cfg))
    print("wrote", out, "LDS", LDS_BYTES)
```

```python
import sys, math

KNAME = "parallel_sum__mha_block_cached__mixer_channel_mlp__decode_kernel"

class Cfg:
    N = 5
    RUNAHEAD = 56
    PROUNDS = 4
    XTRA = 0
    RSCORE = 1
    RAMP = ''
    MMAP = 1
    POLLDBG = False
    D2 = 0
    D3 = 3
    SR = 1
    DQ = 4
    ROT2 = 0
    HMAP = 0
    STARTSIG = 'atomic'
    CTLSTOP = 1
    VERS = '5,7'
    WPOL = ''
    CTL = ''
    NT = 7
    KT = 1
    POLL = True
    RED_H = 0
    PHASE = 1
    DIAGHALF = 0
    N0 = 0
    R0 = 20
    QFLAG = 1
    LOOPSTAMP = 0
    ALIGN = 0
    PUBF = 'sc1'
    POLF = 'sc1'
    REDB = 1
    K0 = 1
    B2_ITER = 3
    WFLAGS = ""
    NOSIDE = False
    NOCONS = False
    ITSTAMP = False
    DEPTH = 2
    ROT = True
    DBGT = False
    SPINTO = 0
    SPINX = -1
    PROSTAMP = False
    KFLAGS = "nt"
    VFLAGS = "nt"
    STAMPS = False
    PRIO = 2
    perm = 0

RING = 0
MISC = 131072
QPART = MISC
QBF   = QPART + 2048
HPART = QBF + 1024
OPART = HPART + 4096
ML    = OPART + 2048
OUTP  = ML + 64
XPRIV = OUTP
FLAG  = OUTP + 10240
LDS_END = FLAG + 64
RED   = 0
LDS_BYTES = (LDS_END + 1024 + 255)//256*256

C_SCALE = (128 ** -0.5) * math.log2(math.e)

import struct
def f2u(x): return struct.unpack("<I", struct.pack("<f", x))[0]
def hexf(x): return "0x%08x" % f2u(x)

class Asm:
    def __init__(self): self.L = []
    def __call__(self, s): self.L.append("  " + s)
    def label(self, s): self.L.append(s + ":")
    def c(self, s): self.L.append("  ; " + s)
    def text(self): return "\n".join(self.L)

def vr(b, n=1): return f"v{b}" if n == 1 else f"v[{b}:{b+n-1}]"
def sr(b, n=1): return f"s{b}" if n == 1 else f"s[{b}:{b+n-1}]"

S_WG=2; S_WAVE=3
S_K=4; S_V=6
S_SRDK=8; S_SRDV=12
S_X=16
S_WQ=20; S_WO=22
S_W1=24; S_B1=26
S_W2=28; S_B2=30
S_OUT=32; S_DBG=34
S_WS=36
S_B=38; S_H=39; S_M=63
S_T0=40; S_T1=41; S_T2=42; S_T3=43
S_OFFA=44; S_OFFB=45; S_RING=46; S_CNT=47
S_C=48
S_SRD2=52
S_SRD3=56
S_EX=60
S_SW=62
S_STAMP=64
S_MASKHI=80
S_TS=82

def allreduce_sum(a, v, t):
    for r in (8,4,2,1):
        a("s_nop 1")
        a(f"v_add_f32_dpp {vr(v)}, {vr(v)}, {vr(v)} row_ror:{r} row_mask:0xf bank_mask:0xf")
    a(f"v_mov_b32 {vr(t)}, {vr(v)}")
    a("s_nop 1")
    a(f"v_permlane16_swap_b32 {vr(v)}, {vr(t)}")
    a("s_nop 1")
    a(f"v_add_f32 {vr(v)}, {vr(v)}, {vr(t)}")
    a(f"v_mov_b32 {vr(t)}, {vr(v)}")
    a("s_nop 1")
    a(f"v_permlane32_swap_b32 {vr(v)}, {vr(t)}")
    a("s_nop 1")
    a(f"v_add_f32 {vr(v)}, {vr(v)}, {vr(t)}")

def groups_allreduce(a, v, t, op):
    a(f"v_mov_b32 {vr(t)}, {vr(v)}")
    a("s_nop 1")
    a(f"v_permlane16_swap_b32 {vr(v)}, {vr(t)}")
    a("s_nop 1")
    a(f"{op} {vr(v)}, {vr(v)}, {vr(t)}")
    a(f"v_mov_b32 {vr(t)}, {vr(v)}")
    a("s_nop 1")
    a(f"v_permlane32_swap_b32 {vr(v)}, {vr(t)}")
    a("s_nop 1")
    a(f"{op} {vr(v)}, {vr(v)}, {vr(t)}")

def make_selectors(a, lane, selE, selO, t0, t1, t2, t3):
    a(f"v_and_b32 {vr(t0)}, 15, {vr(lane)}")
    a(f"v_and_b32 {vr(t1)}, 1, {vr(t0)}")
    a(f"v_mov_b32 {vr(t2)}, 0x0c0c0100")
    a(f"v_mov_b32 {vr(t3)}, 0x01000c0c")
    a(f"v_cmp_eq_u32 vcc, 1, {vr(t1)}")
    a("s_nop 1")
    a(f"v_cndmask_b32 {vr(t2)}, {vr(t2)}, {vr(t3)}, vcc")
    a(f"v_mov_b32 {vr(t3)}, 0x0c0c0302")
    a(f"v_mov_b32 {vr(t1)}, 0x03020c0c")
    a(f"v_cndmask_b32 {vr(t3)}, {vr(t3)}, {vr(t1)}, vcc")
    a(f"v_lshrrev_b32 {vr(t0)}, 1, {vr(t0)}")
    a(f"v_mov_b32 {vr(t1)}, 0x0c0c0c0c")
    for k in range(4):
        a(f"v_cmp_eq_u32 vcc, {k}, {vr(t0)}")
        a("s_nop 1")
        a(f"v_cndmask_b32 {vr(selE+k)}, {vr(t1)}, {vr(t2)}, vcc")
        a(f"v_cndmask_b32 {vr(selO+k)}, {vr(t1)}, {vr(t3)}, vcc")

def diag(a, dst, P, parity, selE, selO):
    sel = selO if parity else selE
    for k in range(4):
        a(f"v_perm_b32 {vr(dst+k)}, {vr(P)}, {vr(P)}, {vr(sel+k)}")

def mfma(a, D, A, B, C):
    c = "0" if C is None else vr(C,4)
    a(f"v_mfma_f32_16x16x32_bf16 {vr(D,4)}, {vr(A,4)}, {vr(B,4)}, {c}")

def stamp(a, cfg, idx):
    if cfg.PROSTAMP and idx in (2,4,5): return
    if cfg.STAMPS or ((cfg.DBGT or cfg.SPINTO or cfg.SPINX >= 0) and idx in (0,1,2,3)):
        a(f"s_memrealtime {sr(S_STAMP+2*idx,2)}")

def srd(a, d, base, off_lo_sreg_or_none, size):
    if off_lo_sreg_or_none is None:
        a(f"s_mov_b32 {sr(d)}, {sr(base)}")
        a(f"s_mov_b32 {sr(d+1)}, {sr(base+1)}")
    else:
        a(f"s_add_u32 {sr(d)}, {sr(base)}, {sr(off_lo_sreg_or_none)}")
        a(f"s_addc_u32 {sr(d+1)}, {sr(base+1)}, 0")
    if isinstance(size, int):
        a(f"s_mov_b32 {sr(d+2)}, {size}")
    else:
        a(f"s_mov_b32 {sr(d+2)}, {size}")
    a(f"s_mov_b32 {sr(d+3)}, 0x20000")

def gen_stream(a, cfg):
    N = cfg.N
    LAG = 3 + N
    PR = cfg.PROUNDS
    assert PR in (0, 2, 4)
    V_LANE=0
    VK=2
    VV=6
    VVD=7
    VKR=8
    VVR=12
    VT=13
    VQ=16
    VA=32
    VS=48
    VP=56
    VAO=60
    VO=68
    VM=72; VL=73; VAL=74; VMC=75
    SELE=76; SELO=80
    VX=84
    VD=96

    a.label("L_stream")
    if cfg.PRIO: a(f"s_setprio {cfg.PRIO}")
    a(f"s_lshl_b32 {sr(S_T0)}, {sr(S_WG)}, 20")
    srd(a, S_SRDK, S_K, S_T0, 0x100000)
    srd(a, S_SRDV, S_V, S_T0, 0x100000)
    a(f"s_lshl_b32 {sr(S_OFFA)}, {sr(S_WAVE)}, 13")
    a(f"s_add_u32 {sr(S_OFFB)}, {sr(S_OFFA)}, 4096")
    a(f"s_lshl_b32 {sr(S_RING)}, {sr(S_WAVE)}, 15")

    NP = 16*PR
    def load_desc(i):
        if i < NP:
            r, p = divmod(i, 16)
            half = (p % 8)//4; j = p % 4
            if p < 8: return dict(kind='K', j=j, half=half, slot=2*r+half, last=False, req=None)
            return dict(kind='VD', j=j, half=half, dst=VD+32*r+16*half+4*j, last=(p == 15), req=None)
        ip = i - NP
        g = ip//4; j = ip % 4; pos = (ip % 16)//4
        slot = g % 8
        if ip < 32:
            req = None if slot >= 2*PR else 4*(slot//2) + (slot % 2)
        else:
            req = 4*PR + (ip-32)//4
        return dict(kind='K' if pos < 2 else 'V', j=j, half=pos % 2, slot=slot, last=(ip % 16 == 15), req=req)
    def unit_desc(u):
        if u < 4*PR:
            r, pos = divmod(u, 4)
            if pos < 2: return dict(pos=pos, slot=2*r+pos, need=16*r+4*pos+3, direct=None)
            return dict(pos=pos, slot=None, need=16*r+8+4*(pos-2)+3, direct=VD+32*r+16*(pos-2))
        g = u - 4*PR
        return dict(pos=g % 4, slot=g % 8, need=NP+4*g+3, direct=None)

    state = {"m0": None}
    win = {"n": N}
    def issue(i, wait=True):
        d = load_desc(i)
        so = S_OFFB if d['half'] else S_OFFA
        if d['kind'] != 'VD' and state["m0"] != d['slot']:
            a(f"s_add_u32 m0, {sr(S_RING)}, {d['slot']*4096}")
            state["m0"] = d['slot']
            if not wait: a("s_nop 0")
        if wait: a(f"s_waitcnt vmcnt({win['n']-1})")
        j = d['j']
        if d['kind'] == 'K':
            a(f"buffer_load_dwordx4 {vr(VK+j)}, {sr(S_SRDK,4)}, {sr(so)} offen offset:{j*1024} {cfg.KFLAGS} lds")
        elif d['kind'] == 'V':
            a(f"buffer_load_dwordx4 {vr(VV)}, {sr(S_SRDV,4)}, {sr(so)} offen offset:{j*1024} {cfg.VFLAGS} lds")
        else:
            a(f"buffer_load_dwordx4 {vr(d['dst'],4)}, {vr(VVD)}, {sr(S_SRDV,4)}, {sr(so)} offen offset:{j*256} {cfg.VFLAGS}")
        if d['last']:
            a(f"s_add_u32 {sr(S_OFFA)}, {sr(S_OFFA)}, 32768")
            a(f"s_add_u32 {sr(S_OFFB)}, {sr(S_OFFB)}, 32768")

    def piece(u, p):
        if cfg.NOCONS: return
        d = unit_desc(u)
        pos = d['pos']
        if pos < 2:
            S = VS + 4*pos
            slot = d['slot']*4096
            if p == 0:
                for t in range(4):
                    a(f"ds_read_b128 {vr(VA+4*t,4)}, {vr(VKR+t)} offset:{slot}")
            elif p == 1:
                for t in range(4):
                    a(f"s_waitcnt lgkmcnt({3-t})")
                    mfma(a, S, VA+4*t, VQ+4*t, None if t == 0 else S)
            elif pos == 1 and p == 2:
                softmax_a()
            elif pos == 1 and p == 3:
                softmax_b()
        else:
            half = pos - 2
            if d['direct'] is None:
                if p == 0:
                    for r in range(4):
                        a(f"ds_read_b128 {vr(VA+4*r,4)}, {vr(VVR)} offset:{d['slot']*4096 + r*256}")
                r = p
                ao = VAO + 4*(r&1)
                diag(a, ao, VP + 2*half + (r>>1), r&1, SELE, SELO)
                a(f"s_waitcnt lgkmcnt({3-r})")
                a("s_nop 0")
                mfma(a, VO, ao, VA+4*r, VO)
            else:
                r = p
                ao = VAO + 4*(r&1)
                diag(a, ao, VP + 2*half + (r>>1), r&1, SELE, SELO)
                a("s_nop 1")
                mfma(a, VO, ao, d['direct']+4*r, VO)

    def softmax_a():
        a(f"v_max3_f32 {vr(VX)}, {vr(VS)}, {vr(VS+1)}, {vr(VS+2)}")
        a(f"v_max3_f32 {vr(VX)}, {vr(VX)}, {vr(VS+3)}, {vr(VM)}")
        a("s_nop 5")
        a(f"v_max3_f32 {vr(VX+1)}, {vr(VS+4)}, {vr(VS+5)}, {vr(VS+6)}")
        a(f"v_max3_f32 {vr(VX)}, {vr(VX)}, {vr(VS+7)}, {vr(VX+1)}")
        groups_allreduce(a, VX, VX+1, "v_max_f32")
        a(f"v_sub_f32 {vr(VAL)}, {vr(VM)}, {vr(VX)}")
        a(f"v_mul_f32 {vr(VMC)}, {sr(S_C)}, {vr(VX)}")
        a(f"v_mul_f32 {vr(VAL)}, {sr(S_C)}, {vr(VAL)}")
        a(f"v_mov_b32 {vr(VM)}, {vr(VX)}")
        a(f"v_exp_f32 {vr(VAL)}, {vr(VAL)}")
        for r in range(8):
            a(f"v_fma_f32 {vr(VS+r)}, {vr(VS+r)}, {sr(S_C)}, -{vr(VMC)}")
    def softmax_b():
        for r in range(8):
            a(f"v_exp_f32 {vr(VS+r)}, {vr(VS+r)}")
        for r in range(4):
            a(f"v_mul_f32 {vr(VO+r)}, {vr(VO+r)}, {vr(VAL)}")
        a(f"v_mul_f32 {vr(VL)}, {vr(VL)}, {vr(VAL)}")
        a(f"v_add_f32 {vr(VX)}, {vr(VS)}, {vr(VS+1)}")
        a(f"v_add_f32 {vr(VX+1)}, {vr(VS+2)}, {vr(VS+3)}")
        a(f"v_add_f32 {vr(VX+2)}, {vr(VS+4)}, {vr(VS+5)}")
        a(f"v_add_f32 {vr(VX+3)}, {vr(VS+6)}, {vr(VS+7)}")
        for r in range(4):
            a(f"v_cvt_pk_bf16_f32 {vr(VP+r)}, {vr(VS+2*r)}, {vr(VS+2*r+1)}")
        a(f"v_add_f32 {vr(VX)}, {vr(VX)}, {vr(VX+1)}")
        a(f"v_add_f32 {vr(VX+2)}, {vr(VX+2)}, {vr(VX+3)}")
        a(f"v_add_f32 {vr(VL)}, {vr(VL)}, {vr(VX)}")
        a(f"v_add_f32 {vr(VL)}, {vr(VL)}, {vr(VX+2)}")

    a(f"v_lshrrev_b32 {vr(VT)}, 4, {vr(V_LANE)}")
    a(f"v_and_b32 {vr(VT+1)}, 15, {vr(V_LANE)}")
    for j in range(4):
        a(f"v_add_u32 {vr(VK+j)}, {4*j}, {vr(VT)}")
        a(f"v_xor_b32 {vr(VK+j)}, {vr(VK+j)}, {vr(VT+1)}")
        a(f"v_lshlrev_b32 {vr(VK+j)}, 4, {vr(VK+j)}")
        a(f"v_lshl_add_u32 {vr(VK+j)}, {vr(VT)}, 8, {vr(VK+j)}")
    for i in range(N): issue(i, wait=False)
    a(f"v_lshlrev_b32 {vr(VV)}, 4, {vr(V_LANE)}")
    a(f"v_lshlrev_b32 {vr(VVD)}, 10, {vr(VT)}")
    a(f"v_lshl_add_u32 {vr(VVD)}, {vr(VT+1)}, 4, {vr(VVD)}")
    for t in range(4):
        a(f"v_add_u32 {vr(VKR+t)}, {4*t}, {vr(VT)}")
        a(f"v_xor_b32 {vr(VKR+t)}, {vr(VKR+t)}, {vr(VT+1)}")
        a(f"v_lshlrev_b32 {vr(VKR+t)}, 4, {vr(VKR+t)}")
        a(f"v_lshl_add_u32 {vr(VKR+t)}, {vr(VT+1)}, 8, {vr(VKR+t)}")
        a(f"v_add_u32 {vr(VKR+t)}, {sr(S_RING)}, {vr(VKR+t)}")
    a(f"v_add_u32 {vr(VVR)}, {sr(S_RING)}, {vr(VVD)}")
    make_selectors(a, V_LANE, SELE, SELO, VX, VX+1, VX+2, VX+3)
    a(f"v_mov_b32 {vr(VM)}, 0xff800000")
    a(f"v_mov_b32 {vr(VL)}, 0")
    for r in range(4): a(f"v_mov_b32 {vr(VO+r)}, 0")
    a(f"s_mov_b32 {sr(S_C)}, {hexf(C_SCALE)}")

    RA = cfg.RUNAHEAD
    for i in range(N, RA):
        assert load_desc(i)['req'] is None
        issue(i)
        if cfg.PROSTAMP and i == N: a(f"s_memrealtime {sr(S_STAMP+4,2)}")
        if cfg.PROSTAMP and i == 20: a(f"s_memrealtime {sr(S_STAMP+8,2)}")
        if cfg.PROSTAMP and i == 40: a(f"s_memrealtime {sr(S_STAMP+10,2)}")
    stamp(a, cfg, 1)
    a("s_barrier")
    stamp(a, cfg, 2)
    nxt = RA
    def try_issue(done_units):
        nonlocal nxt
        d = load_desc(nxt)
        if d['req'] is not None and d['req'] >= done_units: return False
        issue(nxt); nxt += 1
        return True
    a(f"v_lshlrev_b32 {vr(VX)}, 4, {vr(V_LANE)}")
    a(f"v_and_b32 {vr(VX)}, 0x1ff, {vr(VX)}")
    a(f"v_add_u32 {vr(VX)}, {QPART}, {vr(VX)}")
    for p in range(4):
        a(f"ds_read_b128 {vr(VA+4*p,4)}, {vr(VX)} offset:{p*512}")
    try_issue(0); try_issue(0)
    a("s_waitcnt lgkmcnt(0)")
    for e in range(4):
        a(f"v_add_f32 {vr(VA+e)}, {vr(VA+e)}, {vr(VA+4+e)}")
        a(f"v_add_f32 {vr(VA+8+e)}, {vr(VA+8+e)}, {vr(VA+12+e)}")
    for e in range(4):
        a(f"v_add_f32 {vr(VA+e)}, {vr(VA+e)}, {vr(VA+8+e)}")
    a(f"v_cvt_pk_bf16_f32 {vr(VA+4)}, {vr(VA)}, {vr(VA+1)}")
    a(f"v_cvt_pk_bf16_f32 {vr(VA+5)}, {vr(VA+2)}, {vr(VA+3)}")
    a(f"v_lshlrev_b32 {vr(VX+1)}, 3, {vr(V_LANE)}")
    a(f"v_and_b32 {vr(VX+1)}, 0xff, {vr(VX+1)}")
    a(f"s_lshl_b32 {sr(S_T0)}, {sr(S_WAVE)}, 8")
    a(f"s_add_u32 {sr(S_T0)}, {sr(S_T0)}, {QBF}")
    a(f"v_add_u32 {vr(VX+1)}, {sr(S_T0)}, {vr(VX+1)}")
    a(f"ds_write_b64 {vr(VX+1)}, {vr(VA+4,2)}")
    a(f"v_lshrrev_b32 {vr(VX+2)}, 4, {vr(V_LANE)}")
    a(f"v_lshlrev_b32 {vr(VX+2)}, 4, {vr(VX+2)}")
    a(f"v_add_u32 {vr(VX+2)}, {sr(S_T0)}, {vr(VX+2)}")
    a("s_waitcnt lgkmcnt(0)")
    for t in range(4):
        a(f"ds_read_b128 {vr(VQ+4*t,4)}, {vr(VX+2)} offset:{t*64}")
    try_issue(0)
    a("s_waitcnt lgkmcnt(0)")
    VERS = [int(x) for x in cfg.VERS.split(',')]
    NMAX = max(VERS + [N])
    U0 = 4*PR + 8*cfg.K0
    target = NP + 32*cfg.K0 + NMAX + 3
    u = 0
    while u < U0 or nxt < target:
        d = unit_desc(u) if u < U0 else None
        if d is not None and nxt - 1 - N >= d['need']:
            ahead = (nxt - 1 - N) - d['need']
            for p in range(4):
                piece(u, p)
                want = (ahead < 2) or (p in (1, 3))
                if want and nxt < target:
                    try_issue(u)
            u += 1
        else:
            if not (nxt < target and try_issue(u)):
                raise RuntimeError(f"schedule deadlock u={u} nxt={nxt}")
    assert nxt == target and u == U0, (nxt, target, u, U0)
    if cfg.POLL:
        poll_setup(a, cfg)
    niter = (128 - U0)//8
    assert (128 - U0) % 8 == 0
    S_POL = S_TS
    VPG = 224
    if cfg.WPOL:
        wp = [int(x) for x in cfg.WPOL.split(',')]
        a(f"s_mov_b32 {sr(S_POL)}, {wp[0]}")
        for w in range(1, 4):
            a(f"s_cmp_eq_u32 {sr(S_WAVE)}, {w}")
            a(f"s_cselect_b32 {sr(S_POL)}, {wp[w]}, {sr(S_POL)}")
    else:
        a(f"s_mov_b32 {sr(S_POL)}, {N}")
    if cfg.CTL:
        a(f"v_mov_b32 {vr(VPG)}, {FLAG+8}")
    a(f"s_mov_b32 {sr(S_CNT)}, 1")
    a.label("L_sloop")
    if cfg.KT:
        a(f"s_cmp_gt_u32 {sr(S_CNT)}, {niter - cfg.KT}")
        a(f"s_cselect_b32 {sr(S_POL)}, {cfg.NT}, {sr(S_POL)}")
        assert cfg.NT in VERS
    if cfg.CTL:
        a(f"v_mov_b32 {vr(VPG+1)}, {sr(S_CNT)}")
        a(f"s_cmp_lg_u32 {sr(S_WAVE)}, 0")
        a("s_cbranch_scc1 L_nopg")
        a(f"ds_write_b32 {vr(VPG)}, {vr(VPG+1)}")
        a.label("L_nopg")
    for vi, n in enumerate(VERS[:-1]):
        a(f"s_cmp_eq_u32 {sr(S_POL)}, {n}")
        a(f"s_cbranch_scc1 L_ver{n}")
    order = [VERS[-1]] + VERS[:-1]
    for vi, n in enumerate(order):
        a.label(f"L_ver{n}")
        win["n"] = n
        state["m0"] = None
        for uu in range(32):
            issue(target + uu)
            if cfg.CTL and uu == 28:
                a(f"ds_read_b32 {vr(VPG+2)}, {vr(VPG)} offset:4")
            piece(U0 + uu//4, uu % 4)
        if vi < len(order) - 1:
            a("s_branch L_snext")
    a.label("L_snext")
    if cfg.CTL:
        a(f"v_readfirstlane_b32 {sr(S_POL)}, {vr(VPG+2)}")
    a(f"s_add_u32 {sr(S_CNT)}, {sr(S_CNT)}, 1")
    a(f"s_cmp_le_u32 {sr(S_CNT)}, {niter}")
    a("s_cbranch_scc1 L_sloop")
    stamp(a, cfg, 3)
    groups_allreduce(a, VL, VX, "v_add_f32")
    a(f"v_and_b32 {vr(VX)}, 15, {vr(V_LANE)}")
    a(f"v_lshrrev_b32 {vr(VX+1)}, 4, {vr(V_LANE)}")
    a(f"v_lshlrev_b32 {vr(VX)}, 5, {vr(VX)}")
    a(f"v_lshl_add_u32 {vr(VX)}, {vr(VX+1)}, 4, {vr(VX)}")
    a(f"s_lshl_b32 {sr(S_T0)}, {sr(S_WAVE)}, 9")
    a(f"s_add_u32 {sr(S_T0)}, {sr(S_T0)}, {OPART}")
    a(f"v_add_u32 {vr(VX)}, {sr(S_T0)}, {vr(VX)}")
    a(f"s_lshl_b32 {sr(S_T0)}, {sr(S_WAVE)}, 2")
    a(f"s_add_u32 {sr(S_T0)}, {sr(S_T0)}, {ML}")
    a(f"v_mov_b32 {vr(VX+2)}, {sr(S_T0)}")
    a("s_mov_b32 exec_hi, 0")
    a(f"ds_write_b128 {vr(VX)}, {vr(VO,4)}")
    a("s_mov_b64 exec, 1")
    a(f"ds_write_b32 {vr(VX+2)}, {vr(VM)}")
    a(f"ds_write_b32 {vr(VX+2)}, {vr(VL)} offset:16")
    a("s_mov_b64 exec, -1")
    a("s_waitcnt lgkmcnt(0)")
    a("s_barrier")
    if cfg.POLL:
        a(f"s_cmp_eq_u32 {sr(S_H)}, {sr(S_B) if cfg.REDB else cfg.RED_H}")
        a("s_cbranch_scc1 L_reducer")
    else:
        a("s_waitcnt vmcnt(0)")
    a("s_branch L_tail")

def gen_stream_sr(a, cfg):
    N = cfg.N
    LAG = 3 + N
    PR = cfg.PROUNDS
    assert PR in (0, 2, 4)
    V_LANE=0
    VK=2
    VV=6
    VVD=7
    VKR=8
    VVR=12
    VT=13
    VQ=16
    VA=32
    VS=48
    VP=80
    VAO=82
    VO=92
    VM=90; VL=91; VAL=96; VMC=97
    SELE=98; SELO=102
    VX=106
    VMX=14
    VD=112
    set_poll_regs(112)
    S_SOF = S_OFFB

    a.label("L_stream")
    if cfg.PRIO: a(f"s_setprio {cfg.PRIO}")
    a(f"s_lshl_b32 {sr(S_OFFA)}, {sr(S_WAVE)}, 13")
    a(f"s_lshl_b32 {sr(S_RING)}, {sr(S_WAVE)}, 15")
    S_PH = 84
    if cfg.PHASE:
        a(f"s_add_u32 {sr(S_T2)}, {sr(S_WG)}, {sr(S_B)}")
        for r in range(4):
            a(f"s_add_u32 {sr(S_PH+r)}, {sr(S_T2)}, {r}")
            a(f"s_and_b32 {sr(S_PH+r)}, {sr(S_PH+r)}, 3")
            a(f"s_lshl_b32 {sr(S_PH+r)}, {sr(S_PH+r)}, 15")
        a(f"s_bfe_u32 {sr(S_T1)}, {sr(S_T2)}, 0x30002")
        a(f"s_lshl_b32 {sr(S_T1)}, {sr(S_T1)}, 17")
        a(f"s_add_u32 {sr(S_OFFA)}, {sr(S_OFFA)}, {sr(S_T1)}")
    a(f"v_lshrrev_b32 {vr(VT)}, 4, {vr(V_LANE)}")
    a(f"v_and_b32 {vr(VT+1)}, 15, {vr(V_LANE)}")
    for j in range(4):
        a(f"v_add_u32 {vr(VK+j)}, {4*j}, {vr(VT)}")
        a(f"v_xor_b32 {vr(VK+j)}, {vr(VK+j)}, {vr(VT+1)}")
        a(f"v_lshlrev_b32 {vr(VK+j)}, 4, {vr(VK+j)}")
        a(f"v_lshl_add_u32 {vr(VK+j)}, {vr(VT)}, 8, {vr(VK+j)}")
    a(f"s_lshl_b32 {sr(S_T0)}, {sr(S_WG)}, 20")
    a("s_waitcnt lgkmcnt(0)")
    srd(a, S_SRDK, S_K, S_T0, 0x100000)
    srd(a, S_SRDV, S_V, S_T0, 0x100000)

    NP = 64
    def load_desc(i):
        if i < NP:
            p = i % 32; r = p//8; half = (p % 8)//4; j = p % 4
            if i < 32: return dict(kind='K', j=j, r=r, half=half, slot=p//4, last=False, req=None)
            return dict(kind='VD', j=j, r=r, half=half, dst=VD+32*r+16*half+4*j, last=(i == 63), req=None)
        ip = i - NP
        g = ip//4; j = ip % 4; p = ip % 64
        pp = p % 32; r = pp//8; half = (pp % 8)//4
        req = g if ip < 32 else 16 + (ip-32)//4
        return dict(kind='K' if p < 32 else 'V', j=j, r=r, half=half, slot=g % 8, last=(p == 63), req=req)
    def unit_desc(u):
        if u < 16:
            if u < 8: return dict(k=True, r=u//2, half=u % 2, slot=u, need=4*u+3, direct=None)
            q = u - 8
            return dict(k=False, r=q//2, half=q % 2, slot=None, need=32+4*q+3, direct=VD+32*(q//2)+16*(q % 2))
        g = u - 16; q = g % 16
        qq = q % 8
        return dict(k=(q < 8), r=qq//2, half=qq % 2, slot=g % 8, need=NP+4*g+3, direct=None)

    state = {"m0": None, "sof": None}
    win = {"n": N}
    def issue(i, wait=True):
        d = load_desc(i)
        key = (d['r'], d['half'])
        if state["sof"] != key or d['j'] == 0:
            if cfg.PHASE:
                a(f"s_add_u32 {sr(S_SOF)}, {sr(S_OFFA)}, {sr(S_PH+d['r'])}")
                if d['half']: a(f"s_add_u32 {sr(S_SOF)}, {sr(S_SOF)}, 4096")
            else:
                a(f"s_add_u32 {sr(S_SOF)}, {sr(S_OFFA)}, {d['r']*32768 + d['half']*4096}")
            state["sof"] = key
        if d['kind'] != 'VD' and state["m0"] != d['slot']:
            a(f"s_add_u32 m0, {sr(S_RING)}, {d['slot']*4096}")
            state["m0"] = d['slot']
            if not wait: a("s_nop 0")
        if wait: a(f"s_waitcnt vmcnt({win['n']-1})")
        j = d['j']
        if d['kind'] == 'K':
            a(f"buffer_load_dwordx4 {vr(VK+j)}, {sr(S_SRDK,4)}, {sr(S_SOF)} offen offset:{j*1024} {cfg.KFLAGS} lds")
        elif d['kind'] == 'V':
            a(f"buffer_load_dwordx4 {vr(VV)}, {sr(S_SRDV,4)}, {sr(S_SOF)} offen offset:{j*1024} {cfg.VFLAGS} lds")
        else:
            a(f"buffer_load_dwordx4 {vr(d['dst'],4)}, {vr(VVD)}, {sr(S_SRDV,4)}, {sr(S_SOF)} offen offset:{j*256} {cfg.VFLAGS}")
        if d['last']:
            a(f"s_add_u32 {sr(S_OFFA)}, {sr(S_OFFA)}, 131072")
            if cfg.PHASE: a(f"s_and_b32 {sr(S_OFFA)}, {sr(S_OFFA)}, 0xfffff")
            state["sof"] = None

    def piece(u, p):
        if cfg.NOCONS: return
        d = unit_desc(u)
        S = VS + 8*d['r'] + 4*d['half']
        if d['k']:
            slot = d['slot']*4096
            first = (d['r'] == 0 and d['half'] == 0)
            lastk = (d['r'] == 3 and d['half'] == 1)
            if p == 0:
                for t in range(4):
                    a(f"ds_read_b128 {vr(VA+4*t,4)}, {vr(VKR+t)} offset:{slot}")
            elif p == 1:
                for t in range(4):
                    a(f"s_waitcnt lgkmcnt({3-t})")
                    mfma(a, S, VA+4*t, VQ+4*t, None if t == 0 else S)
            elif p == 2:
                a("s_nop 7")
                if cfg.RSCORE:
                    for rnd in range(2):
                        a(f"v_cvt_pk_bf16_f32 {vr(VX)}, {vr(S)}, {vr(S+1)}")
                        a(f"v_cvt_pk_bf16_f32 {vr(VX+1)}, {vr(S+2)}, {vr(S+3)}")
                        a(f"v_lshlrev_b32 {vr(S)}, 16, {vr(VX)}")
                        a(f"v_and_b32 {vr(S+1)}, {sr(S_MASKHI)}, {vr(VX)}")
                        a(f"v_lshlrev_b32 {vr(S+2)}, 16, {vr(VX+1)}")
                        a(f"v_and_b32 {vr(S+3)}, {sr(S_MASKHI)}, {vr(VX+1)}")
                        if rnd == 0:
                            for e in range(4):
                                a(f"v_mul_f32 {vr(S+e)}, {sr(S_MASKHI+1)}, {vr(S+e)}")
                a(f"v_max3_f32 {vr(VMX)}, {vr(VM if first else VMX)}, {vr(S)}, {vr(S+1)}")
                a(f"v_max3_f32 {vr(VMX)}, {vr(VMX)}, {vr(S+2)}, {vr(S+3)}")
            elif p == 3 and lastk:
                groups_allreduce(a, VMX, VX, "v_max_f32")
                a(f"v_sub_f32 {vr(VAL)}, {vr(VM)}, {vr(VMX)}")
                a(f"v_mul_f32 {vr(VMC)}, {sr(S_C)}, {vr(VMX)}")
                a(f"v_mul_f32 {vr(VAL)}, {sr(S_C)}, {vr(VAL)}")
                a(f"v_mov_b32 {vr(VM)}, {vr(VMX)}")
                a(f"v_exp_f32 {vr(VAL)}, {vr(VAL)}")
                a("s_nop 0")
                for r in range(4):
                    a(f"v_mul_f32 {vr(VO+r)}, {vr(VO+r)}, {vr(VAL)}")
                a(f"v_mul_f32 {vr(VL)}, {vr(VL)}, {vr(VAL)}")
        else:
            direct = d['direct']
            if p == 0:
                if direct is None:
                    for r in range(4):
                        a(f"ds_read_b128 {vr(VA+4*r,4)}, {vr(VVR)} offset:{d['slot']*4096 + r*256}")
                for r in range(4):
                    a(f"v_fma_f32 {vr(S+r)}, {vr(S+r)}, {sr(S_C)}, -{vr(VMC)}")
                for r in range(4):
                    a(f"v_exp_f32 {vr(S+r)}, {vr(S+r)}")
                a("s_nop 0")
                a(f"v_cvt_pk_bf16_f32 {vr(VP)}, {vr(S)}, {vr(S+1)}")
                a(f"v_cvt_pk_bf16_f32 {vr(VP+1)}, {vr(S+2)}, {vr(S+3)}")
                a(f"v_add_f32 {vr(VX)}, {vr(S)}, {vr(S+1)}")
                a(f"v_add_f32 {vr(VX+1)}, {vr(S+2)}, {vr(S+3)}")
                a(f"v_add_f32 {vr(VL)}, {vr(VL)}, {vr(VX)}")
                a(f"v_add_f32 {vr(VL)}, {vr(VL)}, {vr(VX+1)}")
            r = p
            ao = VAO + 4*(r&1)
            diag(a, ao, VP + (r>>1), r&1, SELE, SELO)
            if direct is None:
                a(f"s_waitcnt lgkmcnt({3-r})")
                a("s_nop 0")
                mfma(a, VO, ao, VA+4*r, VO)
            else:
                a("s_nop 1")
                mfma(a, VO, ao, direct+4*r, VO)

    N0 = cfg.N0 or N
    for i in range(N0): issue(i, wait=False)
    if cfg.QFLAG: a("s_barrier")
    a(f"v_lshlrev_b32 {vr(VV)}, 4, {vr(V_LANE)}")
    a(f"v_lshlrev_b32 {vr(VVD)}, 10, {vr(VT)}")
    a(f"v_lshl_add_u32 {vr(VVD)}, {vr(VT+1)}, 4, {vr(VVD)}")
    for t in range(4):
        a(f"v_add_u32 {vr(VKR+t)}, {4*t}, {vr(VT)}")
        a(f"v_xor_b32 {vr(VKR+t)}, {vr(VKR+t)}, {vr(VT+1)}")
        a(f"v_lshlrev_b32 {vr(VKR+t)}, 4, {vr(VKR+t)}")
        a(f"v_lshl_add_u32 {vr(VKR+t)}, {vr(VT+1)}, 8, {vr(VKR+t)}")
        a(f"v_add_u32 {vr(VKR+t)}, {sr(S_RING)}, {vr(VKR+t)}")
    a(f"v_add_u32 {vr(VVR)}, {sr(S_RING)}, {vr(VVD)}")
    make_selectors(a, V_LANE, SELE, SELO, VX, VX+1, VX+2, VX+3)
    a(f"v_mov_b32 {vr(VM)}, 0xff800000")
    a(f"v_mov_b32 {vr(VL)}, 0")
    for r in range(4): a(f"v_mov_b32 {vr(VO+r)}, 0")
    a(f"s_mov_b32 {sr(S_C)}, {hexf(math.log2(math.e) if cfg.RSCORE else C_SCALE)}")
    a(f"s_mov_b32 {sr(S_MASKHI)}, 0xffff0000")
    a(f"s_mov_b32 {sr(S_MASKHI+1)}, {hexf(128 ** -0.5)}")

    RA = cfg.RUNAHEAD
    for i in range(N0, RA):
        assert load_desc(i)['req'] is None
        win["n"] = N0 if i < cfg.R0 else N
        issue(i)
        if cfg.PROSTAMP and i == N: a(f"s_memrealtime {sr(S_STAMP+4,2)}")
        if cfg.PROSTAMP and i == 20: a(f"s_memrealtime {sr(S_STAMP+8,2)}")
        if cfg.PROSTAMP and i == 40: a(f"s_memrealtime {sr(S_STAMP+10,2)}")
    stamp(a, cfg, 1)
    if cfg.QFLAG:
        a(f"v_mov_b32 {vr(VX)}, {FLAG+16}")
        a.label("L_qwait")
        a(f"ds_read_b32 {vr(VX+1)}, {vr(VX)}")
        a("s_waitcnt lgkmcnt(0)")
        a(f"v_readfirstlane_b32 {sr(S_T0)}, {vr(VX+1)}")
        a("s_nop 3")
        a(f"s_cmp_ge_u32 {sr(S_T0)}, 4")
        a("s_cbranch_scc1 L_qready")
        a("s_sleep 1")
        a("s_branch L_qwait")
        a.label("L_qready")
    else:
        a("s_barrier")
    stamp(a, cfg, 2)
    nxt = RA
    def try_issue(done_units):
        nonlocal nxt
        d = load_desc(nxt)
        if d['req'] is not None and d['req'] >= done_units: return False
        issue(nxt); nxt += 1
        return True
    a(f"v_lshlrev_b32 {vr(VX)}, 4, {vr(V_LANE)}")
    a(f"v_and_b32 {vr(VX)}, 0x1ff, {vr(VX)}")
    a(f"v_add_u32 {vr(VX)}, {QPART}, {vr(VX)}")
    for p in range(4):
        a(f"ds_read_b128 {vr(VA+4*p,4)}, {vr(VX)} offset:{p*512}")
    try_issue(0); try_issue(0)
    a("s_waitcnt lgkmcnt(0)")
    for e in range(4):
        a(f"v_add_f32 {vr(VA+e)}, {vr(VA+e)}, {vr(VA+4+e)}")
        a(f"v_add_f32 {vr(VA+8+e)}, {vr(VA+8+e)}, {vr(VA+12+e)}")
    for e in range(4):
        a(f"v_add_f32 {vr(VA+e)}, {vr(VA+e)}, {vr(VA+8+e)}")
    a(f"v_cvt_pk_bf16_f32 {vr(VA+4)}, {vr(VA)}, {vr(VA+1)}")
    a(f"v_cvt_pk_bf16_f32 {vr(VA+5)}, {vr(VA+2)}, {vr(VA+3)}")
    a(f"v_lshlrev_b32 {vr(VX+1)}, 3, {vr(V_LANE)}")
    a(f"v_and_b32 {vr(VX+1)}, 0xff, {vr(VX+1)}")
    a(f"s_lshl_b32 {sr(S_T0)}, {sr(S_WAVE)}, 8")
    a(f"s_add_u32 {sr(S_T0)}, {sr(S_T0)}, {QBF}")
    a(f"v_add_u32 {vr(VX+1)}, {sr(S_T0)}, {vr(VX+1)}")
    a(f"ds_write_b64 {vr(VX+1)}, {vr(VA+4,2)}")
    a(f"v_lshrrev_b32 {vr(VX+2)}, 4, {vr(V_LANE)}")
    a(f"v_lshlrev_b32 {vr(VX+2)}, 4, {vr(VX+2)}")
    a(f"v_add_u32 {vr(VX+2)}, {sr(S_T0)}, {vr(VX+2)}")
    a("s_waitcnt lgkmcnt(0)")
    for t in range(4):
        a(f"ds_read_b128 {vr(VQ+4*t,4)}, {vr(VX+2)} offset:{t*64}")
    try_issue(0)
    a("s_waitcnt lgkmcnt(0)")
    VERS = [int(x) for x in cfg.VERS.split(',')]
    ramp = [tuple(int(y) for y in x.split(':')) for x in cfg.RAMP.split(',')] if cfg.RAMP else []
    NMAX = max([v for v in VERS if v != 99] + [N] + [r[0] for r in ramp])
    U0 = 32
    target = NP + 64 + NMAX + 3
    u = 0
    while u < U0 or nxt < target:
        d = unit_desc(u) if u < U0 else None
        if d is not None and nxt - 1 - N >= d['need']:
            ahead = (nxt - 1 - N) - d['need']
            for p in range(4):
                piece(u, p)
                want = (ahead < 2) or (p in (1, 3))
                if want and nxt < target:
                    try_issue(u)
            u += 1
        else:
            if not (nxt < target and try_issue(u)):
                raise RuntimeError(f"schedule deadlock u={u} nxt={nxt}")
    assert nxt == target and u == U0, (nxt, target, u, U0)
    if cfg.POLL:
        poll_setup(a, cfg)
    niter = (128 - U0)//16
    S_POL = S_TS
    VPG = 224
    if cfg.WPOL:
        wp = [int(x) for x in cfg.WPOL.split(',')]
        a(f"s_mov_b32 {sr(S_POL)}, {wp[0]}")
        for w in range(1, 4):
            a(f"s_cmp_eq_u32 {sr(S_WAVE)}, {w}")
            a(f"s_cselect_b32 {sr(S_POL)}, {wp[w]}, {sr(S_POL)}")
    else:
        a(f"s_mov_b32 {sr(S_POL)}, {N}")
    if cfg.CTL:
        a(f"v_mov_b32 {vr(VPG)}, {FLAG+8}")
    if cfg.LOOPSTAMP:
        a(f"s_memrealtime {sr(S_STAMP+4,2)}")
        a("s_waitcnt lgkmcnt(0)")
    a(f"s_mov_b32 {sr(S_CNT)}, 1")
    if cfg.ALIGN: a(f".p2align {cfg.ALIGN}")
    a.label("L_sloop")
    if cfg.KT:
        a(f"s_cmp_gt_u32 {sr(S_CNT)}, {niter - cfg.KT}")
        a(f"s_cselect_b32 {sr(S_POL)}, {cfg.NT}, {sr(S_POL)}")
        assert cfg.NT in VERS
    if cfg.CTL:
        a(f"v_mov_b32 {vr(VPG+1)}, {sr(S_CNT)}")
        a(f"s_cmp_lg_u32 {sr(S_WAVE)}, 0")
        a("s_cbranch_scc1 L_nopg")
        a(f"ds_write_b32 {vr(VPG)}, {vr(VPG+1)}")
        a.label("L_nopg")
    for vi, n in enumerate(VERS[:-1]):
        a(f"s_cmp_eq_u32 {sr(S_POL)}, {n}")
        a(f"s_cbranch_scc1 L_ver{n}")
    order = [VERS[-1]] + VERS[:-1]
    for vi, n in enumerate(order):
        if cfg.ALIGN and vi > 0: a(f".p2align {cfg.ALIGN}")
        a.label(f"L_ver{n}")
        win["n"] = n
        state["m0"] = None; state["sof"] = None
        final = (cfg.KT == 1 and n == cfg.NT and cfg.NT != N and not cfg.CTL)
        for uu in range(64):
            if n == 99:
                win["n"] = [w for (w, f) in ramp if f <= uu][-1]
            actual = target + uu + 64*(niter-1)
            if final and actual >= 512:
                if uu % 4 == 0:
                    need = unit_desc(U0 + uu//4)['need'] + 64*(niter-1)
                    assert need <= 511
                    a(f"s_waitcnt vmcnt({511 - need})")
            else:
                issue(target + uu)
            piece(U0 + uu//4, uu % 4)
        if vi < len(order) - 1:
            a("s_branch L_snext")
    a.label("L_snext")
    if cfg.LOOPSTAMP:
        a(f"s_cmp_eq_u32 {sr(S_CNT)}, {cfg.LOOPSTAMP}")
        a("s_cbranch_scc0 L_nols")
        a(f"s_memrealtime {sr(S_STAMP+2,2)}")
        a("s_waitcnt lgkmcnt(0)")
        a.label("L_nols")
    if cfg.CTL:
        a(f"v_readfirstlane_b32 {sr(S_POL)}, {vr(VPG+2)}")
    a(f"s_add_u32 {sr(S_CNT)}, {sr(S_CNT)}, 1")
    a(f"s_cmp_le_u32 {sr(S_CNT)}, {niter}")
    a("s_cbranch_scc1 L_sloop")
    stamp(a, cfg, 3)
    groups_allreduce(a, VL, VX, "v_add_f32")
    a(f"v_and_b32 {vr(VX)}, 15, {vr(V_LANE)}")
    a(f"v_lshrrev_b32 {vr(VX+1)}, 4, {vr(V_LANE)}")
    a(f"v_lshlrev_b32 {vr(VX)}, 5, {vr(VX)}")
    a(f"v_lshl_add_u32 {vr(VX)}, {vr(VX+1)}, 4, {vr(VX)}")
    a(f"s_lshl_b32 {sr(S_T0)}, {sr(S_WAVE)}, 9")
    a(f"s_add_u32 {sr(S_T0)}, {sr(S_T0)}, {OPART}")
    a(f"v_add_u32 {vr(VX)}, {sr(S_T0)}, {vr(VX)}")
    a(f"s_lshl_b32 {sr(S_T0)}, {sr(S_WAVE)}, 2")
    a(f"s_add_u32 {sr(S_T0)}, {sr(S_T0)}, {ML}")
    a(f"v_mov_b32 {vr(VX+2)}, {sr(S_T0)}")
    a("s_mov_b32 exec_hi, 0")
    a(f"ds_write_b128 {vr(VX)}, {vr(VO,4)}")
    a("s_mov_b64 exec, 1")
    a(f"ds_write_b32 {vr(VX+2)}, {vr(VM)}")
    a(f"ds_write_b32 {vr(VX+2)}, {vr(VL)} offset:16")
    a("s_mov_b64 exec, -1")
    a("s_waitcnt lgkmcnt(0)")
    a("s_barrier")
    if cfg.POLL:
        a(f"s_cmp_eq_u32 {sr(S_H)}, {sr(S_B) if cfg.REDB else cfg.RED_H}")
        a("s_cbranch_scc1 L_reducer")
    else:
        a("s_waitcnt vmcnt(0)")
    a("s_branch L_tail")

def gen_side(a, cfg):
    V_LANE=0
    VF=2
    VXR=12
    VT=17
    SELE=28; SELO=32
    VAO=36
    VACC=44
    VH0=64; VH1=68
    VXA=72
    VOF=90
    VW=96
    VWA=VACC
    WF = cfg.WFLAGS
    D = cfg.DEPTH
    S_ROT = S_CNT
    S_SO = S_OFFA

    a.label("L_side")
    a(f"s_sub_u32 {sr(S_SW)}, {sr(S_WAVE)}, 4")
    a("s_waitcnt lgkmcnt(0)")
    if cfg.QFLAG:
        a(f"v_mov_b32 {vr(VT+4)}, {FLAG+4}")
        a(f"v_mov_b32 {vr(VT+5)}, 0")
        a(f"ds_write_b32 {vr(VT+4)}, {vr(VT+5)}")
        a(f"ds_write_b32 {vr(VT+4)}, {vr(VT+5)} offset:12")
    a(f"s_mul_i32 {sr(S_T0)}, {sr(S_B)}, 1152")
    srd(a, S_SRDK, S_X, S_T0, 1152)
    a(f"v_lshlrev_b32 {vr(VT)}, 2, {vr(V_LANE)}")
    for k in range(5):
        a(f"buffer_load_dword {vr(VXR+k)}, {vr(VT)}, {sr(S_SRDK,4)}, 0 offen offset:{256*k}")
    a(f"s_lshl_b32 {sr(S_T0)}, {sr(S_H)}, 8")
    a(f"s_sub_u32 {sr(S_T1)}, {576*8192}, {sr(S_T0)}")
    srd(a, S_SRDV, S_WQ, S_T0, sr(S_T1))
    if cfg.ROT:
        a(f"s_mul_i32 {sr(S_ROT)}, {sr(S_B)}, 18")
        a(f"s_lshr_b32 {sr(S_ROT)}, {sr(S_ROT)}, 3")
        a(f"s_lshl_b32 {sr(S_ROT)}, {sr(S_ROT)}, 1")
    else:
        a(f"s_mov_b32 {sr(S_ROT)}, 0")
    a(f"v_lshrrev_b32 {vr(VT+1)}, 4, {vr(V_LANE)}")
    a(f"v_and_b32 {vr(VT+2)}, 15, {vr(V_LANE)}")
    a(f"v_mul_u32_u24 {vr(VT+3)}, 36, {vr(VT+1)}")
    a(f"s_mul_i32 {sr(S_T2)}, {sr(S_SW)}, 144")
    a(f"v_add_u32 {vr(VT+3)}, {sr(S_T2)}, {vr(VT+3)}")
    a(f"v_lshlrev_b32 {vr(VOF)}, 13, {vr(VT+3)}")
    a(f"v_lshl_add_u32 {vr(VOF)}, {vr(VT+2)}, 4, {vr(VOF)}")
    def adv(step, n):
        a(f"s_add_u32 {sr(S_SO)}, {sr(S_SO)}, {step}")
        a(f"s_cmp_ge_u32 {sr(S_SO)}, {step*n}")
        a(f"s_cselect_b32 {sr(S_SO)}, 0, {sr(S_SO)}")
    a(f"s_lshl_b32 {sr(S_SO)}, {sr(S_ROT)}, 13")
    DQ = cfg.DQ
    def wq_load(t):
        a(f"buffer_load_dwordx4 {vr(VW+4*t,4)}, {vr(VOF)}, {sr(S_SRDV,4)}, {sr(S_SO)} offen {WF}")
        if t < 35: adv(8192, 36)
    for t in range(DQ): wq_load(t)
    if cfg.QFLAG:
        a("s_waitcnt lgkmcnt(0)")
        a("s_barrier")
    a(f"s_mov_b32 {sr(S_T3)}, 9216")
    a(f"v_mul_lo_u32 {vr(VOF+1)}, {vr(VT+3)}, {sr(S_T3)}")
    a(f"v_lshl_add_u32 {vr(VOF+1)}, {vr(VT+2)}, 4, {vr(VOF+1)}")
    a(f"v_add_u32 {vr(VOF+2)}, 256, {vr(VOF+1)}")
    a(f"v_mov_b32 {vr(VT+4)}, 0x7f000000")
    a(f"v_cmp_gt_u32 vcc, 2, {vr(VT+2)}")
    a("s_nop 1")
    a(f"v_cndmask_b32 {vr(VOF+2)}, {vr(VT+4)}, {vr(VOF+2)}, vcc")
    make_selectors(a, V_LANE, SELE, SELO, VT+4, VT+5, VT+6, VT+7)
    a(f"s_mov_b32 {sr(S_MASKHI)}, 0xffff0000")
    a(f"s_mul_i32 {sr(S_T0)}, {sr(S_SW)}, 2560")
    a(f"s_add_u32 {sr(S_T0)}, {sr(S_T0)}, {XPRIV}")
    a(f"s_movk_i32 {sr(S_T1)}, 3641")
    for k in range(5):
        a(f"v_add_u32 {vr(VT+4)}, {64*k}, {vr(V_LANE)}")
        a(f"v_mul_u32_u24 {vr(VT+5)}, {sr(S_T1)}, {vr(VT+4)}")
        a(f"v_lshrrev_b32 {vr(VT+5)}, 16, {vr(VT+5)}")
        a(f"v_mul_u32_u24 {vr(VT+5)}, 72, {vr(VT+5)}")
        a(f"v_lshl_add_u32 {vr(VWA+k)}, {vr(VT+4)}, 2, {vr(VT+5)}")
        a(f"v_add_u32 {vr(VWA+k)}, {sr(S_T0)}, {vr(VWA+k)}")
    a(f"s_mul_i32 {sr(S_T1)}, {sr(S_SW)}, 576")
    a(f"s_add_u32 {sr(S_T0)}, {sr(S_T0)}, {sr(S_T1)}")
    a(f"s_lshl_b32 {sr(S_T1)}, {sr(S_ROT)}, 1")
    a(f"s_add_u32 {sr(S_T0)}, {sr(S_T0)}, {sr(S_T1)}")
    a(f"v_mul_u32_u24 {vr(VOF+4)}, 144, {vr(VT+1)}")
    a(f"v_add_u32 {vr(VOF+4)}, {sr(S_T0)}, {vr(VOF+4)}")
    a(f"s_mov_b32 {sr(S_EX)}, -1")
    a(f"s_mov_b32 {sr(S_EX+1)}, 0")
    a(f"v_mov_b32 {vr(VT+4)}, {FLAG+4}")
    a(f"v_mov_b32 {vr(VT+5)}, 0")
    if not cfg.QFLAG: a(f"ds_write_b32 {vr(VT+4)}, {vr(VT+5)}")
    a(f"ds_write_b32 {vr(VT+4)}, {vr(VT+5)} offset:4")
    a(f"v_mov_b32 {vr(VT+5)}, {cfg.N}")
    a(f"ds_write_b32 {vr(VT+4)}, {vr(VT+5)} offset:8")

    def layernorm():
        s = VT+8; t = VT+9; u = VT+10
        a(f"v_add_f32 {vr(s)}, {vr(VF)}, {vr(VF+1)}")
        for k in range(2,10): a(f"v_add_f32 {vr(s)}, {vr(s)}, {vr(VF+k)}")
        allreduce_sum(a, s, t)
        a(f"v_mul_f32 {vr(s)}, {hexf(1.0/576)}, {vr(s)}")
        a(f"v_sub_f32 {vr(t)}, {vr(VF)}, {vr(s)}")
        a(f"v_mul_f32 {vr(u)}, {vr(t)}, {vr(t)}")
        for k in range(1,10):
            a(f"v_sub_f32 {vr(t)}, {vr(VF+k)}, {vr(s)}")
            if k >= 8:
                a(f"v_cndmask_b32 {vr(t)}, 0, {vr(t)}, {sr(S_EX,2)}")
            a(f"v_fmac_f32 {vr(u)}, {vr(t)}, {vr(t)}")
        allreduce_sum(a, u, t)
        a(f"v_mul_f32 {vr(u)}, {hexf(1.0/576)}, {vr(u)}")
        a(f"v_cvt_pk_bf16_f32 {vr(t)}, {vr(s)}, {vr(u)}")
        a(f"v_lshlrev_b32 {vr(s)}, 16, {vr(t)}")
        a(f"v_and_b32 {vr(u)}, {sr(S_MASKHI)}, {vr(t)}")
        a(f"v_add_f32 {vr(u)}, {hexf(1e-5)}, {vr(u)}")
        a(f"v_cvt_pk_bf16_f32 {vr(u)}, {vr(u)}, {vr(u)}")
        a(f"v_and_b32 {vr(u)}, {sr(S_MASKHI)}, {vr(u)}")
        a(f"v_sqrt_f32 {vr(u)}, {vr(u)}")
        a("s_nop 0")
        a(f"v_cvt_pk_bf16_f32 {vr(u)}, {vr(u)}, {vr(u)}")
        a(f"v_and_b32 {vr(u)}, {sr(S_MASKHI)}, {vr(u)}")
        a(f"v_rcp_f32 {vr(u)}, {vr(u)}")
        for k in range(5):
            A0 = VF+2*k; A1 = A0+1
            a(f"v_sub_f32 {vr(A0)}, {vr(A0)}, {vr(s)}")
            a(f"v_sub_f32 {vr(A1)}, {vr(A1)}, {vr(s)}")
            a(f"v_cvt_pk_bf16_f32 {vr(t)}, {vr(A0)}, {vr(A1)}")
            a(f"v_lshlrev_b32 {vr(A0)}, 16, {vr(t)}")
            a(f"v_and_b32 {vr(A1)}, {sr(S_MASKHI)}, {vr(t)}")
            a(f"v_mul_f32 {vr(A0)}, {vr(A0)}, {vr(u)}")
            a(f"v_mul_f32 {vr(A1)}, {vr(A1)}, {vr(u)}")
            a(f"v_cvt_pk_bf16_f32 {vr(VXR+k)}, {vr(A0)}, {vr(A1)}")
            a(f"v_lshlrev_b32 {vr(A0)}, 16, {vr(VXR+k)}")
            a(f"v_and_b32 {vr(A1)}, {sr(S_MASKHI)}, {vr(VXR+k)}")
            if k == 4: a("s_mov_b32 exec_hi, 0")
            a(f"ds_write_b32 {vr(VWA+k)}, {vr(VXR+k)}")
            a(f"ds_write_b32 {vr(VWA+k)}, {vr(VXR+k)} offset:72")
            if k == 4: a("s_mov_b64 exec, -1")
        a(f"v_cndmask_b32 {vr(VF+8)}, 0, {vr(VF+8)}, {sr(S_EX,2)}")
        a(f"v_cndmask_b32 {vr(VF+9)}, 0, {vr(VF+9)}, {sr(S_EX,2)}")
        a("s_waitcnt lgkmcnt(0)")
        for k in range(9):
            a(f"ds_read2_b32 {vr(VXA+2*k,2)}, {vr(VOF+4)} offset0:{2*k} offset1:{2*k+1}")

    a(f"s_waitcnt vmcnt({DQ})")
    for k in range(5):
        a(f"v_lshlrev_b32 {vr(VF+2*k)}, 16, {vr(VXR+k)}")
        a(f"v_and_b32 {vr(VF+2*k+1)}, {sr(S_MASKHI)}, {vr(VXR+k)}")
    layernorm()
    a("s_waitcnt lgkmcnt(0)")
    for t in range(36):
        ao = VAO + 4*(t&1)
        diag(a, ao, VXA + (t>>1), t&1, SELE, SELO)
        a(f"s_waitcnt vmcnt({min(DQ, 36-t)-1})")
        a("s_nop 0")
        mfma(a, VH0, ao, VW+4*t, None if t == 0 else VH0)
        if t + DQ < 36: wq_load(t + DQ)
    a(f"v_and_b32 {vr(VT)}, 15, {vr(V_LANE)}")
    a(f"v_lshrrev_b32 {vr(VT+1)}, 4, {vr(V_LANE)}")
    a(f"v_lshlrev_b32 {vr(VT)}, 5, {vr(VT)}")
    a(f"v_lshl_add_u32 {vr(VOF+5)}, {vr(VT+1)}, 4, {vr(VT)}")
    a(f"s_lshl_b32 {sr(S_T0)}, {sr(S_SW)}, 9")
    a(f"s_add_u32 {sr(S_T0)}, {sr(S_T0)}, {QPART}")
    a(f"v_add_u32 {vr(VT)}, {sr(S_T0)}, {vr(VOF+5)}")
    a("s_nop 4")
    a("s_mov_b32 exec_hi, 0")
    a(f"ds_write_b128 {vr(VT)}, {vr(VH0,4)}")
    a("s_mov_b64 exec, -1")
    a("s_waitcnt lgkmcnt(0)")
    stamp(a, cfg, 1)
    if cfg.QFLAG:
        a(f"v_mov_b32 {vr(VT)}, {FLAG+16}")
        a(f"v_mov_b32 {vr(VT+1)}, 1")
        a("s_mov_b64 exec, 1")
        a(f"ds_add_u32 {vr(VT)}, {vr(VT+1)}")
        a("s_mov_b64 exec, -1")
    else:
        a("s_barrier")
    if cfg.NOSIDE:
        a("s_barrier")
        a("s_branch L_tail")

    if cfg.POLL:
        a(f"s_cmp_lg_u32 {sr(S_SW)}, 0")
        a("s_cbranch_scc1 L_noreset")
        a(f"s_mul_i32 {sr(S_T0)}, {sr(S_WG)}, 2304")
        srd(a, S_SRD2, S_WS, S_T0, 2304)
        a(f"v_lshlrev_b32 {vr(VT)}, 4, {vr(V_LANE)}")
        if cfg.REDB:
            a(f"s_cmp_eq_u32 {sr(S_H)}, {sr(S_B)}")
            a(f"s_cselect_b32 {sr(S_T1)}, 0, -1")
            for e in range(4): a(f"v_mov_b32 {vr(VW+e)}, {sr(S_T1)}")
        else:
            for e in range(4): a(f"v_mov_b32 {vr(VW+e)}, -1")
        for k in range(3):
            a(f"buffer_store_dwordx4 {vr(VW,4)}, {vr(VT)}, {sr(S_SRD2,4)}, 0 offen offset:{1024*k} sc1")
        a("s_waitcnt vmcnt(0)")
        if cfg.STARTSIG == 'atomic':
            a(f"s_lshl_b32 {sr(S_T0)}, {sr(S_B)}, 5")
            a(f"v_mov_b32 {vr(VT)}, {sr(S_T0)}")
            a(f"v_mov_b32 {vr(VT+1)}, 1")
            a("s_mov_b64 exec, 1")
            a(f"global_atomic_add {vr(VT)}, {vr(VT+1)}, {sr(S_DBG,2)} offset:4")
            a("s_mov_b64 exec, -1")
            a("s_waitcnt vmcnt(0)")
        elif cfg.STARTSIG == 'byte':
            a(f"v_mov_b32 {vr(VT)}, {sr(S_WG)}")
            a(f"v_mov_b32 {vr(VT+1)}, 1")
            a("s_mov_b64 exec, 1")
            a(f"global_store_byte {vr(VT)}, {vr(VT+1)}, {sr(S_DBG,2)} sc1")
            a("s_mov_b64 exec, -1")
            a("s_waitcnt vmcnt(0)")
        a.label("L_noreset")

    def paced(units, compute, D=D):
        flat = [(u, f) for u, fs in enumerate(units) for f in fs]
        last = {}
        for idx, (u, f) in enumerate(flat): last[u] = idx
        done = 0
        nu = len(units)
        for idx, (u, f) in enumerate(flat):
            if idx >= D: a(f"s_waitcnt vmcnt({D-1})")
            f()
            landed = idx - D if idx >= D else -1
            while done < nu and last[done] <= landed:
                compute(done); done += 1
        n = len(flat)
        while done < nu:
            a(f"s_waitcnt vmcnt({n-1-last[done]})")
            compute(done); done += 1

    if cfg.MMAP:
        a(f"s_and_b32 {sr(S_M)}, {sr(S_H)}, 7")
        a(f"s_lshl_b32 {sr(S_M)}, {sr(S_M)}, 2")
        a(f"s_lshr_b32 {sr(S_T0)}, {sr(S_H)}, 3")
        a(f"s_add_u32 {sr(S_M)}, {sr(S_M)}, {sr(S_T0)}")
    else:
        a(f"s_mov_b32 {sr(S_M)}, {sr(S_H)}")
    a(f"s_mul_i32 {sr(S_T0)}, {sr(S_M)}, 288")
    a(f"s_sub_u32 {sr(S_T1)}, {576*9216}, {sr(S_T0)}")
    srd(a, S_SRDV, S_W1, S_T0, sr(S_T1))
    layernorm()
    a(f"s_mul_i32 {sr(S_SO)}, {sr(S_ROT)}, 9216")
    a("s_waitcnt lgkmcnt(0)")
    NB = D + 2
    if not cfg.XTRA:
        def w1_unit(t):
            b = VW + 8*(t % NB)
            def f0(): a(f"buffer_load_dwordx4 {vr(b,4)}, {vr(VOF+1)}, {sr(S_SRDV,4)}, {sr(S_SO)} offen {WF}")
            def f1():
                a(f"buffer_load_dwordx4 {vr(b+4,4)}, {vr(VOF+2)}, {sr(S_SRDV,4)}, {sr(S_SO)} offen {WF}")
                if t < 35: adv(9216, 36)
            return [f0, f1]
        def w1_comp(t):
            b = VW + 8*(t % NB)
            ao = VAO + 4*(t&1)
            diag(a, ao, VXA + (t>>1), t&1, SELE, SELO)
            a("s_nop 1")
            mfma(a, VH0, ao, b, None if t == 0 else VH0)
            mfma(a, VH1, ao, b+4, None if t == 0 else VH1)
        paced([w1_unit(t) for t in range(18 if cfg.DIAGHALF else 36)], w1_comp)
    else:
        XW = 160; XY = 180; XA = 185; XT = 193; XE = 201; XE4 = 202
        a(f"v_lshrrev_b32 {vr(XT)}, 1, {vr(V_LANE)}")
        a(f"s_mul_i32 {sr(S_T2)}, {sr(S_SW)}, 144")
        a(f"v_add_u32 {vr(XT+1)}, {sr(S_T2)}, {vr(XT)}")
        a(f"s_movk_i32 {sr(S_T3)}, 9216")
        a(f"v_mul_lo_u32 {vr(XE)}, {vr(XT+1)}, {sr(S_T3)}")
        a(f"v_and_b32 {vr(XT+1)}, 1, {vr(V_LANE)}")
        a(f"v_lshl_add_u32 {vr(XE)}, {vr(XT+1)}, 4, {vr(XE)}")
        a(f"v_add_u32 {vr(XE)}, 256, {vr(XE)}")
        a(f"v_mov_b32 {vr(XT+1)}, 0x7f000000")
        a(f"v_cndmask_b32 {vr(XE4)}, {vr(XT+1)}, {vr(XE)}, {sr(S_EX,2)}")
        a(f"s_mul_i32 {sr(S_T0)}, {sr(S_SW)}, {2560+576}")
        a(f"s_add_u32 {sr(S_T0)}, {sr(S_T0)}, {XPRIV}")
        a(f"s_movk_i32 {sr(S_T1)}, 3641")
        a(f"v_and_b32 {vr(XT+2)}, 1, {vr(XT)}")
        a(f"v_lshlrev_b32 {vr(XT+2)}, 1, {vr(XT+2)}")
        a(f"v_add_u32 {vr(XT+2)}, {sr(S_T0)}, {vr(XT+2)}")
        a(f"v_lshrrev_b32 {vr(XT+3)}, 2, {vr(V_LANE)}")
        for m in range(5):
            a(f"v_add_u32 {vr(XT+4)}, {16*m}, {vr(XT+3)}")
            a(f"v_mul_u32_u24 {vr(XT+5)}, {sr(S_T1)}, {vr(XT+4)}")
            a(f"v_lshrrev_b32 {vr(XT+5)}, 16, {vr(XT+5)}")
            a(f"v_mul_u32_u24 {vr(XT+5)}, 72, {vr(XT+5)}")
            a(f"v_lshl_add_u32 {vr(XT+5)}, {vr(XT+4)}, 2, {vr(XT+5)}")
            a(f"v_add_u32 {vr(XT+5)}, {vr(XT+5)}, {vr(XT+2)}")
            a(f"ds_read_u16 {vr(XY+m)}, {vr(XT+5)}")
        a("s_waitcnt lgkmcnt(0)")
        for m in range(5):
            a(f"v_lshlrev_b32 {vr(XY+m)}, 16, {vr(XY+m)}")
        a(f"v_cndmask_b32 {vr(XY+4)}, 0, {vr(XY+4)}, {sr(S_EX,2)}")
        def x_unit(m):
            def f():
                a(f"s_mov_b32 {sr(S_T3)}, {32*m*9216}")
                a(f"buffer_load_dwordx4 {vr(XW+4*m,4)}, {vr(XE4 if m == 4 else XE)}, {sr(S_SRDV,4)}, {sr(S_T3)} offen {WF}")
            return [f]
        def x_comp(m):
            for k in range(4):
                a(f"v_lshlrev_b32 {vr(XT)}, 16, {vr(XW+4*m+k)}")
                a(f"v_and_b32 {vr(XT+1)}, {sr(S_MASKHI)}, {vr(XW+4*m+k)}")
                if m == 0:
                    a(f"v_mul_f32 {vr(XA+2*k)}, {vr(XY+m)}, {vr(XT)}")
                    a(f"v_mul_f32 {vr(XA+2*k+1)}, {vr(XY+m)}, {vr(XT+1)}")
                else:
                    a(f"v_fmac_f32 {vr(XA+2*k)}, {vr(XY+m)}, {vr(XT)}")
                    a(f"v_fmac_f32 {vr(XA+2*k+1)}, {vr(XY+m)}, {vr(XT+1)}")
        def w1_unit(t):
            b = VW + 4*(t % NB)
            def f0():
                a(f"buffer_load_dwordx4 {vr(b,4)}, {vr(VOF+1)}, {sr(S_SRDV,4)}, {sr(S_SO)} offen {WF}")
                if t < 35: adv(9216, 36)
            return [f0]
        def w1_comp(t):
            b = VW + 4*(t % NB)
            ao = VAO + 4*(t&1)
            diag(a, ao, VXA + (t>>1), t&1, SELE, SELO)
            a("s_nop 1")
            mfma(a, VH0, ao, b, None if t == 0 else VH0)
        paced([x_unit(m) for m in range(5)] + [w1_unit(t) for t in range(36)],
              lambda u: x_comp(u) if u < 5 else w1_comp(u-5))
        for r_ in (2, 4, 8):
            a("s_nop 1")
            for e in range(8):
                a(f"v_add_f32_dpp {vr(XA+e)}, {vr(XA+e)}, {vr(XA+e)} row_ror:{r_} row_mask:0xf bank_mask:0xf")
        for op in ("v_permlane16_swap_b32", "v_permlane32_swap_b32"):
            for e in range(8):
                a(f"v_mov_b32 {vr(XW+e)}, {vr(XA+e)}")
            a("s_nop 1")
            for e in range(8):
                a(f"{op} {vr(XA+e)}, {vr(XW+e)}")
            a("s_nop 1")
            for e in range(8):
                a(f"v_add_f32 {vr(XA+e)}, {vr(XA+e)}, {vr(XW+e)}")
        for e in range(8):
            a(f"v_mov_b32 {vr(XW+e)}, {vr(XA+e)}")
    a(f"s_mul_i32 {sr(S_T0)}, {sr(S_M)}, 288")
    srd(a, S_SRDK, S_B1, S_T0, 288)
    a(f"v_lshrrev_b32 {vr(VT+1)}, 4, {vr(V_LANE)}")
    a(f"v_mul_u32_u24 {vr(VT+2)}, 9, {vr(VT+1)}")
    a(f"s_mul_i32 {sr(S_T2)}, {sr(S_SW)}, 36")
    a(f"v_add_u32 {vr(VT+2)}, {sr(S_T2)}, {vr(VT+2)}")
    a(f"v_lshlrev_b32 {vr(VT+3)}, 1, {vr(VT+2)}")
    for t in range(9):
        a(f"buffer_load_ushort {vr(VF+t)}, {vr(VT+3)}, {sr(S_SRDK,4)}, 0 offen offset:{2*t}")
    a(f"s_lshl_b32 {sr(S_T0)}, {sr(S_SW)}, 10")
    a(f"s_add_u32 {sr(S_T0)}, {sr(S_T0)}, {HPART}")
    a(f"v_add_u32 {vr(VT)}, {sr(S_T0)}, {vr(VOF+5)}")
    a("s_mov_b32 exec_hi, 0")
    a(f"ds_write_b128 {vr(VT)}, {vr(VH0,4)}")
    if not cfg.XTRA:
        a(f"ds_write_b128 {vr(VT)}, {vr(VH1,4)} offset:512")
    else:
        a(f"v_lshlrev_b32 {vr(VT+4)}, 5, {vr(V_LANE)}")
        a(f"v_add_u32 {vr(VT+4)}, {sr(S_T0)}, {vr(VT+4)}")
        a("s_mov_b64 exec, 3")
        a(f"ds_write_b128 {vr(VT+4)}, {vr(160,4)} offset:512")
        a(f"ds_write_b128 {vr(VT+4)}, {vr(164,4)} offset:528")
    a("s_mov_b64 exec, -1")
    a(f"s_mul_i32 {sr(S_T0)}, {sr(S_M)}, {144*1152}")
    srd(a, S_SRDV, S_W2, S_T0, 144*1152)
    a(f"v_and_b32 {vr(VT+4)}, 15, {vr(V_LANE)}")
    a(f"s_movk_i32 {sr(S_T3)}, 1152")
    a(f"v_mul_lo_u32 {vr(VOF)}, {vr(VT+2)}, {sr(S_T3)}")
    a(f"v_lshl_add_u32 {vr(VOF)}, {vr(VT+4)}, 4, {vr(VOF)}")
    a(f"v_add_u32 {vr(VOF+1)}, 1024, {vr(VOF)}")
    a(f"v_mov_b32 {vr(VT+5)}, 0x7f000000")
    a(f"v_cmp_gt_u32 vcc, 8, {vr(VT+4)}")
    a("s_nop 1")
    a(f"v_cndmask_b32 {vr(VOF+1)}, {vr(VT+5)}, {vr(VOF+1)}, vcc")
    a(f"v_lshlrev_b32 {vr(VOF+2)}, 2, {vr(VT+2)}")
    a(f"v_add_u32 {vr(VOF+2)}, {HPART}, {vr(VOF+2)}")
    a(f"v_mov_b32 {vr(VT)}, {FLAG+4}")
    a(f"v_mov_b32 {vr(VT+1)}, 1")
    a("s_waitcnt lgkmcnt(0)")
    a("s_mov_b64 exec, 1")
    a(f"ds_add_u32 {vr(VT)}, {vr(VT+1)}")
    a("s_mov_b64 exec, -1")
    a.label("L_hsync")
    a(f"ds_read_b32 {vr(VT+1)}, {vr(VT)}")
    a("s_waitcnt lgkmcnt(0)")
    a(f"v_readfirstlane_b32 {sr(S_T0)}, {vr(VT+1)}")
    a("s_nop 3")
    a(f"s_cmp_ge_u32 {sr(S_T0)}, 4")
    a("s_cbranch_scc1 L_hsync_done")
    a("s_sleep 4")
    a("s_branch L_hsync")
    a.label("L_hsync_done")
    HS = VXA
    for t in range(9):
        a(f"ds_read_b32 {vr(HS+t)}, {vr(VOF+2)} offset:{4*t}")
        a(f"ds_read_b32 {vr(VT)}, {vr(VOF+2)} offset:{1024+4*t}")
        a(f"ds_read_b32 {vr(VT+1)}, {vr(VOF+2)} offset:{2048+4*t}")
        a(f"ds_read_b32 {vr(VT+2)}, {vr(VOF+2)} offset:{3072+4*t}")
        a("s_waitcnt lgkmcnt(0)")
        a(f"v_add_f32 {vr(HS+t)}, {vr(HS+t)}, {vr(VT)}")
        a(f"v_add_f32 {vr(VT+1)}, {vr(VT+1)}, {vr(VT+2)}")
        a(f"v_add_f32 {vr(HS+t)}, {vr(HS+t)}, {vr(VT+1)}")
    a("s_waitcnt vmcnt(0)")
    K1 = -2.0*math.log2(math.e)*math.sqrt(2.0/math.pi)
    a(f"s_mov_b32 {sr(S_T0)}, {hexf(0.044715)}")
    a(f"s_mov_b32 {sr(S_T1)}, {hexf(K1)}")
    for t in range(9):
        x = HS+t
        a(f"v_cvt_pk_bf16_f32 {vr(x)}, {vr(x)}, {vr(x)}")
        a(f"v_and_b32 {vr(x)}, {sr(S_MASKHI)}, {vr(x)}")
        a(f"v_lshlrev_b32 {vr(VF+t)}, 16, {vr(VF+t)}")
        a(f"v_add_f32 {vr(x)}, {vr(x)}, {vr(VF+t)}")
        a(f"v_cvt_pk_bf16_f32 {vr(x)}, {vr(x)}, {vr(x)}")
        a(f"v_and_b32 {vr(x)}, {sr(S_MASKHI)}, {vr(x)}")
        a(f"v_mul_f32 {vr(VT)}, {vr(x)}, {vr(x)}")
        a(f"v_mul_f32 {vr(VT)}, {vr(VT)}, {vr(x)}")
        a(f"v_fma_f32 {vr(VT)}, {vr(VT)}, {sr(S_T0)}, {vr(x)}")
        a(f"v_mul_f32 {vr(VT)}, {sr(S_T1)}, {vr(VT)}")
        a(f"v_exp_f32 {vr(VT)}, {vr(VT)}")
        a("s_nop 0")
        a(f"v_add_f32 {vr(VT)}, 1.0, {vr(VT)}")
        a(f"v_rcp_f32 {vr(VT)}, {vr(VT)}")
        a("s_nop 0")
        a(f"v_mul_f32 {vr(x)}, {vr(x)}, {vr(VT)}")
    HP = VF
    for k in range(4):
        a(f"v_cvt_pk_bf16_f32 {vr(HP+k)}, {vr(HS+2*k)}, {vr(HS+2*k+1)}")
    a(f"v_cvt_pk_bf16_f32 {vr(HP+4)}, {vr(HS+8)}, {vr(HS+8)}")

    def out_unit(t, base):
        fs = []
        for cg in range(4):
            def f(cg=cg):
                if cg == 0:
                    if cfg.ROT2 and t < 8:
                        a(f"s_and_b32 {sr(S_T3)}, {sr(S_B)}, {cfg.ROT2}")
                        a(f"s_xor_b32 {sr(S_T3)}, {sr(S_T3)}, {t}")
                        a(f"s_mul_i32 {sr(S_T3)}, {sr(S_T3)}, 1152")
                    else:
                        a(f"s_movk_i32 {sr(S_T3)}, {t*1152}")
                a(f"buffer_load_dwordx4 {vr(base+4*cg,4)}, {vr(VOF)}, {sr(S_SRDV,4)}, {sr(S_T3)} offen offset:{256*cg} {WF}")
            fs.append(f)
        fs.append(lambda: a(f"buffer_load_dwordx4 {vr(base+16,4)}, {vr(VOF+1)}, {sr(S_SRDV,4)}, {sr(S_T3)} offen {WF}"))
        return fs
    def out_comp(t, base, src, first):
        ao = VAO + 4*(t&1)
        diag(a, ao, src + (t>>1), t&1, SELE, SELO)
        a("s_nop 1")
        for cg in range(5):
            mfma(a, VACC+4*cg, ao, base+4*cg, None if first else VACC+4*cg)
    NB2 = 3
    paced([out_unit(t, VW + 20*(t % NB2)) for t in range(5 if cfg.DIAGHALF else 9)],
          lambda t: out_comp(t, VW + 20*(t % NB2), HP, t == 0), D=cfg.D2 or D)
    a(f"s_mul_i32 {sr(S_T0)}, {sr(S_H)}, {128*1152}")
    srd(a, S_SRDV, S_WO, S_T0, 128*1152)
    a(f"v_lshrrev_b32 {vr(VT+1)}, 4, {vr(V_LANE)}")
    a(f"v_and_b32 {vr(VT+4)}, 15, {vr(V_LANE)}")
    a(f"v_lshlrev_b32 {vr(VT+2)}, 3, {vr(VT+1)}")
    a(f"s_lshl_b32 {sr(S_T2)}, {sr(S_SW)}, 5")
    a(f"v_add_u32 {vr(VT+2)}, {sr(S_T2)}, {vr(VT+2)}")
    a(f"s_movk_i32 {sr(S_T3)}, 1152")
    a(f"v_mul_lo_u32 {vr(VOF)}, {vr(VT+2)}, {sr(S_T3)}")
    a(f"v_lshl_add_u32 {vr(VOF)}, {vr(VT+4)}, 4, {vr(VOF)}")
    a(f"v_add_u32 {vr(VOF+1)}, 1024, {vr(VOF)}")
    a(f"v_mov_b32 {vr(VT+5)}, 0x7f000000")
    a(f"v_cmp_gt_u32 vcc, 8, {vr(VT+4)}")
    a("s_nop 1")
    a(f"v_cndmask_b32 {vr(VOF+1)}, {vr(VT+5)}, {vr(VOF+1)}, vcc")
    paced([out_unit(t, VW + 20*t) for t in range(8)], lambda t: None, D=cfg.D3 or D)
    a(f"v_lshlrev_b32 {vr(VOF+2)}, 2, {vr(VT+2)}")
    a(f"v_add_u32 {vr(VOF+2)}, {OPART}, {vr(VOF+2)}")
    a(f"s_mul_i32 {sr(S_T0)}, {sr(S_SW)}, 2560")
    a(f"s_add_u32 {sr(S_T0)}, {sr(S_T0)}, {OUTP}")
    a(f"v_add_u32 {vr(VOF+3)}, {sr(S_T0)}, {vr(VOF+5)}")
    a(f"v_mov_b32 {vr(VOF+4)}, {ML}")
    a(f"s_mov_b32 {sr(S_C)}, {hexf(math.log2(math.e) if (cfg.RSCORE and cfg.SR) else C_SCALE)}")
    a("s_waitcnt vmcnt(0)")
    if cfg.POLL:
        a(f"s_cmp_lg_u32 {sr(S_H)}, {sr(S_B) if cfg.REDB else cfg.RED_H}")
        a("s_cbranch_scc1 L_started")
        a(f"s_cmp_lg_u32 {sr(S_SW)}, 0")
        a("s_cbranch_scc1 L_started")
        if cfg.STARTSIG == 'atomic':
            a(f"s_lshl_b32 {sr(S_T0)}, {sr(S_B)}, 5")
            a(f"v_mov_b32 {vr(VT)}, {sr(S_T0)}")
            a(f"s_mov_b32 {sr(S_T1)}, 200000")
            a.label("L_startchk")
            a(f"s_sub_u32 {sr(S_T1)}, {sr(S_T1)}, 1")
            a("s_cbranch_scc1 L_started")
            a(f"global_load_dword {vr(VT+1)}, {vr(VT)}, {sr(S_DBG,2)} offset:4 sc1")
            a("s_waitcnt vmcnt(0)")
            a(f"v_readfirstlane_b32 {sr(S_T0)}, {vr(VT+1)}")
            a("s_nop 3")
            a(f"s_cmp_ge_u32 {sr(S_T0)}, 32")
            a("s_cbranch_scc1 L_started")
            a("s_sleep 8")
            a("s_branch L_startchk")
        elif cfg.STARTSIG == 'byte':
            a(f"s_lshl_b32 {sr(S_T0)}, {sr(S_B)}, 5")
            a(f"v_and_b32 {vr(VT)}, 7, {vr(V_LANE)}")
            a(f"v_lshlrev_b32 {vr(VT)}, 2, {vr(VT)}")
            a(f"v_add_u32 {vr(VT)}, {sr(S_T0)}, {vr(VT)}")
            a(f"s_mov_b32 {sr(S_T1)}, 200000")
            a(f"s_mov_b32 {sr(S_T2)}, 0x01010101")
            a.label("L_startchk")
            a(f"s_sub_u32 {sr(S_T1)}, {sr(S_T1)}, 1")
            a("s_cbranch_scc1 L_started")
            a(f"global_load_dword {vr(VT+1)}, {vr(VT)}, {sr(S_DBG,2)} sc1")
            a("s_waitcnt vmcnt(0)")
            a(f"v_cmp_ne_u32 vcc, {sr(S_T2)}, {vr(VT+1)}")
            a("s_cbranch_vccz L_started")
            a("s_sleep 8")
            a("s_branch L_startchk")
        a.label("L_started")
    if cfg.CTL:
        T1, T2, nA, nB, nC = [int(x) for x in cfg.CTL.split(',')]
        niter = (128 - (4*cfg.PROUNDS + 8*cfg.K0))//8
        a(f"s_cmp_lg_u32 {sr(S_SW)}, 0")
        a("s_cbranch_scc1 L_ctl_done")
        a(f"v_mov_b32 {vr(VT)}, {FLAG+8}")
        a(f"ds_read_b32 {vr(VT+1)}, {vr(VT)}")
        a("s_waitcnt lgkmcnt(0)")
        a(f"v_readfirstlane_b32 {sr(S_T3)}, {vr(VT+1)}")
        a.label("L_ctl")
        a(f"s_cmp_ge_u32 {sr(S_T3)}, {niter - cfg.CTLSTOP}")
        a("s_cbranch_scc1 L_ctl_done")
        a("s_sleep 2")
        a(f"ds_read_b32 {vr(VT+1)}, {vr(VT)}")
        a("s_waitcnt lgkmcnt(0)")
        a(f"v_readfirstlane_b32 {sr(S_T2)}, {vr(VT+1)}")
        a("s_nop 3")
        a(f"s_cmp_eq_u32 {sr(S_T2)}, {sr(S_T3)}")
        a("s_cbranch_scc1 L_ctl")
        a(f"s_mov_b32 {sr(S_T3)}, {sr(S_T2)}")
        a(f"s_and_b32 {sr(S_T0)}, {sr(S_T3)}, 7")
        a(f"s_lshl_b32 {sr(S_T0)}, {sr(S_T0)}, 5")
        a(f"s_lshr_b32 {sr(S_T1)}, {sr(S_T3)}, 3")
        a(f"s_lshl_b32 {sr(S_T1)}, {sr(S_T1)}, 2")
        a(f"s_add_u32 {sr(S_T0)}, {sr(S_T0)}, {sr(S_T1)}")
        a(f"v_mov_b32 {vr(VT+2)}, {sr(S_T0)}")
        a(f"v_mov_b32 {vr(VT+3)}, 1")
        a("s_mov_b64 exec, 1")
        a(f"global_atomic_add {vr(VT+4)}, {vr(VT+2)}, {vr(VT+3)}, {sr(S_DBG,2)} offset:8 sc0")
        a("s_mov_b64 exec, -1")
        a("s_waitcnt vmcnt(0)")
        a(f"v_readfirstlane_b32 {sr(S_T0)}, {vr(VT+4)}")
        a("s_nop 3")
        a(f"s_mov_b32 {sr(S_T1)}, {nC}")
        a(f"s_cmp_lt_u32 {sr(S_T0)}, {T2}")
        a(f"s_cselect_b32 {sr(S_T1)}, {nB}, {sr(S_T1)}")
        a(f"s_cmp_lt_u32 {sr(S_T0)}, {T1}")
        a(f"s_cselect_b32 {sr(S_T1)}, {nA}, {sr(S_T1)}")
        a(f"v_mov_b32 {vr(VT+2)}, {sr(S_T1)}")
        a(f"ds_write_b32 {vr(VT)}, {vr(VT+2)} offset:4")
        a("s_branch L_ctl")
        a.label("L_ctl_done")
        a("s_waitcnt lgkmcnt(0)")
    stamp(a, cfg, 2)
    a("s_barrier")
    stamp(a, cfg, 3)
    MM = VXA; LL = VXA+4
    a(f"ds_read_b128 {vr(MM,4)}, {vr(VOF+4)}")
    a(f"ds_read_b128 {vr(LL,4)}, {vr(VOF+4)} offset:16")
    OR = [2, 10, 18, 80]
    for w in range(4):
        a(f"ds_read_b128 {vr(OR[w],4)}, {vr(VOF+2)} offset:{w*512}")
        a(f"ds_read_b128 {vr(OR[w]+4,4)}, {vr(VOF+2)} offset:{w*512+16}")
    a("s_waitcnt lgkmcnt(8)")
    mx = 26; tt = 27
    a(f"v_max3_f32 {vr(mx)}, {vr(MM)}, {vr(MM+1)}, {vr(MM+2)}")
    a(f"v_max_f32 {vr(mx)}, {vr(mx)}, {vr(MM+3)}")
    for w in range(4):
        a(f"v_sub_f32 {vr(MM+w)}, {vr(MM+w)}, {vr(mx)}")
    for w in range(4):
        a(f"v_mul_f32 {vr(MM+w)}, {sr(S_C)}, {vr(MM+w)}")
    for w in range(4):
        a(f"v_exp_f32 {vr(MM+w)}, {vr(MM+w)}")
    a("s_nop 0")
    a(f"v_mul_f32 {vr(tt)}, {vr(MM)}, {vr(LL)}")
    for w in range(1,4):
        a(f"v_fmac_f32 {vr(tt)}, {vr(MM+w)}, {vr(LL+w)}")
    a(f"v_rcp_f32 {vr(tt)}, {vr(tt)}")
    a("s_nop 0")
    for w in range(4):
        a(f"v_mul_f32 {vr(MM+w)}, {vr(MM+w)}, {vr(tt)}")
    a("s_waitcnt lgkmcnt(0)")
    for e in range(8):
        a(f"v_mul_f32 {vr(OR[0]+e)}, {vr(OR[0]+e)}, {vr(MM)}")
    for w in range(1,4):
        for e in range(8):
            a(f"v_fmac_f32 {vr(OR[0]+e)}, {vr(OR[w]+e)}, {vr(MM+w)}")
    OPK = 10
    for k in range(4):
        a(f"v_cvt_pk_bf16_f32 {vr(OPK+k)}, {vr(OR[0]+2*k)}, {vr(OR[0]+2*k+1)}")
    diag(a, VAO, OPK, 0, SELE, SELO)
    diag(a, VAO+4, OPK, 1, SELE, SELO)
    for t in range(8):
        ao = VAO + 4*(t&1)
        for cg in range(5):
            mfma(a, VACC+4*cg, ao, VW + 20*t + 4*cg, VACC+4*cg)
        if t + 2 < 8:
            diag(a, ao, OPK + ((t+2)>>1), (t+2)&1, SELE, SELO)
    a("s_mov_b32 exec_hi, 0")
    a("s_nop 2")
    for cg in range(5):
        a(f"ds_write_b128 {vr(VOF+3)}, {vr(VACC+4*cg,4)} offset:{512*cg}")
    a("s_mov_b64 exec, -1")
    a("s_waitcnt lgkmcnt(0)")


PR1=96; PR2=160; POWN=168; PXB=184; PVO=188; PVO0=189; PV2A=190; PV2B=191; PLA=192; POUT=193; PT=194
def set_poll_regs(base):
    global PR1, PR2, POWN, PXB, PVO, PVO0, PV2A, PV2B, PLA, POUT, PT
    PR1=base; PR2=base+64; POWN=base+72; PXB=base+88; PVO=base+92; PVO0=base+93; PV2A=base+94; PV2B=base+95; PLA=base+96; POUT=base+97; PT=base+98

def poll_setup(a, cfg):
    assert cfg.REDB or cfg.RED_H == 0
    L = 0
    a(f"s_mul_i32 {sr(S_T0)}, {sr(S_B)}, {32*2304}")
    srd(a, S_SRD2, S_WS, S_T0, 32*2304)
    a(f"s_mul_i32 {sr(S_T2)}, {sr(S_WAVE)}, 36")
    a(f"v_and_b32 {vr(PT)}, 31, {vr(L)}")
    a(f"v_add_u32 {vr(PT)}, {sr(S_T2)}, {vr(PT)}")
    a(f"v_lshlrev_b32 {vr(PVO)}, 4, {vr(PT)}")
    a(f"v_lshrrev_b32 {vr(PT+1)}, 5, {vr(L)}")
    a(f"s_mov_b32 {sr(S_T3)}, {16*2304}")
    a(f"v_mul_lo_u32 {vr(PT+1)}, {vr(PT+1)}, {sr(S_T3)}")
    a(f"v_add_u32 {vr(PVO)}, {vr(PVO)}, {vr(PT+1)}")
    a(f"v_mov_b32 {vr(PT+2)}, 0x7f000000")
    a(f"v_cmp_gt_u32 vcc, 32, {vr(L)}")
    a("s_nop 1")
    if cfg.REDB: a(f"v_mov_b32 {vr(PVO0)}, {vr(PVO)}")
    else: a(f"v_cndmask_b32 {vr(PVO0)}, {vr(PVO)}, {vr(PT+2)}, vcc")
    a(f"v_and_b32 {vr(PT)}, 3, {vr(L)}")
    a(f"v_add_u32 {vr(PT)}, {sr(S_T2)}, {vr(PT)}")
    a(f"v_add_u32 {vr(PT)}, 32, {vr(PT)}")
    a(f"v_lshlrev_b32 {vr(PV2A)}, 4, {vr(PT)}")
    a(f"v_lshrrev_b32 {vr(PT+1)}, 2, {vr(L)}")
    a(f"s_movk_i32 {sr(S_T3)}, {2*2304}")
    a(f"v_mul_lo_u32 {vr(PT+1)}, {vr(PT+1)}, {sr(S_T3)}")
    a(f"v_add_u32 {vr(PV2A)}, {vr(PV2A)}, {vr(PT+1)}")
    a(f"v_add_u32 {vr(PV2B)}, 2304, {vr(PV2A)}")
    a(f"v_cmp_gt_u32 vcc, 4, {vr(L)}")
    a("s_nop 1")
    if not cfg.REDB: a(f"v_cndmask_b32 {vr(PV2A)}, {vr(PV2A)}, {vr(PT+2)}, vcc")
    a(f"v_add_u32 {vr(PT)}, {sr(S_T2)}, {vr(L)}")
    a(f"v_lshlrev_b32 {vr(PLA)}, 4, {vr(PT)}")
    a(f"v_add_u32 {vr(PLA)}, {OUTP}, {vr(PLA)}")
    a(f"v_lshlrev_b32 {vr(POUT)}, 3, {vr(PT)}")
    a(f"v_cmp_gt_u32 vcc, 36, {vr(L)}")
    a("s_nop 1")
    a(f"v_cndmask_b32 {vr(POUT)}, {vr(PT+2)}, {vr(POUT)}, vcc")
    a(f"s_mul_i32 {sr(S_T0)}, {sr(S_B)}, 1152")
    srd(a, S_SRD3, S_X, S_T0, 1152)
    a(f"buffer_load_dwordx2 {vr(PXB,2)}, {vr(POUT)}, {sr(S_SRD3,4)}, 0 offen")
    srd(a, S_SRD3, S_B2, None, 1152)
    a(f"buffer_load_dwordx2 {vr(PXB+2,2)}, {vr(POUT)}, {sr(S_SRD3,4)}, 0 offen")

def gen_poll_tail(a, cfg):
    V_LANE = 0
    a("s_barrier")
    stamp(a, cfg, 4)
    a("s_branch L_done")
    a.label("L_tail")
    a(f"s_lshl_b32 {sr(S_T0)}, {sr(S_WAVE)}, 10")
    a(f"v_lshl_add_u32 v2, {vr(V_LANE)}, 4, {sr(S_T0)}")
    a(f"v_add_u32 v3, {OUTP}, v2")
    a(f"s_mul_i32 {sr(S_T0)}, {sr(S_WG)}, 2304")
    srd(a, S_SRD3, S_WS, S_T0, 2304)
    a("s_barrier")
    stamp(a, cfg, 4)
    a(f"s_cmp_ge_u32 {sr(S_WAVE)}, 3")
    a("s_cbranch_scc1 L_done")
    for sw in range(4):
        a(f"ds_read_b128 {vr(8+4*sw,4)}, v3 offset:{sw*2560}")
    a("s_waitcnt lgkmcnt(2)")
    a("v_pk_add_f32 v[8:9], v[8:9], v[12:13]")
    a("v_pk_add_f32 v[10:11], v[10:11], v[14:15]")
    a("s_waitcnt lgkmcnt(0)")
    a("v_pk_add_f32 v[16:17], v[16:17], v[20:21]")
    a("v_pk_add_f32 v[18:19], v[18:19], v[22:23]")
    a("v_pk_add_f32 v[8:9], v[8:9], v[16:17]")
    a("v_pk_add_f32 v[10:11], v[10:11], v[18:19]")
    a(f"buffer_store_dwordx4 v[8:11], v2, {sr(S_SRD3,4)}, 0 offen {cfg.PUBF}")
    a("s_branch L_done")

    def pload(s):
        if s < 16:
            a(f"s_mov_b32 {sr(S_T0)}, {s*2304}")
            a(f"buffer_load_dwordx4 {vr(PR1+4*s,4)}, {vr(PVO0 if s == 0 else PVO)}, {sr(S_SRD2,4)}, {sr(S_T0)} offen {cfg.POLF}")
        else:
            a(f"buffer_load_dwordx4 {vr(PR2+4*(s-16),4)}, {vr(PV2A if s == 16 else PV2B)}, {sr(S_SRD2,4)}, 0 offen {cfg.POLF}")
    def reg(s): return PR1+4*s if s < 16 else PR2+4*(s-16)
    a.label("L_reducer")
    for s_ in range(18): pload(s_)
    a("s_barrier")
    stamp(a, cfg, 4)
    for sw in range(4):
        a(f"ds_read_b128 {vr(POWN+4*sw,4)}, {vr(PLA)} offset:{sw*2560}")
    a("s_waitcnt lgkmcnt(0)")
    for e in range(4):
        a(f"v_add_f32 {vr(POWN+e)}, {vr(POWN+e)}, {vr(POWN+4+e)}")
        a(f"v_add_f32 {vr(POWN+8+e)}, {vr(POWN+8+e)}, {vr(POWN+12+e)}")
    for e in range(4):
        a(f"v_add_f32 {vr(POWN+e)}, {vr(POWN+e)}, {vr(POWN+8+e)}")
    a(f"s_mov_b32 {sr(S_T1)}, 0xffff0000")
    for src in (PXB, PXB+2):
        a(f"v_lshlrev_b32 {vr(PT)}, 16, {vr(src)}")
        a(f"v_and_b32 {vr(PT+1)}, {sr(S_T1)}, {vr(src)}")
        a(f"v_lshlrev_b32 {vr(PT+2)}, 16, {vr(src+1)}")
        a(f"v_and_b32 {vr(PT+3)}, {sr(S_T1)}, {vr(src+1)}")
        for e in range(4):
            a(f"v_add_f32 {vr(POWN+e)}, {vr(POWN+e)}, {vr(PT+e)}")
    a(f"s_mul_i32 {sr(S_T0)}, {sr(S_B)}, 1152")
    srd(a, S_SRD3, S_OUT, S_T0, 1152)
    a(f"s_mov_b32 {sr(S_CNT)}, 200000")
    TS = PT + 4
    TQ = TS + 32
    a.label("L_poll")
    a(f"s_sub_u32 {sr(S_CNT)}, {sr(S_CNT)}, 1")
    a("s_cbranch_scc1 L_pollok")
    if cfg.POLLDBG:
        a(f"s_mov_b32 {sr(S_STAMP+2)}, {sr(S_STAMP+8)}")
        a(f"s_mov_b32 {sr(S_STAMP+3)}, {sr(S_STAMP+9)}")
        a(f"s_memrealtime {sr(S_STAMP+4,2)}")
    a("s_waitcnt vmcnt(0)")
    if cfg.POLLDBG:
        a(f"s_memrealtime {sr(S_STAMP+8,2)}")
        a("s_waitcnt lgkmcnt(0)")
    for k in range(0, 32, 2):
        a(f"v_pk_add_f32 {vr(TS+k,2)}, {vr(PR1+k,2)}, {vr(PR1+k+32,2)}")
    for k in (0, 2):
        a(f"v_pk_add_f32 {vr(TQ+k,2)}, {vr(PR2+k,2)}, {vr(PR2+4+k,2)}")
    for step in (16, 8, 4):
        for k in range(0, step, 2):
            a(f"v_pk_add_f32 {vr(TS+k,2)}, {vr(TS+k,2)}, {vr(TS+k+step,2)}")
    a(f"v_pk_add_f32 {vr(TS+4,2)}, {vr(TS,2)}, {vr(TS+2,2)}")
    a(f"v_pk_add_f32 {vr(TS+6,2)}, {vr(TQ,2)}, {vr(TQ+2,2)}")
    a(f"v_pk_add_f32 {vr(TS+4,2)}, {vr(TS+4,2)}, {vr(TS+6,2)}")
    a(f"v_cmp_u_f32 vcc, {vr(TS+4)}, {vr(TS+5)}")
    a("s_cbranch_vccz L_pollok")
    MASK = [16,18,20,22,24,26,28,30, 84,86,88,90,92,94,96,98,100, 4]
    tt = [PT, PT+1, PT+2, PT+3]
    for s_ in range(18):
        r = reg(s_); t0 = tt[s_ % 4]
        a(f"v_max3_u32 {vr(t0)}, {vr(r)}, {vr(r+1)}, {vr(r+2)}")
        a(f"v_max_u32 {vr(t0)}, {vr(t0)}, {vr(r+3)}")
        a(f"v_cmp_eq_u32 {sr(MASK[s_],2)}, -1, {vr(t0)}")
    a(f"s_mov_b32 {sr(S_T2)}, 0")
    a("s_nop 2")
    for s_ in range(18):
        a(f"s_cmp_lg_u64 {sr(MASK[s_],2)}, 0")
        a(f"s_cbranch_scc1 L_rl{s_}")
        a.label(f"L_rb{s_}")
    a(f"s_cmp_lg_u32 {sr(S_T2)}, 0")
    a("s_cbranch_scc1 L_poll")
    a("s_branch L_pollok")
    for s_ in range(18):
        a.label(f"L_rl{s_}")
        a(f"s_mov_b64 exec, {sr(MASK[s_],2)}")
        if s_ < 16:
            a(f"s_mov_b32 {sr(S_T0)}, {s_*2304}")
            a(f"buffer_load_dwordx4 {vr(PR1+4*s_,4)}, {vr(PVO0 if s_ == 0 else PVO)}, {sr(S_SRD2,4)}, {sr(S_T0)} offen {cfg.POLF}")
        else:
            a(f"buffer_load_dwordx4 {vr(PR2+4*(s_-16),4)}, {vr(PV2A if s_ == 16 else PV2B)}, {sr(S_SRD2,4)}, 0 offen {cfg.POLF}")
        a("s_mov_b64 exec, -1")
        a(f"s_mov_b32 {sr(S_T2)}, 1")
        a(f"s_branch L_rb{s_}")
    a.label("L_pollok")
    stamp(a, cfg, 5)
    if cfg.POLLDBG:
        a(f"s_sub_u32 {sr(S_STAMP+6)}, 200000, {sr(S_CNT)}")
        a(f"s_mov_b32 {sr(S_STAMP+7)}, 0")
    for e in range(4):
        a(f"v_mov_b32 {vr(PR1+e)}, {vr(TS+e)}")
        a(f"v_mov_b32 {vr(PR2+e)}, {vr(TQ+e)}")
    for e in range(4):
        a(f"v_mov_b32 {vr(PR1+8+e)}, {vr(PR1+e)}")
    a("s_nop 1")
    for e in range(4):
        a(f"v_permlane32_swap_b32 {vr(PR1+e)}, {vr(PR1+8+e)}")
    for r_ in (4, 8):
        for e in range(4):
            a(f"v_add_f32_dpp {vr(PR2+e)}, {vr(PR2+e)}, {vr(PR2+e)} row_ror:{r_} row_mask:0xf bank_mask:0xf")
    for e in range(4):
        a(f"v_add_f32 {vr(PR1+e)}, {vr(PR1+e)}, {vr(PR1+8+e)}")
    for e in range(4):
        a(f"v_mov_b32 {vr(PR2+4+e)}, {vr(PR2+e)}")
    a("s_nop 1")
    for e in range(4):
        a(f"v_permlane16_swap_b32 {vr(PR2+e)}, {vr(PR2+4+e)}")
    a("s_nop 1")
    for e in range(4):
        a(f"v_add_f32 {vr(PR2+e)}, {vr(PR2+e)}, {vr(PR2+4+e)}")
    for e in range(4):
        a(f"v_mov_b32 {vr(PR2+4+e)}, {vr(PR2+e)}")
    a("s_nop 1")
    for e in range(4):
        a(f"v_permlane32_swap_b32 {vr(PR2+e)}, {vr(PR2+4+e)}")
    a("s_nop 1")
    for e in range(4):
        a(f"v_add_f32 {vr(PR2+e)}, {vr(PR2+e)}, {vr(PR2+4+e)}")
    a(f"v_cmp_gt_u32 vcc, 32, {vr(V_LANE)}")
    a(f"s_mov_b32 {sr(S_T1)}, 0xffff0000")
    a("s_nop 0")
    for e in range(4):
        a(f"v_cndmask_b32 {vr(PR1+e)}, {vr(PR2+e)}, {vr(PR1+e)}, vcc")
    for e in range(4):
        a(f"v_add_f32 {vr(PR1+e)}, {vr(PR1+e)}, {vr(POWN+e)}")
    a(f"v_cvt_pk_bf16_f32 {vr(PR1)}, {vr(PR1)}, {vr(PR1+1)}")
    a(f"v_cvt_pk_bf16_f32 {vr(PR1+1)}, {vr(PR1+2)}, {vr(PR1+3)}")
    a(f"buffer_store_dwordx2 {vr(PR1,2)}, {vr(POUT)}, {sr(S_SRD3,4)}, 0 offen")

def gen_tail(a, cfg):
    V_LANE=0
    if cfg.POLL:
        gen_poll_tail(a, cfg)
    else:
        gen_count_tail(a, cfg)
    gen_end(a, cfg)

def gen_count_tail(a, cfg):
    V_LANE=0
    a.label("L_tail")
    a("s_barrier")
    stamp(a, cfg, 4)
    a(f"s_cmp_lg_u32 {sr(S_WAVE)}, 0")
    a("s_cbranch_scc1 L_wait_flag")
    a(f"v_lshlrev_b32 v2, 4, {vr(V_LANE)}")
    a(f"v_add_u32 v3, {OUTP}, v2")
    for k in range(3):
        for sw in range(4):
            a(f"ds_read_b128 {vr(8+16*k+4*sw,4)}, v3 offset:{sw*2560 + k*1024}")
    a(f"s_mul_i32 {sr(S_T0)}, {sr(S_WG)}, 2304")
    srd(a, S_SRD2, S_WS, S_T0, 2304)
    for k in range(3):
        a(f"s_waitcnt lgkmcnt({8-4*k})")
        b = 8+16*k
        for e in range(4):
            a(f"v_add_f32 {vr(b+e)}, {vr(b+e)}, {vr(b+4+e)}")
            a(f"v_add_f32 {vr(b+8+e)}, {vr(b+8+e)}, {vr(b+12+e)}")
        for e in range(4):
            a(f"v_add_f32 {vr(b+e)}, {vr(b+e)}, {vr(b+8+e)}")
        a(f"buffer_store_dwordx4 {vr(b,4)}, v2, {sr(S_SRD2,4)}, 0 offen offset:{1024*k} sc1")
    a("s_waitcnt vmcnt(0)")
    a(f"s_lshl_b32 {sr(S_T0)}, {sr(S_B)}, 5")
    a(f"v_mov_b32 v4, {sr(S_T0)}")
    a("v_mov_b32 v5, 1")
    a("s_mov_b64 exec, 1")
    a(f"global_atomic_add v6, v4, v5, {sr(S_DBG,2)} sc0")
    a("s_waitcnt vmcnt(0)")
    a(f"v_mov_b32 v7, {FLAG}")
    a("ds_write_b32 v7, v6")
    a("s_mov_b64 exec, -1")
    a("s_waitcnt lgkmcnt(0)")
    a.label("L_wait_flag")
    a("s_barrier")
    stamp(a, cfg, 5)
    a(f"v_mov_b32 v7, {FLAG}")
    a("ds_read_b32 v6, v7")
    a("s_waitcnt lgkmcnt(0)")
    a("s_nop 0")
    a(f"v_readfirstlane_b32 {sr(S_T0)}, v6")
    a("s_nop 3")
    a(f"s_cmp_lg_u32 {sr(S_T0)}, 31")
    a("s_cbranch_scc1 L_done")
    a(f"s_mul_i32 {sr(S_T0)}, {sr(S_B)}, {32*2304}")
    srd(a, S_SRD2, S_WS, S_T0, 32*2304)
    a(f"v_lshlrev_b32 v2, 4, {vr(V_LANE)}")
    a(f"v_add_u32 v3, 2048, v2")
    a("v_mov_b32 v4, 0x7f000000")
    a(f"v_cmp_gt_u32 vcc, 16, {vr(V_LANE)}")
    a("s_nop 1")
    a("v_cndmask_b32 v3, v4, v3, vcc")
    a(f"s_mul_i32 {sr(S_T1)}, {sr(S_WAVE)}, {4*2304}")
    for u in range(4):
        a(f"buffer_load_dwordx4 {vr(8+12*u,4)}, v2, {sr(S_SRD2,4)}, {sr(S_T1)} offen sc1")
        a(f"buffer_load_dwordx4 {vr(12+12*u,4)}, v2, {sr(S_SRD2,4)}, {sr(S_T1)} offen offset:1024 sc1")
        a(f"buffer_load_dwordx4 {vr(16+12*u,4)}, v3, {sr(S_SRD2,4)}, {sr(S_T1)} offen sc1")
        if u < 3: a(f"s_add_u32 {sr(S_T1)}, {sr(S_T1)}, 2304")
    a(f"s_mul_i32 {sr(S_T0)}, {sr(S_B)}, 1152")
    srd(a, S_SRD3, S_X, S_T0, 1152)
    srd(a, S_SRDK, S_B2, None, 1152)
    a(f"s_lshl_b32 {sr(S_T2)}, {sr(S_WAVE)}, 6")
    a(f"v_add_u32 v5, {sr(S_T2)}, {vr(V_LANE)}")
    a("v_lshlrev_b32 v6, 3, v5")
    a(f"buffer_load_dwordx2 v[60:61], v6, {sr(S_SRD3,4)}, 0 offen")
    a(f"buffer_load_dwordx2 v[62:63], v6, {sr(S_SRDK,4)}, 0 offen")
    a("s_waitcnt vmcnt(2)")
    for e in range(12):
        a(f"v_add_f32 {vr(8+e)}, {vr(8+e)}, {vr(20+e)}")
        a(f"v_add_f32 {vr(32+e)}, {vr(32+e)}, {vr(44+e)}")
    for e in range(12):
        a(f"v_add_f32 {vr(8+e)}, {vr(8+e)}, {vr(32+e)}")
    a(f"s_mul_i32 {sr(S_T0)}, {sr(S_WAVE)}, 3072")
    a(f"v_add_u32 v7, {sr(S_T0)}, v2")
    for k in range(3):
        a(f"ds_write_b128 v7, {vr(8+4*k,4)} offset:{RED + 1024*k}")
    a("s_waitcnt lgkmcnt(0)")
    a("s_barrier")
    a(f"s_cmp_ge_u32 {sr(S_WAVE)}, 3")
    a("s_cbranch_scc1 L_done")
    a("v_lshlrev_b32 v7, 4, v5")
    for w in range(8):
        a(f"ds_read_b128 {vr(8+4*w,4)}, v7 offset:{RED + 3072*w}")
    a("s_waitcnt lgkmcnt(0)")
    for e in range(4):
        a(f"v_add_f32 {vr(8+e)}, {vr(8+e)}, {vr(12+e)}")
        a(f"v_add_f32 {vr(16+e)}, {vr(16+e)}, {vr(20+e)}")
        a(f"v_add_f32 {vr(24+e)}, {vr(24+e)}, {vr(28+e)}")
        a(f"v_add_f32 {vr(32+e)}, {vr(32+e)}, {vr(36+e)}")
    for e in range(4):
        a(f"v_add_f32 {vr(8+e)}, {vr(8+e)}, {vr(16+e)}")
        a(f"v_add_f32 {vr(24+e)}, {vr(24+e)}, {vr(32+e)}")
    for e in range(4):
        a(f"v_add_f32 {vr(8+e)}, {vr(8+e)}, {vr(24+e)}")
    a("s_waitcnt vmcnt(0)")
    a(f"s_mov_b32 {sr(S_T1)}, 0xffff0000")
    for (src) in (60, 62):
        a(f"v_lshlrev_b32 v40, 16, {vr(src)}")
        a(f"v_and_b32 v41, {sr(S_T1)}, {vr(src)}")
        a(f"v_lshlrev_b32 v42, 16, {vr(src+1)}")
        a(f"v_and_b32 v43, {sr(S_T1)}, {vr(src+1)}")
        for e in range(4):
            a(f"v_add_f32 {vr(8+e)}, {vr(8+e)}, {vr(40+e)}")
    a("v_cvt_pk_bf16_f32 v8, v8, v9")
    a("v_cvt_pk_bf16_f32 v9, v10, v11")
    a(f"s_mul_i32 {sr(S_T0)}, {sr(S_B)}, 1152")
    srd(a, S_SRD2, S_OUT, S_T0, 1152)
    a(f"buffer_store_dwordx2 v[8:9], v6, {sr(S_SRD2,4)}, 0 offen")

def gen_end(a, cfg):
    a.label("L_done")
    if cfg.SPINTO or cfg.SPINX >= 0:
        a(f"s_cmp_lg_u32 {sr(S_WAVE)}, 0")
        a("s_cbranch_scc1 L_exit")
        a(f"s_memrealtime {sr(S_STAMP+12,2)}")
        a("s_waitcnt lgkmcnt(0)")
        if cfg.SPINTO:
            a(f"s_add_u32 {sr(S_T2)}, {sr(S_STAMP)}, {cfg.SPINTO}")
        else:
            a(f"s_sub_u32 {sr(S_T2)}, {sr(S_STAMP+2*cfg.SPINX)}, {sr(S_STAMP)}")
            a(f"s_add_u32 {sr(S_T2)}, {sr(S_T2)}, {sr(S_STAMP+12)}")
        a.label("L_spin")
        a(f"s_memrealtime {sr(S_STAMP+12,2)}")
        a("s_waitcnt lgkmcnt(0)")
        a(f"s_sub_u32 {sr(S_T3)}, {sr(S_STAMP+12)}, {sr(S_T2)}")
        a(f"s_cmp_lt_i32 {sr(S_T3)}, 0")
        a("s_cbranch_scc1 L_spin")
    if cfg.DBGT:
        a(f"s_memrealtime {sr(S_STAMP+12,2)}")
        a("s_waitcnt lgkmcnt(0)")
        a(f"s_cmp_lg_u32 {sr(S_WAVE)}, 0")
        a("s_cbranch_scc1 L_exit")
        a("s_mov_b64 exec, 1")
        a("v_mov_b32 v2, 0")
        for (w, idx, inv) in [(1,0,True),(2,2,False),(3,3,False),(4,6,False),(5,3,True),(6,6,True),(7,2,True)]:
            a(f"v_mov_b32 v4, {sr(S_STAMP+2*idx)}")
            if inv: a("v_not_b32 v4, v4")
            a(f"global_atomic_umax v2, v4, {sr(S_DBG,2)} offset:{4*w}")
    if cfg.STAMPS:
        stamp(a, cfg, 6)
        a("s_waitcnt lgkmcnt(0)")
        a(f"s_lshl_b32 {sr(S_T0)}, {sr(S_WG)}, 3")
        a(f"s_add_u32 {sr(S_T0)}, {sr(S_T0)}, {sr(S_WAVE)}")
        a(f"s_lshl_b32 {sr(S_T0)}, {sr(S_T0)}, 6")
        a(f"s_add_u32 {sr(S_T0)}, {sr(S_T0)}, 0x100000")
        a(f"v_mov_b32 v2, {sr(S_T0)}")
        a("s_mov_b64 exec, 1")
        for k in range(7):
            a(f"v_mov_b32 v4, {sr(S_STAMP+2*k)}")
            a(f"v_mov_b32 v5, {sr(S_STAMP+2*k+1)}")
            a(f"global_store_dwordx2 v2, v[4:5], {sr(S_WS,2)} offset:{8*k}")
    a.label("L_exit")
    a("s_endpgm")

def generate(cfg):
    a = Asm()
    stamp(a, cfg, 0)
    a(f"s_cmp_ge_u32 {sr(S_WG)}, 256")
    a("s_cbranch_scc1 L_exit")
    a(f"s_load_dwordx4 {sr(S_K,4)}, s[0:1], 8")
    a(f"s_load_dwordx2 {sr(S_X,2)}, s[0:1], 0")
    a(f"s_load_dwordx4 {sr(S_WQ,4)}, s[0:1], 24")
    a(f"s_load_dwordx4 {sr(S_W1,4)}, s[0:1], 48")
    a(f"s_load_dwordx4 {sr(S_W2,4)}, s[0:1], 64")
    a(f"s_load_dwordx4 {sr(S_OUT,4)}, s[0:1], 80")
    a(f"s_load_dwordx2 {sr(S_WS,2)}, s[0:1], 96")
    a("v_lshrrev_b32 v1, 6, v0")
    a(f"s_lshr_b32 {sr(S_B)}, {sr(S_WG)}, 5")
    a(f"v_readfirstlane_b32 {sr(S_WAVE)}, v1")
    if cfg.HMAP:
        a(f"s_and_b32 {sr(S_H)}, {sr(S_WG)}, 7")
        a(f"s_lshl_b32 {sr(S_H)}, {sr(S_H)}, 2")
        a(f"s_bfe_u32 {sr(S_T0)}, {sr(S_WG)}, 0x20003")
        a(f"s_add_u32 {sr(S_H)}, {sr(S_H)}, {sr(S_T0)}")
    else:
        a(f"s_and_b32 {sr(S_H)}, {sr(S_WG)}, 31")
    a("v_and_b32 v0, 63, v0")
    if cfg.HMAP:
        a(f"s_lshl_b32 {sr(S_WG)}, {sr(S_B)}, 5")
        a(f"s_add_u32 {sr(S_WG)}, {sr(S_WG)}, {sr(S_H)}")
    a("s_nop 1")
    a(f"s_cmp_ge_u32 {sr(S_WAVE)}, 4")
    if not cfg.SR: a("s_waitcnt lgkmcnt(0)")
    a("s_cbranch_scc1 L_side")
    (gen_stream_sr if cfg.SR else gen_stream)(a, cfg)
    gen_side(a, cfg)
    gen_tail(a, cfg)
    body = a.text()
    hdr = f"""; Fused decode block:  out = x + MHA(LN(x); K/V cache) @ wo + MLP(LN(LN(x)))          (B=8, H=32, Sk=4096, Dh=128, D=576, F=4608)
;       fixed number of loads in flight; q.K^T by MFMA from an XOR-swizzled K image, online softmax (true running max),
; Cross-workgroup sum over the 32 heads: every workgroup resets its slot in d_ws to a NaN sentinel at start (counted in d_debug),
;   publishes its partial with write-through stores at the end; workgroup h == b polls the 31 other slots, adds x + b2, stores out[b].
; Kernarg layout (104 bytes): A_x, K, V, wq, wo, B_x, w1, b1, w2, b2, out, debug, ws
; @launch grid=(256,1,1) block=(512,1,1) lds={LDS_BYTES}
.amdgcn_target "amdgcn-amd-amdhsa--gfx950"
.text
.globl {KNAME}
.p2align 8
.type {KNAME},@function
{KNAME}:
"""
    ftr = f"""
.section .rodata,"a"
.p2align 6
.amdhsa_kernel {KNAME}
  .amdhsa_next_free_vgpr 256
  .amdhsa_next_free_sgpr 102
  .amdhsa_accum_offset 256
  .amdhsa_group_segment_fixed_size 0
  .amdhsa_kernarg_size 104
  .amdhsa_user_sgpr_count 2
  .amdhsa_user_sgpr_kernarg_segment_ptr 1
  .amdhsa_system_sgpr_workgroup_id_x 1
  .amdhsa_float_denorm_mode_32 3
.end_amdhsa_kernel
"""
    return hdr + body + ftr

if __name__ == "__main__":
    cfg = Cfg()
    out = sys.argv[1]
    for kv in sys.argv[2:]:
        k, v = kv.split("=")
        cur = getattr(cfg, k)
        if isinstance(cur, bool): v = v in ("1","True","true")
        elif isinstance(cur, int): v = int(v)
        setattr(cfg, k, v)
    open(out, "w").write(generate(cfg))
    print("wrote", out, "LDS", LDS_BYTES)
```
